```python
import torch

def _softmax(x, axis=-1):
    return torch.softmax(x, dim=axis)
def _gelu(x):
    return torch.nn.functional.gelu(x, approximate="tanh")
def _silu(x):
    return torch.nn.functional.silu(x)
def _sigmoid(x):
    return torch.sigmoid(x)
def _layernorm(x, axis=-1, eps=1e-5):
    m = x.mean(dim=axis, keepdim=True)
    v = x.var(dim=axis, keepdim=True, unbiased=False)
    return (x - m) / torch.sqrt(v + eps)
def _scatter_add(tgt, idx, src, axis=0):
    return tgt.clone().index_add_(axis, idx, src)
def _segment_sum(src, seg, n):
    out = torch.zeros((n,) + src.shape[1:], dtype=src.dtype)
    return out.index_add_(0, seg, src)
def _pad(x, pw):
    flat = tuple(v for pair in reversed(pw) for v in pair)
    return torch.nn.functional.pad(x, flat)

kernel_name = 'concat_heads__gqa_block_cached__mha_block_cached__near_ridge'

def setup_inputs():

    _w = (lambda a: (lambda t: t.to(torch.bfloat16) if t.is_floating_point() else t)(torch.as_tensor(a)))
    def _A_setup():
        B, Sq, D = 8, 48, 512
        Hq, Hkv, Sk, Dh = 32, 8, 2048, 128
        assert Hq % Hkv == 0, (Hq, Hkv)
        return {
            "x": _w((lambda *s: torch.randn(*s, dtype=torch.bfloat16) * 0.8)(B, Sq, D)),
            "k_cache": _w((lambda *s: torch.randn(*s, dtype=torch.bfloat16) * 0.8)(B, Hkv, Sk, Dh)),
            "v_cache": _w((lambda *s: torch.randn(*s, dtype=torch.bfloat16) * 0.05)(B, Hkv, Sk, Dh)),
            "wq": _w((lambda *s: torch.randn(*s, dtype=torch.bfloat16) * 0.8)(D, Hq * Dh) * (D ** -0.5)),
            "wo": _w((lambda *s: torch.randn(*s, dtype=torch.bfloat16) * 0.05)(Hq * Dh, D) * ((Hq * Dh) ** -0.5)),
        }
    _A_in = _A_setup()

    def _B_setup():
        B, Sq, D = 8, 48, 512
        H, Sk, Dh = 32, 2048, 128
        return {
            "x": _w((lambda *s: torch.randn(*s, dtype=torch.bfloat16) * 0.8)(B, Sq, D)),
            "k_cache": _w((lambda *s: torch.randn(*s, dtype=torch.bfloat16) * 0.8)(B, H, Sk, Dh)),
            "v_cache": _w((lambda *s: torch.randn(*s, dtype=torch.bfloat16) * 0.05)(B, H, Sk, Dh)),
            "wq": _w((lambda *s: torch.randn(*s, dtype=torch.bfloat16) * 0.8)(D, H * Dh) * (D ** -0.5)),
            "wo": _w((lambda *s: torch.randn(*s, dtype=torch.bfloat16) * 0.05)(H * Dh, D) * ((H * Dh) ** -0.5)),
        }
    _B_in = _B_setup()

    return {
        "A_x": _A_in["x"],
        "A_k_cache": _A_in["k_cache"],
        "A_v_cache": _A_in["v_cache"],
        "A_wq": _A_in["wq"],
        "A_wo": _A_in["wo"],
        "B_x": _B_in["x"],
        "B_k_cache": _B_in["k_cache"],
        "B_v_cache": _B_in["v_cache"],
        "B_wq": _B_in["wq"],
        "B_wo": _B_in["wo"],
    }

def reference(A_x, A_k_cache, A_v_cache, A_wq, A_wo, B_x, B_k_cache, B_v_cache, B_wq, B_wo):
    def _A_ref(x, k_cache, v_cache, wq, wo):
        B, Sq, D = x.shape
        Hq, Dh = 32, 128
        Hkv = k_cache.shape[1]
        rep = Hq // Hkv
        q = (lambda x, *d: x.permute(*d))((x @ wq).reshape(B, Sq, Hq, Dh), 0, 2, 1, 3)
        k = (lambda x, n, axis: torch.repeat_interleave(x, n, dim=axis))(k_cache, rep, axis=1)
        v = (lambda x, n, axis: torch.repeat_interleave(x, n, dim=axis))(v_cache, rep, axis=1)
        scores = torch.einsum("bhqd,bhkd->bhqk", q, k) * (Dh ** -0.5)
        p = _softmax(scores, axis=-1)
        o = torch.einsum("bhqk,bhkd->bhqd", p, v)
        return (lambda x, *d: x.permute(*d))(o, 0, 2, 1, 3).reshape(B, Sq, Hq * Dh) @ wo

    def _B_ref(x, k_cache, v_cache, wq, wo):
        B, Sq, D = x.shape
        H, Dh = 32, 128
        q = (lambda x, *d: x.permute(*d))((x @ wq).reshape(B, Sq, H, Dh), 0, 2, 1, 3)
        scores = torch.einsum("bhqd,bhkd->bhqk", q, k_cache) * (Dh ** -0.5)
        p = _softmax(scores, axis=-1)
        o = torch.einsum("bhqk,bhkd->bhqd", p, v_cache)
        return (lambda x, *d: x.permute(*d))(o, 0, 2, 1, 3).reshape(B, Sq, H * Dh) @ wo

    a = _A_ref(A_x, A_k_cache, A_v_cache, A_wq, A_wo)
    b = _B_ref(B_x, B_k_cache, B_v_cache, B_wq, B_wo)
    return torch.concatenate([a, b], axis=-1)
```

```python
import sys, argparse

NAME = 'concat_heads__gqa_block_cached__mha_block_cached__near_ridge'

class Asm:
    def __init__(self): self.L = []
    def __call__(self, s): self.L.append('    ' + s)
    def label(self, s): self.L.append(s + ':')
    def c(self, s): self.L.append('    ; ' + s)
    def text(self): return '\n'.join(self.L) + '\n'

def vr(b, n=1): return f'v{b}' if n == 1 else f'v[{b}:{b+n-1}]'
def sr(b, n=1): return f's{b}' if n == 1 else f's[{b}:{b+n-1}]'

VOFFK = 4
VOFFV = 8
KADDR = 10
VADDR = 14
MREF = 22
LSUM = 25
LT = 28
TMP = 31
T0 = 32
Q0 = 40
O0 = 88
S0 = 184
P0 = 208
F0 = 220
X0 = 252
def Q(tq, kk): return Q0 + (tq * 4 + kk) * 4
def O(td, tq): return O0 + (td * 3 + tq) * 4
def S(kt, tq): return S0 + (kt * 3 + tq) * 4
def P(tq): return P0 + tq * 4
def KF(kt, kk): return F0 + (kt * 4 + kk) * 4
def VF(td): return F0 + td * 4

SK, SV, SX, SWQ = 4, 8, 12, 16
S_W, S_B, S_H, S_ISB = 20, 21, 22, 23
S_KOFF, S_VOFF, S_CNT = 24, 25, 26
S_KSLOT, S_VSLOT, S_SCR = 27, 28, 29
S_C, S_THR, S_SELLO, S_SELHI = 30, 31, 32, 33
S_T = 34
S_STAMP = 60

KSLOT = lambda w: w * 8192
VSLOT = lambda w: 32768 + w * 8192
SCR = lambda w: 65536 + w * 4096

class Cfg: pass

def stamp(a, cfg, k):
    if cfg.stamps:
        a(f's_memrealtime {sr(S_STAMP + 2 * k, 2)}')
        a('s_waitcnt lgkmcnt(0)')

def dma_tile(a, cfg, srd, voffs, soff, slot, nt, inter=None):
    f = ' nt' if nt else ''
    for n in range(8):
        if n == 0:
            a(f's_mov_b32 m0, {sr(slot)}')
            a(f's_add_u32 {sr(S_T)}, {sr(soff)}, 0x1000')
        if n == 4:
            a(f's_add_u32 m0, {sr(slot)}, 0x1000')
            a('s_nop 0')
        so = sr(soff) if n < 4 else sr(S_T)
        a(f'buffer_load_dwordx4 {vr(voffs(n))}, {sr(srd, 4)}, {so} offen offset:{(n & 3) * 1024}{f} lds')
        if inter:
            for s in inter[n]: a(s)
    a(f's_add_u32 {sr(soff)}, {sr(soff)}, 0x2000')
    a(f's_and_b32 {sr(soff)}, {sr(soff)}, 0x1ffff')

def xlane_reduce(a, op, x, tmp):
    a(f'v_mov_b32 {vr(tmp)}, {vr(x)}')
    a('s_nop 1')
    a(f'v_permlane32_swap_b32 {vr(x)}, {vr(tmp)}')
    a('s_nop 1')
    a(f'{op} {vr(x)}, {vr(x)}, {vr(tmp)}')
    a(f'v_mov_b32 {vr(tmp)}, {vr(x)}')
    a('s_nop 1')
    a(f'v_permlane16_swap_b32 {vr(x)}, {vr(tmp)}')
    a('s_nop 1')
    a(f'{op} {vr(x)}, {vr(x)}, {vr(tmp)}')

def body(a, cfg, tag, prefetch, nt):
    a('s_waitcnt vmcnt(8)')
    for kt in range(2):
        for kk in range(4):
            a(f'ds_read_b128 {vr(KF(kt, kk), 4)}, {vr(KADDR + kk)} offset:{kt * 4096}')
    a('s_waitcnt lgkmcnt(0)')
    mf = []
    if cfg.compute:
        for kk in range(4):
            for tq in range(3):
                for kt in range(2):
                    c = '0' if kk == 0 else vr(S(kt, tq), 4)
                    mf.append(f'v_mfma_f32_16x16x32_bf16 {vr(S(kt, tq), 4)}, {vr(KF(kt, kk), 4)}, {vr(Q(tq, kk), 4)}, {c}')
    if prefetch:
        inter = [mf[3 * n:3 * n + 3] for n in range(8)]
        dma_tile(a, cfg, SK, lambda n: VOFFK + (n & 3), S_KOFF, S_KSLOT, nt, inter)
    else:
        for s in mf: a(s)
    if cfg.compute:
        a('s_nop 2')
        a.label(f'SM_{tag}')
        for tq in range(3):
            A, B = T0, T0 + 4
            m = vr(MREF + tq)
            for r in range(4): a(f'v_fma_f32 {vr(A + r)}, {vr(S(0, tq) + r)}, {sr(S_C)}, -{m}')
            for r in range(4): a(f'v_fma_f32 {vr(B + r)}, {vr(S(1, tq) + r)}, {sr(S_C)}, -{m}')
            for r in range(4): a(f'v_exp_f32 {vr(A + r)}, {vr(A + r)}')
            for r in range(4): a(f'v_exp_f32 {vr(B + r)}, {vr(B + r)}')
            a(f'v_cvt_pk_bf16_f32 {vr(P(tq))}, {vr(A)}, {vr(A + 1)}')
            a(f'v_cvt_pk_bf16_f32 {vr(P(tq) + 1)}, {vr(A + 2)}, {vr(A + 3)}')
            a(f'v_add_f32 {vr(A)}, {vr(A)}, {vr(A + 1)}')
            a(f'v_add_f32 {vr(A + 2)}, {vr(A + 2)}, {vr(A + 3)}')
            a(f'v_cvt_pk_bf16_f32 {vr(P(tq) + 2)}, {vr(B)}, {vr(B + 1)}')
            a(f'v_cvt_pk_bf16_f32 {vr(P(tq) + 3)}, {vr(B + 2)}, {vr(B + 3)}')
            a(f'v_add_f32 {vr(B)}, {vr(B)}, {vr(B + 1)}')
            a(f'v_add_f32 {vr(B + 2)}, {vr(B + 2)}, {vr(B + 3)}')
            a(f'v_add_f32 {vr(A)}, {vr(A)}, {vr(A + 2)}')
            a(f'v_add_f32 {vr(B)}, {vr(B)}, {vr(B + 2)}')
            a(f'v_add_f32 {vr(LT + tq)}, {vr(A)}, {vr(B)}')
        a(f'v_max3_f32 {vr(TMP)}, {vr(LT)}, {vr(LT + 1)}, {vr(LT + 2)}')
        a(f'v_cmp_lt_f32 vcc, {sr(S_THR)}, {vr(TMP)}')
        a(f's_cbranch_vccnz SLOW_{tag}')
        a(f's_mov_b32 {sr(S_THR)}, 0x43800000')
        for tq in range(3): a(f'v_add_f32 {vr(LSUM + tq)}, {vr(LSUM + tq)}, {vr(LT + tq)}')
    a(f's_waitcnt vmcnt({8 if prefetch else 0})')
    for td in range(8):
        a(f'ds_read_b64_tr_b16 {vr(VF(td), 2)}, {vr(VADDR + td)}')
        a(f'ds_read_b64_tr_b16 {vr(VF(td) + 2, 2)}, {vr(VADDR + td)} offset:4096')
    a('s_waitcnt lgkmcnt(0)')
    mf = []
    if cfg.compute:
        for td in range(8):
            for tq in range(3):
                mf.append(f'v_mfma_f32_16x16x32_bf16 {vr(O(td, tq), 4)}, {vr(VF(td), 4)}, {vr(P(tq), 4)}, {vr(O(td, tq), 4)}')
    if prefetch:
        inter = [mf[3 * n:3 * n + 3] for n in range(8)]
        dma_tile(a, cfg, SV, lambda n: VOFFV + (n & 1), S_VOFF, S_VSLOT, nt, inter)
    else:
        for s in mf: a(s)

def slow(a, cfg, tag):
    a.label(f'SLOW_{tag}')
    for tq in range(3):
        mx = T0 + tq
        s0, s1 = S(0, tq), S(1, tq)
        a(f'v_max3_f32 {vr(mx)}, {vr(s0)}, {vr(s0 + 1)}, {vr(s0 + 2)}')
        a(f'v_max3_f32 {vr(mx)}, {vr(mx)}, {vr(s0 + 3)}, {vr(s1)}')
        a(f'v_max3_f32 {vr(mx)}, {vr(mx)}, {vr(s1 + 1)}, {vr(s1 + 2)}')
        a(f'v_max_f32 {vr(mx)}, {vr(mx)}, {vr(s1 + 3)}')
    for tq in range(3):
        xlane_reduce(a, 'v_max_f32', T0 + tq, TMP)
    for tq in range(3):
        mx, al = T0 + tq, T0 + 4 + tq
        a(f'v_mul_f32 {vr(mx)}, {sr(S_C)}, {vr(mx)}')
        a(f'v_max_f32 {vr(mx)}, {vr(mx)}, {vr(MREF + tq)}')
        a(f'v_sub_f32 {vr(al)}, {vr(MREF + tq)}, {vr(mx)}')
        a(f'v_exp_f32 {vr(al)}, {vr(al)}')
        a(f'v_mov_b32 {vr(MREF + tq)}, {vr(mx)}')
        a(f'v_mul_f32 {vr(LSUM + tq)}, {vr(LSUM + tq)}, {vr(al)}')
        for td in range(8):
            for r in range(4):
                a(f'v_mul_f32 {vr(O(td, tq) + r)}, {vr(O(td, tq) + r)}, {vr(al)}')
    a(f's_mov_b32 {sr(S_THR)}, 0x7f800000')
    a(f's_branch SM_{tag}')

def attn_kernel(a, cfg):
    K = cfg.k1name
    a.L.append(f'.globl {K}')
    a.L.append('.p2align 8')
    a.L.append(f'.type {K},@function')
    a.label(K)
    a('s_cmp_ge_u32 s2, 512')
    a('s_cbranch_scc1 K1_END')
    stamp(a, cfg, 0)
    a('s_load_dwordx8 s[36:43], s[0:1], 0')
    a('s_load_dwordx8 s[44:51], s[0:1], 40')
    a('s_load_dwordx2 s[52:53], s[0:1], 96')
    a('v_lshrrev_b32 v1, 6, v0')
    a('v_and_b32 v0, 63, v0')
    a('s_and_b32 s34, s2, 7')
    a('s_lshr_b32 s35, s2, 3')
    if cfg.typemode == 0:
        a(f's_lshr_b32 {sr(S_ISB)}, s35, 5')
        a('s_and_b32 s35, s35, 31')
    else:
        a(f's_and_b32 {sr(S_ISB)}, s35, 1')
        a('s_lshr_b32 s35, s35, 1')
    if cfg.swapab:
        a(f's_xor_b32 {sr(S_ISB)}, {sr(S_ISB)}, 1')
    a(f'v_readfirstlane_b32 {sr(S_W)}, v1')
    a(f's_lshr_b32 {sr(S_B)}, s35, 2')
    a('s_and_b32 s35, s35, 3')
    a('s_lshl_b32 s54, s34, 2')
    a(f's_add_u32 {sr(S_H)}, s54, s35')
    a(f's_lshl_b32 s54, {sr(S_B)}, 3')
    a('s_add_u32 s54, s54, s34')
    a(f's_lshl_b32 s55, {sr(S_B)}, 5')
    a(f's_add_u32 s55, s55, {sr(S_H)}')
    a(f's_cmp_eq_u32 {sr(S_ISB)}, 1')
    a('s_cselect_b32 s54, s55, s54')
    a('s_waitcnt lgkmcnt(0)')
    a('s_cselect_b64 s[36:37], s[44:45], s[36:37]')
    a('s_cselect_b64 s[38:39], s[46:47], s[38:39]')
    a('s_cselect_b64 s[40:41], s[48:49], s[40:41]')
    a('s_cselect_b64 s[42:43], s[50:51], s[42:43]')
    a('s_lshl_b32 s54, s54, 2')
    a(f's_add_u32 s54, s54, {sr(S_W)}')
    a('s_lshr_b32 s55, s54, 15')
    a('s_lshl_b32 s54, s54, 17')
    a(f's_add_u32 s{SK}, s38, s54')
    a(f's_addc_u32 s{SK+1}, s39, s55')
    a(f's_mov_b32 s{SK+2}, 0x20000')
    a(f's_mov_b32 s{SK+3}, 0x20000')
    a(f's_add_u32 s{SV}, s40, s54')
    a(f's_addc_u32 s{SV+1}, s41, s55')
    a(f's_mov_b32 s{SV+2}, 0x20000')
    a(f's_mov_b32 s{SV+3}, 0x20000')
    a(f's_mul_i32 s54, {sr(S_B)}, 49152')
    a(f's_lshl_b32 s55, {sr(S_W)}, 8')
    a('s_add_u32 s54, s54, s55')
    a(f's_add_u32 s{SX}, s36, s54')
    a(f's_addc_u32 s{SX+1}, s37, 0')
    a(f's_sub_u32 s{SX+2}, 393216, s54')
    a(f's_mov_b32 s{SX+3}, 0x20000')
    a(f's_lshl_b32 s54, {sr(S_W)}, 20')
    a(f's_lshl_b32 s55, {sr(S_H)}, 8')
    a('s_add_u32 s54, s54, s55')
    a(f's_add_u32 s{SWQ}, s42, s54')
    a(f's_addc_u32 s{SWQ+1}, s43, 0')
    a(f's_sub_u32 s{SWQ+2}, 4194304, s54')
    a(f's_mov_b32 s{SWQ+3}, 0x20000')
    a(f's_lshl_b32 {sr(S_KSLOT)}, {sr(S_W)}, 13')
    a(f's_add_u32 {sr(S_VSLOT)}, {sr(S_KSLOT)}, 32768')
    a(f's_lshl_b32 {sr(S_SCR)}, {sr(S_W)}, 12')
    a(f's_add_u32 {sr(S_SCR)}, {sr(S_SCR)}, 65536')
    a('v_lshrrev_b32 v1, 4, v0')
    a('v_and_b32 v2, 15, v0')
    a('v_xor_b32 v3, v2, v1')
    for n, hk in enumerate([0, 3, 2, 1]):
        a(f'v_xor_b32 {vr(VOFFK + n)}, {hk << 2}, v3')
        a(f'v_lshlrev_b32 {vr(VOFFK + n)}, 4, {vr(VOFFK + n)}')
        a(f'v_lshl_add_u32 {vr(VOFFK + n)}, v1, 8, {vr(VOFFK + n)}')
    XOFF = 216
    a('v_mul_u32_u24 v3, 768, v1')
    for n in range(4): a(f'v_add_u32 {vr(XOFF + n)}, {vr(VOFFK + n)}, v3')
    for n in range(12):
        if n < 8: a(f's_add_u32 m0, {sr(S_VSLOT)}, {n * 1024}')
        else: a(f's_add_u32 m0, {sr(S_SCR)}, {(n - 8) * 1024}')
        a(f's_mov_b32 {sr(S_T)}, {n * 4096}')
        a(f'buffer_load_dwordx4 {vr(XOFF + (n & 3))}, {sr(SX, 4)}, {sr(S_T)} offen lds')
    WQOFF = 254
    a(f'v_lshlrev_b32 {vr(WQOFF)}, 16, v1')
    a(f'v_lshl_add_u32 {vr(WQOFF)}, v2, 4, {vr(WQOFF)}')
    R = [F0, S0]
    def wq_loads(ks):
        for n in range(8):
            a(f's_mov_b32 {sr(S_T)}, {(32 * ks + n) * 8192}')
            a(f'buffer_load_dwordx4 {vr(R[ks & 1] + 4 * n, 4)}, {vr(WQOFF)}, {sr(SWQ, 4)}, {sr(S_T)} offen')
    wq_loads(0); wq_loads(1)
    a('v_lshlrev_b32 v3, 13, v0')
    a(f's_mov_b32 {sr(S_T)}, {64 * 8192}')
    a(f'buffer_load_dword v255, v3, {sr(SWQ, 4)}, {sr(S_T)} offen')
    a(f'buffer_load_dword v253, v3, {sr(SWQ, 4)}, {sr(S_T)} offen offset:128')
    if cfg.rot:
        a(f's_and_b32 s54, s2, 7')
        a(f's_cmp_eq_u32 {sr(S_ISB)}, 1')
        a(f's_cselect_b32 s54, {sr(S_H)}, s54')
        a(f's_mul_i32 s54, s54, 5')
        a(f's_mul_i32 s55, {sr(S_B)}, 3')
        a('s_add_u32 s54, s54, s55')
        a(f's_mul_i32 s55, {sr(S_W)}, 7')
        a('s_add_u32 s54, s54, s55')
        a('s_and_b32 s54, s54, 15')
        a(f's_lshl_b32 {sr(S_KOFF)}, s54, 13')
    else:
        a(f's_mov_b32 {sr(S_KOFF)}, 0')
    a(f's_mov_b32 {sr(S_VOFF)}, {sr(S_KOFF)}')
    def both(fn):
        fn()
    def k0(nt): dma_tile(a, cfg, SK, lambda n: VOFFK + (n & 3), S_KOFF, S_KSLOT, nt)
    def v0_(nt): dma_tile(a, cfg, SV, lambda n: VOFFV + (n & 1), S_VOFF, S_VSLOT, nt)
    def ab(fn, tag):
        if cfg.ntA == cfg.ntB: fn(cfg.ntA)
        else:
            a(f's_cmp_eq_u32 {sr(S_ISB)}, 1')
            a(f's_cbranch_scc1 {tag}_B')
            fn(cfg.ntA)
            a(f's_branch {tag}_E')
            a.label(f'{tag}_B')
            fn(cfg.ntB)
            a.label(f'{tag}_E')
    ab(k0, 'K0')
    for p in range(2):
        a(f'v_add_u32 v3, {4 * p}, v1')
        a('v_lshlrev_b32 v3, 1, v3')
        a('v_xor_b32 v3, v2, v3')
        a('v_lshlrev_b32 v3, 4, v3')
        a(f'v_lshl_add_u32 {vr(VOFFV + p)}, v1, 8, v3')
    a('v_and_b32 v3, 4, v2')
    a('v_lshlrev_b32 v3, 1, v3')
    a('v_xor_b32 v3, v2, v3')
    a(f'v_lshlrev_b32 {vr(TMP)}, 2, v1')
    a(f'v_xor_b32 {vr(TMP)}, {vr(TMP)}, v3')
    a(f'v_lshlrev_b32 {vr(TMP)}, 4, {vr(TMP)}')
    a(f'v_lshl_add_u32 {vr(TMP)}, v2, 8, {vr(TMP)}')
    a(f'v_add_u32 {vr(KADDR)}, {sr(S_KSLOT)}, {vr(TMP)}')
    for kk in range(1, 4): a(f'v_xor_b32 {vr(KADDR + kk)}, {kk << 4}, {vr(KADDR)}')
    XA = 252
    a(f'v_xor_b32 {vr(XA)}, v1, v3')
    a(f'v_lshlrev_b32 {vr(XA)}, 4, {vr(XA)}')
    a(f'v_lshl_add_u32 {vr(XA)}, v2, 8, {vr(XA)}')
    a('v_lshrrev_b32 v3, 2, v2')
    a('v_lshl_add_u32 v3, v1, 2, v3')
    a(f'v_and_b32 {vr(TMP)}, 7, v3')
    a(f'v_lshlrev_b32 {vr(TMP)}, 5, {vr(TMP)}')
    a(f'v_lshl_add_u32 {vr(TMP)}, v3, 8, {vr(TMP)}')
    a('v_and_b32 v3, 3, v2')
    a(f'v_lshl_add_u32 {vr(TMP)}, v3, 3, {vr(TMP)}')
    a(f'v_add_u32 {vr(VADDR)}, {sr(S_VSLOT)}, {vr(TMP)}')
    for td in range(1, 8): a(f'v_xor_b32 {vr(VADDR + td)}, {td << 5}, {vr(VADDR)}')
    a(f's_mov_b32 {sr(S_C)}, 0x3e0293ee')
    a(f's_mov_b32 {sr(S_THR)}, 0x43800000')
    a(f's_mov_b32 {sr(S_SELLO)}, 0x05040100')
    a(f's_mov_b32 {sr(S_SELHI)}, 0x07060302')
    a('s_waitcnt vmcnt(26)')
    stamp(a, cfg, 1)
    for ks in range(4):
        a(f'v_xor_b32 v3, {ks << 6}, {vr(XA)}')
        a(f'v_add_u32 {vr(TMP)}, {sr(S_VSLOT)}, v3')
        a(f'v_add_u32 v3, {sr(S_SCR)}, v3')
        a(f'ds_read_b128 {vr(Q(0, ks), 4)}, {vr(TMP)}')
        a(f'ds_read_b128 {vr(Q(1, ks), 4)}, {vr(TMP)} offset:4096')
        a(f'ds_read_b128 {vr(Q(2, ks), 4)}, v3')
    def qproj(ks):
        Rb = R[ks & 1]
        def perms(e, T):
            m, p = e >> 1, e & 1
            sel = S_SELHI if p else S_SELLO
            for q4 in range(4):
                a(f'v_perm_b32 {vr(T + q4)}, {vr(Rb + 4 * (2 * q4 + 1) + m)}, {vr(Rb + 4 * (2 * q4) + m)}, {sr(sel)}')
        def mfmas(e, T):
            for tq in range(3):
                c = '0' if ks == 0 else vr(O(e, tq), 4)
                a(f'v_mfma_f32_16x16x32_bf16 {vr(O(e, tq), 4)}, {vr(T, 4)}, {vr(Q(tq, ks), 4)}, {c}')
        Ts = [T0, T0 + 4]
        perms(0, Ts[0])
        for e in range(8):
            if e < 7: perms(e + 1, Ts[(e + 1) & 1])
            else: a('s_nop 1')
            mfmas(e, Ts[e & 1])
    a('s_waitcnt vmcnt(18) lgkmcnt(0)')
    qproj(0); wq_loads(2)
    a('s_waitcnt vmcnt(18)')
    qproj(1); wq_loads(3)
    ab(v0_, 'V0')
    a('s_waitcnt vmcnt(16)')
    qproj(2)
    a('s_waitcnt vmcnt(8)')
    qproj(3)
    stamp(a, cfg, 2)
    LB = 3
    a('v_lshlrev_b32 v3, 4, v0')
    a('v_add_u32 v3, 65536, v3')
    a('s_nop 7')
    for w in range(4):
        if w < 3:
            a(f's_cmp_eq_u32 {sr(S_W)}, {w}')
            a(f's_cbranch_scc0 QR_{w + 1}')
        for rho in range(1, 4):
            dst = (w + rho) & 3; src = (w - rho) & 3
            for s in range(2):
                for tq in range(3):
                    a(f'ds_write_b128 v3, {vr(O(2 * dst + s, tq), 4)} offset:{w * 4096 + tq * 1024}')
                a('s_waitcnt lgkmcnt(0)')
                a('s_barrier')
                for tq in range(3):
                    a(f'ds_read_b128 {vr(F0 + 4 * tq, 4)}, v3 offset:{src * 4096 + tq * 1024}')
                a('s_waitcnt lgkmcnt(0)')
                for tq in range(3):
                    for r in range(4):
                        o = O(2 * w + s, tq) + r
                        a(f'v_add_f32 {vr(o)}, {vr(o)}, {vr(F0 + 4 * tq + r)}')
                a('s_barrier')
        for tq in range(3):
            for r in range(4):
                a(f'v_cvt_pk_bf16_f32 {vr(F0 + 4 * tq + r)}, {vr(O(2 * w, tq) + r)}, {vr(O(2 * w + 1, tq) + r)}')
        for tq in range(3):
            for r in range(4):
                a(f'ds_write_b32 v3, {vr(F0 + 4 * tq + r)} offset:{tq * 4096 + r * 1024 + w * 4}')
        if w < 3:
            a('s_branch QR_END')
            a.label(f'QR_{w + 1}')
    a.label('QR_END')
    a('s_waitcnt lgkmcnt(0)')
    a('s_barrier')
    for tq in range(3):
        for kk in range(4):
            a(f'ds_read_b128 {vr(Q(tq, kk), 4)}, v3 offset:{tq * 4096 + kk * 1024}')
    for r in range(96): a(f'v_mov_b32 {vr(O0 + r)}, 0')
    for tq in range(3):
        a(f'v_mov_b32 {vr(MREF + tq)}, 0xff800000')
        a(f'v_mov_b32 {vr(LSUM + tq)}, 0')
    a('s_waitcnt lgkmcnt(0)')
    stamp(a, cfg, 3)
    a(f's_mov_b32 {sr(S_CNT)}, 15')
    variants = [('A', cfg.ntA)] if cfg.ntA == cfg.ntB else [('A', cfg.ntA), ('B', cfg.ntB)]
    if len(variants) > 1:
        a(f's_cmp_eq_u32 {sr(S_ISB)}, 1')
        a('s_cbranch_scc1 LOOP_B')
    for v, nt in variants:
        a.L.append('.p2align 3')
        a.label(f'LOOP_{v}')
        body(a, cfg, f'{v}L', True, nt)
        a(f's_sub_u32 {sr(S_CNT)}, {sr(S_CNT)}, 1')
        a(f's_cmp_lg_u32 {sr(S_CNT)}, 0')
        a(f's_cbranch_scc1 LOOP_{v}')
        if v != variants[-1][0]: a('s_branch LAST')
    a.label('LAST')
    body(a, cfg, 'F', False, False)
    stamp(a, cfg, 4)
    for tq in range(3): xlane_reduce(a, 'v_add_f32', LSUM + tq, TMP)
    a('v_lshlrev_b32 v1, 4, v0')
    a('v_add_u32 v3, 65536, v1')
    a('v_lshlrev_b32 v2, 2, v0')
    a('v_add_u32 v2, 65536, v2')
    a(f's_lshl_b32 s54, {sr(S_ISB)}, 3')
    a(f's_add_u32 s54, s54, {sr(S_B)}')
    a('s_mul_i32 s54, s54, 393216')
    a(f's_lshl_b32 s55, {sr(S_H)}, 2')
    a(f's_add_u32 s55, s55, {sr(S_W)}')
    a('s_lshl_b32 s55, s55, 10')
    a('s_add_u32 s54, s54, s55')
    a(f's_add_u32 s{SX}, s52, s54')
    a(f's_addc_u32 s{SX+1}, s53, 0')
    a(f's_mov_b32 s{SX+2}, {2 * 131072 + 1024}')
    a(f's_mov_b32 s{SX+3}, 0x20000')
    def lds_u(w, u):
        if u < 8: return ('v1', KSLOT(w) + u * 1024)
        if u < 16: return ('v1', VSLOT(w) + (u - 8) * 1024)
        return ('v3', w * 4096 + (u - 16) * 1024)
    for w in range(4):
        if w < 3:
            a(f's_cmp_eq_u32 {sr(S_W)}, {w}')
            a(f's_cbranch_scc0 EP_{w + 1}')
        for k in range(3):
            a(f'ds_write_b32 v2, {vr(MREF + k)} offset:{w * 4096 + 2048 + k * 256}')
            a(f'ds_write_b32 v2, {vr(LSUM + k)} offset:{w * 4096 + 2048 + (3 + k) * 256}')
        for rho in range(1, 4):
            dst = (w + rho) & 3
            for s in range(2):
                for tq in range(3):
                    b_, off = lds_u(w, (rho - 1) * 6 + s * 3 + tq)
                    a(f'ds_write_b128 {b_}, {vr(O(2 * dst + s, tq), 4)} offset:{off}')
        a('s_waitcnt lgkmcnt(0)')
        a('s_barrier')
        for w2 in range(4):
            for k in range(6):
                a(f'ds_read_b32 {vr(F0 + w2 * 6 + k)}, v2 offset:{w2 * 4096 + 2048 + k * 256}')
        def buf(idx): return Q0 + idx * 4 if idx < 12 else S0 + (idx - 12) * 4
        idx = 0; where = {}
        for rho in range(1, 4):
            src = (w - rho) & 3
            for s in range(2):
                for tq in range(3):
                    b_, off = lds_u(src, (rho - 1) * 6 + s * 3 + tq)
                    a(f'ds_read_b128 {vr(buf(idx), 4)}, {b_} offset:{off}')
                    where[(src, s, tq)] = buf(idx); idx += 1
        a('s_waitcnt lgkmcnt(0)')
        for tq in range(3):
            M = T0 + tq
            m = lambda w2: F0 + w2 * 6 + tq
            l = lambda w2: F0 + w2 * 6 + 3 + tq
            a(f'v_max3_f32 {vr(M)}, {vr(m(0))}, {vr(m(1))}, {vr(m(2))}')
            a(f'v_max_f32 {vr(M)}, {vr(M)}, {vr(m(3))}')
            for w2 in range(4): a(f'v_sub_f32 {vr(m(w2))}, {vr(m(w2))}, {vr(M)}')
            for w2 in range(4): a(f'v_exp_f32 {vr(m(w2))}, {vr(m(w2))}')
            a('s_nop 0')
            a(f'v_mul_f32 {vr(M)}, {vr(m(0))}, {vr(l(0))}')
            for w2 in range(1, 4): a(f'v_fma_f32 {vr(M)}, {vr(m(w2))}, {vr(l(w2))}, {vr(M)}')
            a(f'v_rcp_f32 {vr(M)}, {vr(M)}')
            a('s_nop 0')
            for w2 in range(4): a(f'v_mul_f32 {vr(m(w2))}, {vr(m(w2))}, {vr(M)}')
            for s in range(2):
                o = O(2 * w + s, tq)
                for r in range(4): a(f'v_mul_f32 {vr(o + r)}, {vr(o + r)}, {vr(m(w))}')
                for w2 in range(4):
                    if w2 == w: continue
                    for r in range(4):
                        a(f'v_fma_f32 {vr(o + r)}, {vr(where[(w2, s, tq)] + r)}, {vr(m(w2))}, {vr(o + r)}')
            d = P(tq)
            a(f'v_cvt_pk_bf16_f32 {vr(d)}, {vr(O(2 * w, tq))}, {vr(O(2 * w, tq) + 1)}')
            a(f'v_cvt_pk_bf16_f32 {vr(d + 1)}, {vr(O(2 * w, tq) + 2)}, {vr(O(2 * w, tq) + 3)}')
            a(f'v_cvt_pk_bf16_f32 {vr(d + 2)}, {vr(O(2 * w + 1, tq))}, {vr(O(2 * w + 1, tq) + 1)}')
            a(f'v_cvt_pk_bf16_f32 {vr(d + 3)}, {vr(O(2 * w + 1, tq) + 2)}, {vr(O(2 * w + 1, tq) + 3)}')
            a(f's_mov_b32 {sr(S_T)}, {tq * 131072}')
            a(f'buffer_store_dwordx4 {vr(d, 4)}, v1, {sr(SX, 4)}, {sr(S_T)} offen')
        if w < 3:
            a('s_branch EP_END')
            a.label(f'EP_{w + 1}')
    a.label('EP_END')
    if cfg.stamps:
        a('s_waitcnt vmcnt(0)')
        stamp(a, cfg, 7)
        a(f's_cmp_lg_u32 {sr(S_W)}, 0')
        a('s_cbranch_scc1 K1_END')
        a('s_add_u32 s12, s52, 0x10000000')
        a('s_addc_u32 s13, s53, 0')
        a('s_lshl_b32 s54, s2, 6')
        a('s_add_u32 s12, s12, s54')
        a('s_addc_u32 s13, s13, 0')
        a('s_mov_b32 s14, 64')
        a('s_mov_b32 s15, 0x20000')
        a(f's_getreg_b32 s{S_STAMP + 10}, hwreg(HW_REG_HW_ID)')
        a(f's_getreg_b32 s{S_STAMP + 11}, hwreg(HW_REG_XCC_ID)')
        a(f's_mov_b32 s{S_STAMP + 12}, 0')
        a(f's_mov_b32 s{S_STAMP + 13}, 0')
        a('v_lshlrev_b32 v1, 2, v0')
        a('v_mov_b32 v2, 0')
        for k in range(16):
            a(f'v_mov_b32 v3, s{S_STAMP + k}')
            a(f'v_cmp_eq_u32 vcc, {k}, v0')
            a('s_nop 1')
            a('v_cndmask_b32 v2, v2, v3, vcc')
        a('buffer_store_dword v2, v1, s[12:15], 0 offen')
    a.label('K1_END')
    a('s_endpgm')
    if cfg.compute:
        for v, nt in variants: slow(a, cfg, f'{v}L')
        slow(a, cfg, 'F')

def proj_kernel(a, cfg):
    K = cfg.k2name
    a.L.append(f'.globl {K}')
    a.L.append('.p2align 8')
    a.L.append(f'.type {K},@function')
    a.label(K)
    a('s_cmp_ge_u32 s2, 256')
    a('s_cbranch_scc1 K2_END')
    a('s_load_dwordx2 s[36:37], s[0:1], 32')
    a('s_load_dwordx2 s[38:39], s[0:1], 72')
    a('s_load_dwordx2 s[40:41], s[0:1], 80')
    a('s_load_dwordx2 s[42:43], s[0:1], 96')
    a('v_lshrrev_b32 v1, 6, v0')
    a('v_and_b32 v0, 63, v0')
    a('s_and_b32 s34, s2, 7')
    a('s_lshr_b32 s35, s2, 3')
    a('v_readfirstlane_b32 s20, v1')
    a('s_lshr_b32 s23, s34, 2')
    a('s_lshr_b32 s21, s34, 1')
    a('s_and_b32 s21, s21, 1')
    a('s_lshl_b32 s21, s21, 2')
    a('s_lshr_b32 s54, s35, 3')
    a('s_add_u32 s21, s21, s54')
    a('s_and_b32 s22, s34, 1')
    a('s_lshl_b32 s22, s22, 3')
    a('s_and_b32 s54, s35, 7')
    a('s_add_u32 s22, s22, s54')
    a('s_cmp_eq_u32 s23, 1')
    a('s_waitcnt lgkmcnt(0)')
    a('s_cselect_b64 s[36:37], s[38:39], s[36:37]')
    a('s_lshl_b32 s54, s20, 19')
    a('s_lshl_b32 s55, s22, 6')
    a('s_add_u32 s54, s54, s55')
    a('s_add_u32 s4, s36, s54')
    a('s_addc_u32 s5, s37, 0')
    a('s_sub_u32 s6, 4194304, s54')
    a('s_mov_b32 s7, 0x20000')
    a('s_lshl_b32 s54, s23, 3')
    a('s_add_u32 s54, s54, s21')
    a('s_mul_i32 s54, s54, 393216')
    a('s_lshl_b32 s55, s20, 14')
    a('s_add_u32 s54, s54, s55')
    a('s_add_u32 s8, s42, s54')
    a('s_addc_u32 s9, s43, 0')
    a(f's_mov_b32 s10, {2 * 131072 + 16384}')
    a('s_mov_b32 s11, 0x20000')
    a('v_lshrrev_b32 v1, 4, v0')
    a('v_and_b32 v2, 15, v0')
    a('v_lshlrev_b32 v4, 12, v1')
    a('v_lshl_add_u32 v4, v2, 2, v4')
    a('v_add_u32 v5, 16384, v4')
    a('v_lshlrev_b32 v6, 4, v0')
    a('s_mov_b32 s32, 0x05040100')
    a('s_mov_b32 s33, 0x07060302')
    ACC = 8
    T = 32
    BUF = [40, 80]
    NKS = 2
    def issue(c):
        B = BUF[c & 1]
        for ks in range(NKS):
            a(f's_mov_b32 s35, {(c * NKS + ks) * 32768}')
            for n in range(8):
                a(f'buffer_load_dword {vr(B + 24 + ks * 8 + n)}, {"v4" if n < 4 else "v5"}, s[4:7], s35 offen offset:{(n & 3) * 1024}')
            for tq in range(3):
                a(f's_mov_b32 s34, {tq * 131072 + c * NKS * 1024}')
                a(f'buffer_load_dwordx4 {vr(B + (ks * 3 + tq) * 4, 4)}, v6, s[8:11], s34 offen offset:{ks * 1024}')
    def compute(c):
        B = BUF[c & 1]
        for ks in range(NKS):
            raw = B + 24 + ks * 8
            for e in range(2):
                sel = 's33' if e else 's32'
                for q4 in range(4):
                    a(f'v_perm_b32 {vr(T + 4 * e + q4)}, {vr(raw + 2 * q4 + 1)}, {vr(raw + 2 * q4)}, {sel}')
            a('s_nop 0')
            for e in range(2):
                for tq in range(3):
                    acc = ACC + (e * 3 + tq) * 4
                    cc = '0' if (c == 0 and ks == 0) else vr(acc, 4)
                    a(f'v_mfma_f32_16x16x32_bf16 {vr(acc, 4)}, {vr(T + 4 * e, 4)}, {vr(B + (ks * 3 + tq) * 4, 4)}, {cc}')
    issue(0); issue(1)
    for c in range(8):
        a(f's_waitcnt vmcnt({22 if c < 7 else 0})')
        compute(c)
        if c < 6: issue(c + 2)
    a('s_mul_i32 s54, s20, 6144')
    a('v_add_u32 v7, s54, v6')
    a('s_nop 7')
    for t in range(6):
        a(f'ds_write_b128 v7, {vr(ACC + 4 * t, 4)} offset:{t * 1024}')
    a('s_waitcnt lgkmcnt(0)')
    a('s_barrier')
    a('s_cmp_ge_u32 s20, 3')
    a('s_cbranch_scc1 K2_END')
    a('s_lshl_b32 s54, s20, 10')
    a('v_add_u32 v7, s54, v6')
    for v in range(8):
        for e in range(2):
            a(f'ds_read_b128 {vr(40 + (v * 2 + e) * 4, 4)}, v7 offset:{v * 6144 + e * 3072}')
    a('s_waitcnt lgkmcnt(0)')
    for v in range(1, 8):
        for k in range(8):
            a(f'v_add_f32 {vr(40 + k)}, {vr(40 + k)}, {vr(40 + v * 8 + k)}')
    for r in range(4):
        a(f'v_cvt_pk_bf16_f32 {vr(32 + r)}, {vr(40 + r)}, {vr(44 + r)}')
    a('s_mul_i32 s54, s21, 48')
    a('s_lshl_b32 s55, s20, 4')
    a('s_add_u32 s54, s54, s55')
    a('s_lshl_b32 s54, s54, 11')
    a('s_lshl_b32 s55, s23, 10')
    a('s_add_u32 s54, s54, s55')
    a('s_lshl_b32 s55, s22, 6')
    a('s_add_u32 s54, s54, s55')
    a('v_lshlrev_b32 v4, 11, v2')
    a('v_lshl_add_u32 v4, v1, 4, v4')
    a('s_mov_b32 s12, s40')
    a('s_mov_b32 s13, s41')
    a('s_mov_b32 s14, 786432')
    a('s_mov_b32 s15, 0x20000')
    a('buffer_store_dwordx4 v[32:35], v4, s[12:15], s54 offen')
    a.label('K2_END')
    a('s_endpgm')

HDR = open('cdna_kernels/' + NAME + '.s.ref').read().split('; Override launch')[0]

def kd(name, vgpr, sgpr):
    return f'''.amdhsa_kernel {name}
  .amdhsa_next_free_vgpr {vgpr}
  .amdhsa_next_free_sgpr {sgpr}
  .amdhsa_accum_offset {((vgpr + 3) // 4) * 4}
  .amdhsa_group_segment_fixed_size 0
  .amdhsa_kernarg_size 104
  .amdhsa_user_sgpr_count 2
  .amdhsa_user_sgpr_kernarg_segment_ptr 1
  .amdhsa_system_sgpr_workgroup_id_x 1
.end_amdhsa_kernel
'''

def gen(cfg):
    a = Asm()
    cfg.k1name = 'attn_kernel'
    cfg.k2name = 'proj_kernel'
    out = HDR
    out += f'; @launch kernel={cfg.k1name} grid=(512,1,1) block=(256,1,1) lds=81920\n'
    if not cfg.only1:
        out += f'; @launch kernel={cfg.k2name} grid=(256,1,1) block=(512,1,1) lds=49152\n'
    out += '.amdgcn_target "amdgcn-amd-amdhsa--gfx950"\n.text\n'
    attn_kernel(a, cfg)
    if not cfg.only1: proj_kernel(a, cfg)
    out += a.text()
    out += '.section .rodata,"a"\n.p2align 6\n'
    out += kd(cfg.k1name, 256, 80)
    if not cfg.only1:
        out += '.p2align 6\n' + kd(cfg.k2name, 128, 64)
    return out

if __name__ == '__main__':
    ap = argparse.ArgumentParser()
    ap.add_argument('-o', default='cdna_kernels/' + NAME + '.s')
    ap.add_argument('--stamps', type=int, default=0)
    ap.add_argument('--compute', type=int, default=1)
    ap.add_argument('--ntA', type=int, default=0)
    ap.add_argument('--ntB', type=int, default=0)
    ap.add_argument('--rot', type=int, default=0)
    ap.add_argument('--typemode', type=int, default=0)
    ap.add_argument('--swapab', type=int, default=0)
    ap.add_argument('--only1', type=int, default=0)
    cfg = ap.parse_args()
    open(cfg.o, 'w').write(gen(cfg))
    print('wrote', cfg.o)
```

```python
import sys, argparse

NAME = 'concat_heads__gqa_block_cached__mha_block_cached__near_ridge'

class Asm:
    def __init__(self): self.L = []
    def __call__(self, s): self.L.append('    ' + s)
    def label(self, s): self.L.append(s + ':')
    def c(self, s): self.L.append('    ; ' + s)
    def text(self): return '\n'.join(self.L) + '\n'

def vr(b, n=1): return f'v{b}' if n == 1 else f'v[{b}:{b+n-1}]'
def sr(b, n=1): return f's{b}' if n == 1 else f's[{b}:{b+n-1}]'

VOFFK = 4
VOFFV = 8
KADDR = 10
VADDR = 14
MREF = 22
LSUM = 25
LT = 28
TMP = 31
T0 = 32
Q0 = 40
O0 = 88
S0 = 184
P0 = 208
F0 = 220
X0 = 252
def Q(tq, kk): return Q0 + (tq * 4 + kk) * 4
def O(td, tq): return O0 + (td * 3 + tq) * 4
def S(kt, tq): return S0 + (kt * 3 + tq) * 4
def P(tq): return P0 + tq * 4
def KF(kt, kk): return F0 + (kt * 4 + kk) * 4
def VF(td): return F0 + td * 4

SK, SV, SX, SWQ = 4, 8, 12, 16
S_W, S_B, S_H, S_ISB = 20, 21, 22, 23
S_KOFF, S_VOFF, S_CNT = 24, 25, 26
S_KSLOT, S_VSLOT, S_SCR = 27, 28, 29
S_C, S_THR, S_SELLO, S_SELHI = 30, 31, 32, 33
S_T = 34
S_STAMP = 60

KSLOT = lambda w: w * 8192
VSLOT = lambda w: 32768 + w * 8192
SCR = lambda w: 65536 + w * 4096

class Cfg: pass

def stamp(a, cfg, k):
    if cfg.stamps:
        a(f's_memrealtime {sr(S_STAMP + 2 * k, 2)}')
        a('s_waitcnt lgkmcnt(0)')

def dma_tile(a, cfg, srd, voffs, soff, slot, nt, inter=None):
    f = (' ' + nt.replace('+', ' ')) if nt else ''
    for n in range(8):
        if n == 0:
            a(f's_mov_b32 m0, {sr(slot)}')
            a(f's_add_u32 {sr(S_T)}, {sr(soff)}, 0x1000')
        if n == 4:
            a(f's_add_u32 m0, {sr(slot)}, 0x1000')
            a('s_nop 0')
        so = sr(soff) if n < 4 else sr(S_T)
        a(f'buffer_load_dwordx4 {vr(voffs(n))}, {sr(srd, 4)}, {so} offen offset:{(n & 3) * 1024}{f} lds')
        if inter:
            for s in inter[n]: a(s)
    a(f's_add_u32 {sr(soff)}, {sr(soff)}, 0x2000')
    a(f's_and_b32 {sr(soff)}, {sr(soff)}, 0x1ffff')

def xlane_reduce(a, op, x, tmp):
    a(f'v_mov_b32 {vr(tmp)}, {vr(x)}')
    a('s_nop 1')
    a(f'v_permlane32_swap_b32 {vr(x)}, {vr(tmp)}')
    a('s_nop 1')
    a(f'{op} {vr(x)}, {vr(x)}, {vr(tmp)}')
    a(f'v_mov_b32 {vr(tmp)}, {vr(x)}')
    a('s_nop 1')
    a(f'v_permlane16_swap_b32 {vr(x)}, {vr(tmp)}')
    a('s_nop 1')
    a(f'{op} {vr(x)}, {vr(x)}, {vr(tmp)}')

def body(a, cfg, tag, prefetch, nt):
    a('s_waitcnt vmcnt(8)')
    for kt in range(2):
        for kk in range(4):
            a(f'ds_read_b128 {vr(KF(kt, kk), 4)}, {vr(KADDR + kk)} offset:{kt * 4096}')
    a('s_waitcnt lgkmcnt(0)')
    mf = []
    if cfg.compute:
        for kk in range(4):
            for tq in range(3):
                for kt in range(2):
                    c = '0' if kk == 0 else vr(S(kt, tq), 4)
                    mf.append(f'v_mfma_f32_16x16x32_bf16 {vr(S(kt, tq), 4)}, {vr(KF(kt, kk), 4)}, {vr(Q(tq, kk), 4)}, {c}')
    if prefetch:
        inter = [mf[3 * n:3 * n + 3] for n in range(8)]
        dma_tile(a, cfg, SK, lambda n: VOFFK + (n & 3), S_KOFF, S_KSLOT, nt, inter)
    else:
        for s in mf: a(s)
    if cfg.compute:
        a('s_nop 2')
        a.label(f'SM_{tag}')
        for tq in range(3):
            A, B = T0, T0 + 4
            m = vr(MREF + tq)
            for r in range(4): a(f'v_fma_f32 {vr(A + r)}, {vr(S(0, tq) + r)}, {sr(S_C)}, -{m}')
            for r in range(4): a(f'v_fma_f32 {vr(B + r)}, {vr(S(1, tq) + r)}, {sr(S_C)}, -{m}')
            for r in range(4): a(f'v_exp_f32 {vr(A + r)}, {vr(A + r)}')
            for r in range(4): a(f'v_exp_f32 {vr(B + r)}, {vr(B + r)}')
            a(f'v_cvt_pk_bf16_f32 {vr(P(tq))}, {vr(A)}, {vr(A + 1)}')
            a(f'v_cvt_pk_bf16_f32 {vr(P(tq) + 1)}, {vr(A + 2)}, {vr(A + 3)}')
            a(f'v_add_f32 {vr(A)}, {vr(A)}, {vr(A + 1)}')
            a(f'v_add_f32 {vr(A + 2)}, {vr(A + 2)}, {vr(A + 3)}')
            a(f'v_cvt_pk_bf16_f32 {vr(P(tq) + 2)}, {vr(B)}, {vr(B + 1)}')
            a(f'v_cvt_pk_bf16_f32 {vr(P(tq) + 3)}, {vr(B + 2)}, {vr(B + 3)}')
            a(f'v_add_f32 {vr(B)}, {vr(B)}, {vr(B + 1)}')
            a(f'v_add_f32 {vr(B + 2)}, {vr(B + 2)}, {vr(B + 3)}')
            a(f'v_add_f32 {vr(A)}, {vr(A)}, {vr(A + 2)}')
            a(f'v_add_f32 {vr(B)}, {vr(B)}, {vr(B + 2)}')
            a(f'v_add_f32 {vr(LT + tq)}, {vr(A)}, {vr(B)}')
        a(f'v_max3_f32 {vr(TMP)}, {vr(LT)}, {vr(LT + 1)}, {vr(LT + 2)}')
        a(f'v_cmp_lt_f32 vcc, {sr(S_THR)}, {vr(TMP)}')
        a(f's_cbranch_vccnz SLOW_{tag}')
        a(f's_mov_b32 {sr(S_THR)}, 0x43800000')
        for tq in range(3): a(f'v_add_f32 {vr(LSUM + tq)}, {vr(LSUM + tq)}, {vr(LT + tq)}')
    a(f's_waitcnt vmcnt({8 if prefetch else 0})')
    for td in range(8):
        a(f'ds_read_b64_tr_b16 {vr(VF(td), 2)}, {vr(VADDR + td)}')
        a(f'ds_read_b64_tr_b16 {vr(VF(td) + 2, 2)}, {vr(VADDR + td)} offset:4096')
    a('s_waitcnt lgkmcnt(0)')
    mf = []
    if cfg.compute:
        for td in range(8):
            for tq in range(3):
                mf.append(f'v_mfma_f32_16x16x32_bf16 {vr(O(td, tq), 4)}, {vr(VF(td), 4)}, {vr(P(tq), 4)}, {vr(O(td, tq), 4)}')
    if prefetch:
        inter = [mf[3 * n:3 * n + 3] for n in range(8)]
        dma_tile(a, cfg, SV, lambda n: VOFFV + (n & 1), S_VOFF, S_VSLOT, nt, inter)
    else:
        for s in mf: a(s)

def slow(a, cfg, tag):
    a.label(f'SLOW_{tag}')
    for tq in range(3):
        mx = T0 + tq
        s0, s1 = S(0, tq), S(1, tq)
        a(f'v_max3_f32 {vr(mx)}, {vr(s0)}, {vr(s0 + 1)}, {vr(s0 + 2)}')
        a(f'v_max3_f32 {vr(mx)}, {vr(mx)}, {vr(s0 + 3)}, {vr(s1)}')
        a(f'v_max3_f32 {vr(mx)}, {vr(mx)}, {vr(s1 + 1)}, {vr(s1 + 2)}')
        a(f'v_max_f32 {vr(mx)}, {vr(mx)}, {vr(s1 + 3)}')
    for tq in range(3):
        xlane_reduce(a, 'v_max_f32', T0 + tq, TMP)
    for tq in range(3):
        mx, al = T0 + tq, T0 + 4 + tq
        a(f'v_mul_f32 {vr(mx)}, {sr(S_C)}, {vr(mx)}')
        a(f'v_max_f32 {vr(mx)}, {vr(mx)}, {vr(MREF + tq)}')
        a(f'v_sub_f32 {vr(al)}, {vr(MREF + tq)}, {vr(mx)}')
        a(f'v_exp_f32 {vr(al)}, {vr(al)}')
        a(f'v_mov_b32 {vr(MREF + tq)}, {vr(mx)}')
        a(f'v_mul_f32 {vr(LSUM + tq)}, {vr(LSUM + tq)}, {vr(al)}')
        for td in range(8):
            for r in range(4):
                a(f'v_mul_f32 {vr(O(td, tq) + r)}, {vr(O(td, tq) + r)}, {vr(al)}')
    a(f's_mov_b32 {sr(S_THR)}, 0x7f800000')
    a(f's_branch SM_{tag}')

def attn_kernel(a, cfg):
    K = cfg.k1name
    a.L.append(f'.globl {K}')
    a.L.append('.p2align 8')
    a.L.append(f'.type {K},@function')
    a.label(K)
    a('s_cmp_ge_u32 s2, 512')
    a('s_cbranch_scc1 K1_END')
    stamp(a, cfg, 0)
    a('s_load_dwordx8 s[36:43], s[0:1], 0')
    a('s_load_dwordx8 s[44:51], s[0:1], 40')
    a('s_load_dwordx2 s[52:53], s[0:1], 96')
    a('v_lshrrev_b32 v1, 6, v0')
    a('v_and_b32 v0, 63, v0')
    a('s_and_b32 s34, s2, 7')
    a('s_lshr_b32 s35, s2, 3')
    if cfg.typemode == 0:
        a(f's_lshr_b32 {sr(S_ISB)}, s35, 5')
        a('s_and_b32 s35, s35, 31')
    else:
        a(f's_and_b32 {sr(S_ISB)}, s35, 1')
        a('s_lshr_b32 s35, s35, 1')
    if cfg.swapab:
        a(f's_xor_b32 {sr(S_ISB)}, {sr(S_ISB)}, 1')
    a(f'v_readfirstlane_b32 {sr(S_W)}, v1')
    a(f's_lshr_b32 {sr(S_B)}, s35, 2')
    a('s_and_b32 s35, s35, 3')
    a('s_lshl_b32 s54, s34, 2')
    a(f's_add_u32 {sr(S_H)}, s54, s35')
    a(f's_lshl_b32 s54, {sr(S_B)}, 3')
    a('s_add_u32 s54, s54, s34')
    a(f's_lshl_b32 s55, {sr(S_B)}, 5')
    a(f's_add_u32 s55, s55, {sr(S_H)}')
    a(f's_cmp_eq_u32 {sr(S_ISB)}, 1')
    a('s_cselect_b32 s54, s55, s54')
    a('s_waitcnt lgkmcnt(0)')
    a('s_cselect_b64 s[36:37], s[44:45], s[36:37]')
    a('s_cselect_b64 s[38:39], s[46:47], s[38:39]')
    a('s_cselect_b64 s[40:41], s[48:49], s[40:41]')
    a('s_cselect_b64 s[42:43], s[50:51], s[42:43]')
    a('s_lshl_b32 s54, s54, 2')
    a(f's_add_u32 s54, s54, {sr(S_W)}')
    a('s_lshr_b32 s55, s54, 15')
    a('s_lshl_b32 s54, s54, 17')
    a(f's_add_u32 s{SK}, s38, s54')
    a(f's_addc_u32 s{SK+1}, s39, s55')
    a(f's_mov_b32 s{SK+2}, 0x20000')
    a(f's_mov_b32 s{SK+3}, 0x20000')
    a(f's_add_u32 s{SV}, s40, s54')
    a(f's_addc_u32 s{SV+1}, s41, s55')
    a(f's_mov_b32 s{SV+2}, 0x20000')
    a(f's_mov_b32 s{SV+3}, 0x20000')
    a(f's_mul_i32 s54, {sr(S_B)}, 49152')
    a(f's_lshl_b32 s55, {sr(S_W)}, 8')
    a('s_add_u32 s54, s54, s55')
    a(f's_add_u32 s{SX}, s36, s54')
    a(f's_addc_u32 s{SX+1}, s37, 0')
    a(f's_sub_u32 s{SX+2}, 393216, s54')
    a(f's_mov_b32 s{SX+3}, 0x20000')
    a(f's_lshl_b32 s54, {sr(S_W)}, 20')
    a(f's_lshl_b32 s55, {sr(S_H)}, 8')
    a('s_add_u32 s54, s54, s55')
    a(f's_add_u32 s{SWQ}, s42, s54')
    a(f's_addc_u32 s{SWQ+1}, s43, 0')
    a(f's_sub_u32 s{SWQ+2}, 4194304, s54')
    a(f's_mov_b32 s{SWQ+3}, 0x20000')
    a(f's_lshl_b32 {sr(S_KSLOT)}, {sr(S_W)}, 13')
    a(f's_add_u32 {sr(S_VSLOT)}, {sr(S_KSLOT)}, 32768')
    a(f's_lshl_b32 {sr(S_SCR)}, {sr(S_W)}, 12')
    a(f's_add_u32 {sr(S_SCR)}, {sr(S_SCR)}, 65536')
    a('v_lshrrev_b32 v1, 4, v0')
    a('v_and_b32 v2, 15, v0')
    a('v_xor_b32 v3, v2, v1')
    for n, hk in enumerate([0, 3, 2, 1]):
        a(f'v_xor_b32 {vr(VOFFK + n)}, {hk << 2}, v3')
        a(f'v_lshlrev_b32 {vr(VOFFK + n)}, 4, {vr(VOFFK + n)}')
        a(f'v_lshl_add_u32 {vr(VOFFK + n)}, v1, 8, {vr(VOFFK + n)}')
    XOFF = 216
    a('v_mul_u32_u24 v3, 768, v1')
    for n in range(4): a(f'v_add_u32 {vr(XOFF + n)}, {vr(VOFFK + n)}, v3')
    for n in range(12):
        if n < 8: a(f's_add_u32 m0, {sr(S_VSLOT)}, {n * 1024}')
        else: a(f's_add_u32 m0, {sr(S_SCR)}, {(n - 8) * 1024}')
        a(f's_mov_b32 {sr(S_T)}, {n * 4096}')
        a(f'buffer_load_dwordx4 {vr(XOFF + (n & 3))}, {sr(SX, 4)}, {sr(S_T)} offen lds')
    WQOFF = 254
    a(f'v_lshlrev_b32 {vr(WQOFF)}, 16, v1')
    a(f'v_lshl_add_u32 {vr(WQOFF)}, v2, 4, {vr(WQOFF)}')
    R = [F0, S0]
    def wq_loads(ks):
        for n in range(8):
            a(f's_mov_b32 {sr(S_T)}, {(32 * ks + n) * 8192}')
            a(f'buffer_load_dwordx4 {vr(R[ks & 1] + 4 * n, 4)}, {vr(WQOFF)}, {sr(SWQ, 4)}, {sr(S_T)} offen')
    wq_loads(0); wq_loads(1)
    a('v_lshlrev_b32 v3, 13, v0')
    a(f's_mov_b32 {sr(S_T)}, {64 * 8192}')
    a(f'buffer_load_dword v255, v3, {sr(SWQ, 4)}, {sr(S_T)} offen')
    a(f'buffer_load_dword v253, v3, {sr(SWQ, 4)}, {sr(S_T)} offen offset:128')
    if cfg.rot:
        a(f's_and_b32 s54, s2, 7')
        a(f's_cmp_eq_u32 {sr(S_ISB)}, 1')
        a(f's_cselect_b32 s54, {sr(S_H)}, s54')
        a(f's_mul_i32 s54, s54, 5')
        a(f's_mul_i32 s55, {sr(S_B)}, 3')
        a('s_add_u32 s54, s54, s55')
        a(f's_mul_i32 s55, {sr(S_W)}, 7')
        a('s_add_u32 s54, s54, s55')
        a('s_and_b32 s54, s54, 15')
        a(f's_lshl_b32 {sr(S_KOFF)}, s54, 13')
    else:
        a(f's_mov_b32 {sr(S_KOFF)}, 0')
    a(f's_mov_b32 {sr(S_VOFF)}, {sr(S_KOFF)}')
    def both(fn):
        fn()
    def k0(nt): dma_tile(a, cfg, SK, lambda n: VOFFK + (n & 3), S_KOFF, S_KSLOT, nt)
    def v0_(nt): dma_tile(a, cfg, SV, lambda n: VOFFV + (n & 1), S_VOFF, S_VSLOT, nt)
    def ab(fn, tag):
        if cfg.ntA == cfg.ntB: fn(cfg.ntA)
        else:
            a(f's_cmp_eq_u32 {sr(S_ISB)}, 1')
            a(f's_cbranch_scc1 {tag}_B')
            fn(cfg.ntA)
            a(f's_branch {tag}_E')
            a.label(f'{tag}_B')
            fn(cfg.ntB)
            a.label(f'{tag}_E')
    ab(k0, 'K0')
    for p in range(2):
        a(f'v_add_u32 v3, {4 * p}, v1')
        a('v_lshlrev_b32 v3, 1, v3')
        a('v_xor_b32 v3, v2, v3')
        a('v_lshlrev_b32 v3, 4, v3')
        a(f'v_lshl_add_u32 {vr(VOFFV + p)}, v1, 8, v3')
    a('v_and_b32 v3, 4, v2')
    a('v_lshlrev_b32 v3, 1, v3')
    a('v_xor_b32 v3, v2, v3')
    a(f'v_lshlrev_b32 {vr(TMP)}, 2, v1')
    a(f'v_xor_b32 {vr(TMP)}, {vr(TMP)}, v3')
    a(f'v_lshlrev_b32 {vr(TMP)}, 4, {vr(TMP)}')
    a(f'v_lshl_add_u32 {vr(TMP)}, v2, 8, {vr(TMP)}')
    a(f'v_add_u32 {vr(KADDR)}, {sr(S_KSLOT)}, {vr(TMP)}')
    for kk in range(1, 4): a(f'v_xor_b32 {vr(KADDR + kk)}, {kk << 4}, {vr(KADDR)}')
    XA = 252
    a(f'v_xor_b32 {vr(XA)}, v1, v3')
    a(f'v_lshlrev_b32 {vr(XA)}, 4, {vr(XA)}')
    a(f'v_lshl_add_u32 {vr(XA)}, v2, 8, {vr(XA)}')
    a('v_lshrrev_b32 v3, 2, v2')
    a('v_lshl_add_u32 v3, v1, 2, v3')
    a(f'v_and_b32 {vr(TMP)}, 7, v3')
    a(f'v_lshlrev_b32 {vr(TMP)}, 5, {vr(TMP)}')
    a(f'v_lshl_add_u32 {vr(TMP)}, v3, 8, {vr(TMP)}')
    a('v_and_b32 v3, 3, v2')
    a(f'v_lshl_add_u32 {vr(TMP)}, v3, 3, {vr(TMP)}')
    a(f'v_add_u32 {vr(VADDR)}, {sr(S_VSLOT)}, {vr(TMP)}')
    for td in range(1, 8): a(f'v_xor_b32 {vr(VADDR + td)}, {td << 5}, {vr(VADDR)}')
    a(f's_mov_b32 {sr(S_C)}, 0x3e0293ee')
    a(f's_mov_b32 {sr(S_THR)}, 0x43800000')
    a(f's_mov_b32 {sr(S_SELLO)}, 0x05040100')
    a(f's_mov_b32 {sr(S_SELHI)}, 0x07060302')
    a('s_waitcnt vmcnt(26)')
    stamp(a, cfg, 1)
    for ks in range(4):
        a(f'v_xor_b32 v3, {ks << 6}, {vr(XA)}')
        a(f'v_add_u32 {vr(TMP)}, {sr(S_VSLOT)}, v3')
        a(f'v_add_u32 v3, {sr(S_SCR)}, v3')
        a(f'ds_read_b128 {vr(Q(0, ks), 4)}, {vr(TMP)}')
        a(f'ds_read_b128 {vr(Q(1, ks), 4)}, {vr(TMP)} offset:4096')
        a(f'ds_read_b128 {vr(Q(2, ks), 4)}, v3')
    def qproj(ks):
        Rb = R[ks & 1]
        def perms(e, T):
            m, p = e >> 1, e & 1
            sel = S_SELHI if p else S_SELLO
            for q4 in range(4):
                a(f'v_perm_b32 {vr(T + q4)}, {vr(Rb + 4 * (2 * q4 + 1) + m)}, {vr(Rb + 4 * (2 * q4) + m)}, {sr(sel)}')
        def mfmas(e, T):
            for tq in range(3):
                c = '0' if ks == 0 else vr(O(e, tq), 4)
                a(f'v_mfma_f32_16x16x32_bf16 {vr(O(e, tq), 4)}, {vr(T, 4)}, {vr(Q(tq, ks), 4)}, {c}')
        Ts = [T0, T0 + 4]
        perms(0, Ts[0])
        for e in range(8):
            if e < 7: perms(e + 1, Ts[(e + 1) & 1])
            else: a('s_nop 1')
            mfmas(e, Ts[e & 1])
    a('s_waitcnt vmcnt(18) lgkmcnt(0)')
    qproj(0); wq_loads(2)
    a('s_waitcnt vmcnt(18)')
    qproj(1); wq_loads(3)
    ab(v0_, 'V0')
    a('s_waitcnt vmcnt(16)')
    qproj(2)
    a('s_waitcnt vmcnt(8)')
    qproj(3)
    stamp(a, cfg, 2)
    LB = 3
    a('v_lshlrev_b32 v3, 4, v0')
    a('v_add_u32 v3, 65536, v3')
    a('s_nop 7')
    for w in range(4):
        if w < 3:
            a(f's_cmp_eq_u32 {sr(S_W)}, {w}')
            a(f's_cbranch_scc0 QR_{w + 1}')
        for rho in range(1, 4):
            dst = (w + rho) & 3; src = (w - rho) & 3
            for s in range(2):
                for tq in range(3):
                    a(f'ds_write_b128 v3, {vr(O(2 * dst + s, tq), 4)} offset:{w * 4096 + tq * 1024}')
                a('s_waitcnt lgkmcnt(0)')
                a('s_barrier')
                for tq in range(3):
                    a(f'ds_read_b128 {vr(F0 + 4 * tq, 4)}, v3 offset:{src * 4096 + tq * 1024}')
                a('s_waitcnt lgkmcnt(0)')
                for tq in range(3):
                    for r in range(4):
                        o = O(2 * w + s, tq) + r
                        a(f'v_add_f32 {vr(o)}, {vr(o)}, {vr(F0 + 4 * tq + r)}')
                a('s_barrier')
        for tq in range(3):
            for r in range(4):
                a(f'v_cvt_pk_bf16_f32 {vr(F0 + 4 * tq + r)}, {vr(O(2 * w, tq) + r)}, {vr(O(2 * w + 1, tq) + r)}')
        for tq in range(3):
            for r in range(4):
                a(f'ds_write_b32 v3, {vr(F0 + 4 * tq + r)} offset:{tq * 4096 + r * 1024 + w * 4}')
        if w < 3:
            a('s_branch QR_END')
            a.label(f'QR_{w + 1}')
    a.label('QR_END')
    a('s_waitcnt lgkmcnt(0)')
    a('s_barrier')
    for tq in range(3):
        for kk in range(4):
            a(f'ds_read_b128 {vr(Q(tq, kk), 4)}, v3 offset:{tq * 4096 + kk * 1024}')
    for r in range(96): a(f'v_mov_b32 {vr(O0 + r)}, 0')
    for tq in range(3):
        a(f'v_mov_b32 {vr(MREF + tq)}, 0xff800000')
        a(f'v_mov_b32 {vr(LSUM + tq)}, 0')
    a('s_waitcnt lgkmcnt(0)')
    stamp(a, cfg, 3)
    a(f's_mov_b32 {sr(S_CNT)}, 15')
    variants = [('A', cfg.ntA)] if cfg.ntA == cfg.ntB else [('A', cfg.ntA), ('B', cfg.ntB)]
    if len(variants) > 1:
        a(f's_cmp_eq_u32 {sr(S_ISB)}, 1')
        a('s_cbranch_scc1 LOOP_B')
    for v, nt in variants:
        a.L.append('.p2align 3')
        a.label(f'LOOP_{v}')
        body(a, cfg, f'{v}L', True, nt)
        a(f's_sub_u32 {sr(S_CNT)}, {sr(S_CNT)}, 1')
        a(f's_cmp_lg_u32 {sr(S_CNT)}, 0')
        a(f's_cbranch_scc1 LOOP_{v}')
        if v != variants[-1][0]: a('s_branch LAST')
    a.label('LAST')
    body(a, cfg, 'F', False, '')
    stamp(a, cfg, 4)
    for tq in range(3): xlane_reduce(a, 'v_add_f32', LSUM + tq, TMP)
    a('v_lshlrev_b32 v1, 4, v0')
    a('v_add_u32 v3, 65536, v1')
    a('v_lshlrev_b32 v2, 2, v0')
    a('v_add_u32 v2, 65536, v2')
    a(f's_lshl_b32 s54, {sr(S_ISB)}, 3')
    a(f's_add_u32 s54, s54, {sr(S_B)}')
    a('s_mul_i32 s54, s54, 393216')
    a(f's_lshl_b32 s55, {sr(S_H)}, 2')
    a(f's_add_u32 s55, s55, {sr(S_W)}')
    a('s_lshl_b32 s55, s55, 10')
    a('s_add_u32 s54, s54, s55')
    a(f's_add_u32 s{SX}, s52, s54')
    a(f's_addc_u32 s{SX+1}, s53, 0')
    a(f's_mov_b32 s{SX+2}, {2 * 131072 + 1024}')
    a(f's_mov_b32 s{SX+3}, 0x20000')
    def lds_u(w, u):
        if u < 8: return ('v1', KSLOT(w) + u * 1024)
        if u < 16: return ('v1', VSLOT(w) + (u - 8) * 1024)
        return ('v3', w * 4096 + (u - 16) * 1024)
    for w in range(4):
        if w < 3:
            a(f's_cmp_eq_u32 {sr(S_W)}, {w}')
            a(f's_cbranch_scc0 EP_{w + 1}')
        for k in range(3):
            a(f'ds_write_b32 v2, {vr(MREF + k)} offset:{w * 4096 + 2048 + k * 256}')
            a(f'ds_write_b32 v2, {vr(LSUM + k)} offset:{w * 4096 + 2048 + (3 + k) * 256}')
        for rho in range(1, 4):
            dst = (w + rho) & 3
            for s in range(2):
                for tq in range(3):
                    b_, off = lds_u(w, (rho - 1) * 6 + s * 3 + tq)
                    a(f'ds_write_b128 {b_}, {vr(O(2 * dst + s, tq), 4)} offset:{off}')
        a('s_waitcnt lgkmcnt(0)')
        a('s_barrier')
        for w2 in range(4):
            for k in range(6):
                a(f'ds_read_b32 {vr(F0 + w2 * 6 + k)}, v2 offset:{w2 * 4096 + 2048 + k * 256}')
        def buf(idx): return Q0 + idx * 4 if idx < 12 else S0 + (idx - 12) * 4
        idx = 0; where = {}
        for rho in range(1, 4):
            src = (w - rho) & 3
            for s in range(2):
                for tq in range(3):
                    b_, off = lds_u(src, (rho - 1) * 6 + s * 3 + tq)
                    a(f'ds_read_b128 {vr(buf(idx), 4)}, {b_} offset:{off}')
                    where[(src, s, tq)] = buf(idx); idx += 1
        a('s_waitcnt lgkmcnt(0)')
        for tq in range(3):
            M = T0 + tq
            m = lambda w2: F0 + w2 * 6 + tq
            l = lambda w2: F0 + w2 * 6 + 3 + tq
            a(f'v_max3_f32 {vr(M)}, {vr(m(0))}, {vr(m(1))}, {vr(m(2))}')
            a(f'v_max_f32 {vr(M)}, {vr(M)}, {vr(m(3))}')
            for w2 in range(4): a(f'v_sub_f32 {vr(m(w2))}, {vr(m(w2))}, {vr(M)}')
            for w2 in range(4): a(f'v_exp_f32 {vr(m(w2))}, {vr(m(w2))}')
            a('s_nop 0')
            a(f'v_mul_f32 {vr(M)}, {vr(m(0))}, {vr(l(0))}')
            for w2 in range(1, 4): a(f'v_fma_f32 {vr(M)}, {vr(m(w2))}, {vr(l(w2))}, {vr(M)}')
            a(f'v_rcp_f32 {vr(M)}, {vr(M)}')
            a('s_nop 0')
            for w2 in range(4): a(f'v_mul_f32 {vr(m(w2))}, {vr(m(w2))}, {vr(M)}')
            for s in range(2):
                o = O(2 * w + s, tq)
                for r in range(4): a(f'v_mul_f32 {vr(o + r)}, {vr(o + r)}, {vr(m(w))}')
                for w2 in range(4):
                    if w2 == w: continue
                    for r in range(4):
                        a(f'v_fma_f32 {vr(o + r)}, {vr(where[(w2, s, tq)] + r)}, {vr(m(w2))}, {vr(o + r)}')
            d = P(tq)
            a(f'v_cvt_pk_bf16_f32 {vr(d)}, {vr(O(2 * w, tq))}, {vr(O(2 * w, tq) + 1)}')
            a(f'v_cvt_pk_bf16_f32 {vr(d + 1)}, {vr(O(2 * w, tq) + 2)}, {vr(O(2 * w, tq) + 3)}')
            a(f'v_cvt_pk_bf16_f32 {vr(d + 2)}, {vr(O(2 * w + 1, tq))}, {vr(O(2 * w + 1, tq) + 1)}')
            a(f'v_cvt_pk_bf16_f32 {vr(d + 3)}, {vr(O(2 * w + 1, tq) + 2)}, {vr(O(2 * w + 1, tq) + 3)}')
            a(f's_mov_b32 {sr(S_T)}, {tq * 131072}')
            a(f'buffer_store_dwordx4 {vr(d, 4)}, v1, {sr(SX, 4)}, {sr(S_T)} offen')
        if w < 3:
            a('s_branch EP_END')
            a.label(f'EP_{w + 1}')
    a.label('EP_END')
    if cfg.stamps:
        a('s_waitcnt vmcnt(0)')
        stamp(a, cfg, 7)
        a(f's_cmp_lg_u32 {sr(S_W)}, 0')
        a('s_cbranch_scc1 K1_END')
        a('s_add_u32 s12, s52, 0x10000000')
        a('s_addc_u32 s13, s53, 0')
        a('s_lshl_b32 s54, s2, 6')
        a('s_add_u32 s12, s12, s54')
        a('s_addc_u32 s13, s13, 0')
        a('s_mov_b32 s14, 64')
        a('s_mov_b32 s15, 0x20000')
        a(f's_getreg_b32 s{S_STAMP + 10}, hwreg(HW_REG_HW_ID)')
        a(f's_getreg_b32 s{S_STAMP + 11}, hwreg(HW_REG_XCC_ID)')
        a(f's_mov_b32 s{S_STAMP + 12}, 0')
        a(f's_mov_b32 s{S_STAMP + 13}, 0')
        a('v_lshlrev_b32 v1, 2, v0')
        a('v_mov_b32 v2, 0')
        for k in range(16):
            a(f'v_mov_b32 v3, s{S_STAMP + k}')
            a(f'v_cmp_eq_u32 vcc, {k}, v0')
            a('s_nop 1')
            a('v_cndmask_b32 v2, v2, v3, vcc')
        a('buffer_store_dword v2, v1, s[12:15], 0 offen')
    a.label('K1_END')
    a('s_endpgm')
    if cfg.compute:
        for v, nt in variants: slow(a, cfg, f'{v}L')
        slow(a, cfg, 'F')

def proj_kernel(a, cfg):
    K = cfg.k2name
    a.L.append(f'.globl {K}')
    a.L.append('.p2align 8')
    a.L.append(f'.type {K},@function')
    a.label(K)
    a('s_cmp_ge_u32 s2, 256')
    a('s_cbranch_scc1 K2_END')
    a('s_load_dwordx2 s[36:37], s[0:1], 32')
    a('s_load_dwordx2 s[38:39], s[0:1], 72')
    a('s_load_dwordx2 s[40:41], s[0:1], 80')
    a('s_load_dwordx2 s[42:43], s[0:1], 96')
    a('v_lshrrev_b32 v1, 6, v0')
    a('v_and_b32 v0, 63, v0')
    a('s_and_b32 s34, s2, 7')
    a('s_lshr_b32 s35, s2, 3')
    a('v_readfirstlane_b32 s20, v1')
    a('s_lshr_b32 s23, s34, 2')
    a('s_lshr_b32 s21, s34, 1')
    a('s_and_b32 s21, s21, 1')
    a('s_lshl_b32 s21, s21, 2')
    a('s_lshr_b32 s54, s35, 3')
    a('s_add_u32 s21, s21, s54')
    a('s_and_b32 s22, s34, 1')
    a('s_lshl_b32 s22, s22, 3')
    a('s_and_b32 s54, s35, 7')
    a('s_add_u32 s22, s22, s54')
    a('s_cmp_eq_u32 s23, 1')
    a('s_waitcnt lgkmcnt(0)')
    a('s_cselect_b64 s[36:37], s[38:39], s[36:37]')
    a('s_lshl_b32 s54, s20, 19')
    a('s_lshl_b32 s55, s22, 6')
    a('s_add_u32 s54, s54, s55')
    a('s_add_u32 s4, s36, s54')
    a('s_addc_u32 s5, s37, 0')
    a('s_sub_u32 s6, 4194304, s54')
    a('s_mov_b32 s7, 0x20000')
    a('s_lshl_b32 s54, s23, 3')
    a('s_add_u32 s54, s54, s21')
    a('s_mul_i32 s54, s54, 393216')
    a('s_lshl_b32 s55, s20, 14')
    a('s_add_u32 s54, s54, s55')
    a('s_add_u32 s8, s42, s54')
    a('s_addc_u32 s9, s43, 0')
    a(f's_mov_b32 s10, {2 * 131072 + 16384}')
    a('s_mov_b32 s11, 0x20000')
    a('v_lshrrev_b32 v1, 4, v0')
    a('v_and_b32 v2, 15, v0')
    a('v_lshlrev_b32 v4, 12, v1')
    a('v_lshl_add_u32 v4, v2, 2, v4')
    a('v_add_u32 v5, 16384, v4')
    a('v_lshlrev_b32 v6, 4, v0')
    a('s_mov_b32 s32, 0x05040100')
    a('s_mov_b32 s33, 0x07060302')
    ACC = 8
    T = 32
    BUF = [40, 80]
    NKS = 2
    def issue(c):
        B = BUF[c & 1]
        for ks in range(NKS):
            a(f's_mov_b32 s35, {(c * NKS + ks) * 32768}')
            for n in range(8):
                a(f'buffer_load_dword {vr(B + 24 + ks * 8 + n)}, {"v4" if n < 4 else "v5"}, s[4:7], s35 offen offset:{(n & 3) * 1024}')
            for tq in range(3):
                a(f's_mov_b32 s34, {tq * 131072 + c * NKS * 1024}')
                a(f'buffer_load_dwordx4 {vr(B + (ks * 3 + tq) * 4, 4)}, v6, s[8:11], s34 offen offset:{ks * 1024}')
    def compute(c):
        B = BUF[c & 1]
        for ks in range(NKS):
            raw = B + 24 + ks * 8
            for e in range(2):
                sel = 's33' if e else 's32'
                for q4 in range(4):
                    a(f'v_perm_b32 {vr(T + 4 * e + q4)}, {vr(raw + 2 * q4 + 1)}, {vr(raw + 2 * q4)}, {sel}')
            a('s_nop 0')
            for e in range(2):
                for tq in range(3):
                    acc = ACC + (e * 3 + tq) * 4
                    cc = '0' if (c == 0 and ks == 0) else vr(acc, 4)
                    a(f'v_mfma_f32_16x16x32_bf16 {vr(acc, 4)}, {vr(T + 4 * e, 4)}, {vr(B + (ks * 3 + tq) * 4, 4)}, {cc}')
    issue(0); issue(1)
    for c in range(8):
        a(f's_waitcnt vmcnt({22 if c < 7 else 0})')
        compute(c)
        if c < 6: issue(c + 2)
    a('s_mul_i32 s54, s20, 6144')
    a('v_add_u32 v7, s54, v6')
    a('s_nop 7')
    for t in range(6):
        a(f'ds_write_b128 v7, {vr(ACC + 4 * t, 4)} offset:{t * 1024}')
    a('s_waitcnt lgkmcnt(0)')
    a('s_barrier')
    a('s_cmp_ge_u32 s20, 3')
    a('s_cbranch_scc1 K2_END')
    a('s_lshl_b32 s54, s20, 10')
    a('v_add_u32 v7, s54, v6')
    for v in range(8):
        for e in range(2):
            a(f'ds_read_b128 {vr(40 + (v * 2 + e) * 4, 4)}, v7 offset:{v * 6144 + e * 3072}')
    a('s_waitcnt lgkmcnt(0)')
    for v in range(1, 8):
        for k in range(8):
            a(f'v_add_f32 {vr(40 + k)}, {vr(40 + k)}, {vr(40 + v * 8 + k)}')
    for r in range(4):
        a(f'v_cvt_pk_bf16_f32 {vr(32 + r)}, {vr(40 + r)}, {vr(44 + r)}')
    a('s_mul_i32 s54, s21, 48')
    a('s_lshl_b32 s55, s20, 4')
    a('s_add_u32 s54, s54, s55')
    a('s_lshl_b32 s54, s54, 11')
    a('s_lshl_b32 s55, s23, 10')
    a('s_add_u32 s54, s54, s55')
    a('s_lshl_b32 s55, s22, 6')
    a('s_add_u32 s54, s54, s55')
    a('v_lshlrev_b32 v4, 11, v2')
    a('v_lshl_add_u32 v4, v1, 4, v4')
    a('s_mov_b32 s12, s40')
    a('s_mov_b32 s13, s41')
    a('s_mov_b32 s14, 786432')
    a('s_mov_b32 s15, 0x20000')
    a('buffer_store_dwordx4 v[32:35], v4, s[12:15], s54 offen')
    a.label('K2_END')
    a('s_endpgm')

HDR = open('cdna_kernels/' + NAME + '.s.ref').read().split('; Override launch')[0]

def kd(name, vgpr, sgpr):
    return f'''.amdhsa_kernel {name}
  .amdhsa_next_free_vgpr {vgpr}
  .amdhsa_next_free_sgpr {sgpr}
  .amdhsa_accum_offset {((vgpr + 3) // 4) * 4}
  .amdhsa_group_segment_fixed_size 0
  .amdhsa_kernarg_size 104
  .amdhsa_user_sgpr_count 2
  .amdhsa_user_sgpr_kernarg_segment_ptr 1
  .amdhsa_system_sgpr_workgroup_id_x 1
.end_amdhsa_kernel
'''

def gen(cfg):
    a = Asm()
    cfg.k1name = 'attn_kernel'
    cfg.k2name = 'proj_kernel'
    out = HDR
    out += f'; @launch kernel={cfg.k1name} grid=(512,1,1) block=(256,1,1) lds=81920\n'
    if not cfg.only1:
        out += f'; @launch kernel={cfg.k2name} grid=(256,1,1) block=(512,1,1) lds=49152\n'
    out += '.amdgcn_target "amdgcn-amd-amdhsa--gfx950"\n.text\n'
    attn_kernel(a, cfg)
    if not cfg.only1: proj_kernel(a, cfg)
    out += a.text()
    out += '.section .rodata,"a"\n.p2align 6\n'
    out += kd(cfg.k1name, 256, 80)
    if not cfg.only1:
        out += '.p2align 6\n' + kd(cfg.k2name, 128, 64)
    return out

if __name__ == '__main__':
    ap = argparse.ArgumentParser()
    ap.add_argument('-o', default='cdna_kernels/' + NAME + '.s')
    ap.add_argument('--stamps', type=int, default=0)
    ap.add_argument('--compute', type=int, default=1)
    ap.add_argument('--ntA', default='')
    ap.add_argument('--ntB', default='')
    ap.add_argument('--rot', type=int, default=0)
    ap.add_argument('--typemode', type=int, default=0)
    ap.add_argument('--swapab', type=int, default=0)
    ap.add_argument('--only1', type=int, default=0)
    cfg = ap.parse_args()
    open(cfg.o, 'w').write(gen(cfg))
    print('wrote', cfg.o)
```

```python
import sys, argparse

NAME = 'concat_heads__gqa_block_cached__mha_block_cached__near_ridge'

class Asm:
    def __init__(self): self.L = []
    def __call__(self, s): self.L.append('    ' + s)
    def label(self, s): self.L.append(s + ':')
    def c(self, s): self.L.append('    ; ' + s)
    def text(self): return '\n'.join(self.L) + '\n'

def vr(b, n=1): return f'v{b}' if n == 1 else f'v[{b}:{b+n-1}]'
def sr(b, n=1): return f's{b}' if n == 1 else f's[{b}:{b+n-1}]'

VOFFK = 4
VOFFV = 8
KADDR = 10
VADDR = 14
MREF = 22
LSUM = 25
LT = 28
TMP = 31
T0 = 32
Q0 = 40
O0 = 88
S0 = 184
P0 = 208
F0 = 220
X0 = 252
def Q(tq, kk): return Q0 + (tq * 4 + kk) * 4
def O(td, tq): return O0 + (td * 3 + tq) * 4
def S(kt, tq): return S0 + (kt * 3 + tq) * 4
def P(tq): return P0 + tq * 4
def KF(kt, kk): return F0 + (kt * 4 + kk) * 4
def VF(td): return F0 + td * 4

SK, SV, SX, SWQ = 4, 8, 12, 16
S_W, S_B, S_H, S_ISB = 20, 21, 22, 23
S_KOFF, S_VOFF, S_CNT = 24, 25, 26
S_KSLOT, S_VSLOT, S_SCR = 27, 28, 29
S_C, S_THR, S_SELLO, S_SELHI = 30, 31, 32, 33
S_T = 34
S_STAMP = 60

KSLOT = lambda w: w * 8192
VSLOT = lambda w: 32768 + w * 8192
SCR = lambda w: 65536 + w * 4096

class Cfg: pass

def stamp(a, cfg, k):
    if cfg.stamps:
        a(f's_memrealtime {sr(S_STAMP + 2 * k, 2)}')
        a('s_waitcnt lgkmcnt(0)')

def stamp_store(a, cfg, wsreg, rowbase, wavereg, endlabel):
    a('s_waitcnt vmcnt(0)')
    stamp(a, cfg, 7)
    a(f's_cmp_lg_u32 {wavereg}, 0')
    a(f's_cbranch_scc1 {endlabel}')
    a(f's_add_u32 s12, s{wsreg}, {0x10000000 + rowbase * 64}')
    a(f's_addc_u32 s13, s{wsreg + 1}, 0')
    a('s_lshl_b32 s54, s2, 6')
    a('s_add_u32 s12, s12, s54')
    a('s_addc_u32 s13, s13, 0')
    a('s_mov_b32 s14, 64')
    a('s_mov_b32 s15, 0x20000')
    a(f's_getreg_b32 s{S_STAMP + 10}, hwreg(HW_REG_HW_ID)')
    a(f's_getreg_b32 s{S_STAMP + 11}, hwreg(HW_REG_XCC_ID)')
    a('v_mbcnt_lo_u32_b32 v0, -1, 0')
    a('v_mbcnt_hi_u32_b32 v0, -1, v0')
    a('v_lshlrev_b32 v1, 2, v0')
    a('v_mov_b32 v2, 0')
    for k in range(16):
        a(f'v_mov_b32 v3, s{S_STAMP + k}')
        a(f'v_cmp_eq_u32 vcc, {k}, v0')
        a('s_nop 1')
        a('v_cndmask_b32 v2, v2, v3, vcc')
    a('buffer_store_dword v2, v1, s[12:15], 0 offen')

def stamp_init(a, cfg):
    if cfg.stamps:
        for k in range(16): a(f's_mov_b32 s{S_STAMP + k}, 0')

def dma_tile(a, cfg, srd, voffs, soff, slot, nt, inter=None):
    f = (' ' + nt.replace('+', ' ')) if nt else ''
    for n in range(8):
        if n == 0:
            a(f's_mov_b32 m0, {sr(slot)}')
            a(f's_add_u32 {sr(S_T)}, {sr(soff)}, 0x1000')
        if n == 4:
            a(f's_add_u32 m0, {sr(slot)}, 0x1000')
            a('s_nop 0')
        so = sr(soff) if n < 4 else sr(S_T)
        a(f'buffer_load_dwordx4 {vr(voffs(n))}, {sr(srd, 4)}, {so} offen offset:{(n & 3) * 1024}{f} lds')
        if inter:
            for s in inter[n]: a(s)
    a(f's_add_u32 {sr(soff)}, {sr(soff)}, 0x2000')
    a(f's_and_b32 {sr(soff)}, {sr(soff)}, 0x1ffff')

def xlane_reduce(a, op, x, tmp):
    a(f'v_mov_b32 {vr(tmp)}, {vr(x)}')
    a('s_nop 1')
    a(f'v_permlane32_swap_b32 {vr(x)}, {vr(tmp)}')
    a('s_nop 1')
    a(f'{op} {vr(x)}, {vr(x)}, {vr(tmp)}')
    a(f'v_mov_b32 {vr(tmp)}, {vr(x)}')
    a('s_nop 1')
    a(f'v_permlane16_swap_b32 {vr(x)}, {vr(tmp)}')
    a('s_nop 1')
    a(f'{op} {vr(x)}, {vr(x)}, {vr(tmp)}')

def body(a, cfg, tag, prefetch, nt):
    a('s_waitcnt vmcnt(8)')
    for kt in range(2):
        for kk in range(4):
            a(f'ds_read_b128 {vr(KF(kt, kk), 4)}, {vr(KADDR + kk)} offset:{kt * 4096}')
    a('s_waitcnt lgkmcnt(0)')
    mf = []
    if cfg.compute:
        for kk in range(4):
            for tq in range(3):
                for kt in range(2):
                    c = '0' if kk == 0 else vr(S(kt, tq), 4)
                    mf.append(f'v_mfma_f32_16x16x32_bf16 {vr(S(kt, tq), 4)}, {vr(KF(kt, kk), 4)}, {vr(Q(tq, kk), 4)}, {c}')
    if prefetch:
        inter = [mf[3 * n:3 * n + 3] for n in range(8)]
        dma_tile(a, cfg, SK, lambda n: VOFFK + (n & 3), S_KOFF, S_KSLOT, nt[0], inter)
    else:
        for s in mf: a(s)
    if cfg.compute:
        a('s_nop 2')
        a.label(f'SM_{tag}')
        for tq in range(3):
            A, B = T0, T0 + 4
            m = vr(MREF + tq)
            for r in range(4): a(f'v_fma_f32 {vr(A + r)}, {vr(S(0, tq) + r)}, {sr(S_C)}, -{m}')
            for r in range(4): a(f'v_fma_f32 {vr(B + r)}, {vr(S(1, tq) + r)}, {sr(S_C)}, -{m}')
            for r in range(4): a(f'v_exp_f32 {vr(A + r)}, {vr(A + r)}')
            for r in range(4): a(f'v_exp_f32 {vr(B + r)}, {vr(B + r)}')
            a(f'v_cvt_pk_bf16_f32 {vr(P(tq))}, {vr(A)}, {vr(A + 1)}')
            a(f'v_cvt_pk_bf16_f32 {vr(P(tq) + 1)}, {vr(A + 2)}, {vr(A + 3)}')
            a(f'v_add_f32 {vr(A)}, {vr(A)}, {vr(A + 1)}')
            a(f'v_add_f32 {vr(A + 2)}, {vr(A + 2)}, {vr(A + 3)}')
            a(f'v_cvt_pk_bf16_f32 {vr(P(tq) + 2)}, {vr(B)}, {vr(B + 1)}')
            a(f'v_cvt_pk_bf16_f32 {vr(P(tq) + 3)}, {vr(B + 2)}, {vr(B + 3)}')
            a(f'v_add_f32 {vr(B)}, {vr(B)}, {vr(B + 1)}')
            a(f'v_add_f32 {vr(B + 2)}, {vr(B + 2)}, {vr(B + 3)}')
            a(f'v_add_f32 {vr(A)}, {vr(A)}, {vr(A + 2)}')
            a(f'v_add_f32 {vr(B)}, {vr(B)}, {vr(B + 2)}')
            a(f'v_add_f32 {vr(LT + tq)}, {vr(A)}, {vr(B)}')
        a(f'v_max3_f32 {vr(TMP)}, {vr(LT)}, {vr(LT + 1)}, {vr(LT + 2)}')
        a(f'v_cmp_lt_f32 vcc, {sr(S_THR)}, {vr(TMP)}')
        a(f's_cbranch_vccnz SLOW_{tag}')
        a(f's_mov_b32 {sr(S_THR)}, 0x43800000')
        for tq in range(3): a(f'v_add_f32 {vr(LSUM + tq)}, {vr(LSUM + tq)}, {vr(LT + tq)}')
    a(f's_waitcnt vmcnt({8 if prefetch else 0})')
    for td in range(8):
        a(f'ds_read_b64_tr_b16 {vr(VF(td), 2)}, {vr(VADDR + td)}')
        a(f'ds_read_b64_tr_b16 {vr(VF(td) + 2, 2)}, {vr(VADDR + td)} offset:4096')
    a('s_waitcnt lgkmcnt(0)')
    mf = []
    if cfg.compute:
        for td in range(8):
            for tq in range(3):
                mf.append(f'v_mfma_f32_16x16x32_bf16 {vr(O(td, tq), 4)}, {vr(VF(td), 4)}, {vr(P(tq), 4)}, {vr(O(td, tq), 4)}')
    if prefetch:
        inter = [mf[3 * n:3 * n + 3] for n in range(8)]
        dma_tile(a, cfg, SV, lambda n: VOFFV + (n & 1), S_VOFF, S_VSLOT, nt[1], inter)
    else:
        for s in mf: a(s)

def slow(a, cfg, tag):
    a.label(f'SLOW_{tag}')
    for tq in range(3):
        mx = T0 + tq
        s0, s1 = S(0, tq), S(1, tq)
        a(f'v_max3_f32 {vr(mx)}, {vr(s0)}, {vr(s0 + 1)}, {vr(s0 + 2)}')
        a(f'v_max3_f32 {vr(mx)}, {vr(mx)}, {vr(s0 + 3)}, {vr(s1)}')
        a(f'v_max3_f32 {vr(mx)}, {vr(mx)}, {vr(s1 + 1)}, {vr(s1 + 2)}')
        a(f'v_max_f32 {vr(mx)}, {vr(mx)}, {vr(s1 + 3)}')
    for tq in range(3):
        xlane_reduce(a, 'v_max_f32', T0 + tq, TMP)
    for tq in range(3):
        mx, al = T0 + tq, T0 + 4 + tq
        a(f'v_mul_f32 {vr(mx)}, {sr(S_C)}, {vr(mx)}')
        a(f'v_max_f32 {vr(mx)}, {vr(mx)}, {vr(MREF + tq)}')
        a(f'v_sub_f32 {vr(al)}, {vr(MREF + tq)}, {vr(mx)}')
        a(f'v_exp_f32 {vr(al)}, {vr(al)}')
        a(f'v_mov_b32 {vr(MREF + tq)}, {vr(mx)}')
        a(f'v_mul_f32 {vr(LSUM + tq)}, {vr(LSUM + tq)}, {vr(al)}')
        for td in range(8):
            for r in range(4):
                a(f'v_mul_f32 {vr(O(td, tq) + r)}, {vr(O(td, tq) + r)}, {vr(al)}')
    a(f's_mov_b32 {sr(S_THR)}, 0x7f800000')
    a(f's_branch SM_{tag}')

def attn_kernel(a, cfg):
    K = cfg.k1name
    a.L.append(f'.globl {K}')
    a.L.append('.p2align 8')
    a.L.append(f'.type {K},@function')
    a.label(K)
    a('s_cmp_ge_u32 s2, 512')
    a('s_cbranch_scc1 K1_END')
    stamp_init(a, cfg)
    stamp(a, cfg, 0)
    a('s_load_dwordx8 s[36:43], s[0:1], 0')
    a('s_load_dwordx8 s[44:51], s[0:1], 40')
    a('s_load_dwordx2 s[52:53], s[0:1], 96')
    a('v_lshrrev_b32 v1, 6, v0')
    a('v_and_b32 v0, 63, v0')
    a('s_and_b32 s34, s2, 7')
    a('s_lshr_b32 s35, s2, 3')
    if cfg.typemode == 0:
        a(f's_lshr_b32 {sr(S_ISB)}, s35, 5')
        a('s_and_b32 s35, s35, 31')
    else:
        a(f's_and_b32 {sr(S_ISB)}, s35, 1')
        a('s_lshr_b32 s35, s35, 1')
    if cfg.swapab:
        a(f's_xor_b32 {sr(S_ISB)}, {sr(S_ISB)}, 1')
    a(f'v_readfirstlane_b32 {sr(S_W)}, v1')
    a(f's_lshr_b32 {sr(S_B)}, s35, 2')
    a('s_and_b32 s35, s35, 3')
    a('s_lshl_b32 s54, s34, 2')
    a(f's_add_u32 {sr(S_H)}, s54, s35')
    a(f's_lshl_b32 s54, {sr(S_B)}, 3')
    a('s_add_u32 s54, s54, s34')
    a(f's_lshl_b32 s55, {sr(S_B)}, 5')
    a(f's_add_u32 s55, s55, {sr(S_H)}')
    a(f's_cmp_eq_u32 {sr(S_ISB)}, 1')
    a('s_cselect_b32 s54, s55, s54')
    a('s_waitcnt lgkmcnt(0)')
    a('s_cselect_b64 s[36:37], s[44:45], s[36:37]')
    a('s_cselect_b64 s[38:39], s[46:47], s[38:39]')
    a('s_cselect_b64 s[40:41], s[48:49], s[40:41]')
    a('s_cselect_b64 s[42:43], s[50:51], s[42:43]')
    a('s_lshl_b32 s54, s54, 2')
    a(f's_add_u32 s54, s54, {sr(S_W)}')
    a('s_lshr_b32 s55, s54, 15')
    a('s_lshl_b32 s54, s54, 17')
    a(f's_add_u32 s{SK}, s38, s54')
    a(f's_addc_u32 s{SK+1}, s39, s55')
    a(f's_mov_b32 s{SK+2}, 0x20000')
    a(f's_mov_b32 s{SK+3}, 0x20000')
    a(f's_add_u32 s{SV}, s40, s54')
    a(f's_addc_u32 s{SV+1}, s41, s55')
    a(f's_mov_b32 s{SV+2}, 0x20000')
    a(f's_mov_b32 s{SV+3}, 0x20000')
    a(f's_mul_i32 s54, {sr(S_B)}, 49152')
    a(f's_lshl_b32 s55, {sr(S_W)}, 8')
    a('s_add_u32 s54, s54, s55')
    a(f's_add_u32 s{SX}, s36, s54')
    a(f's_addc_u32 s{SX+1}, s37, 0')
    a(f's_sub_u32 s{SX+2}, 393216, s54')
    a(f's_mov_b32 s{SX+3}, 0x20000')
    a(f's_lshl_b32 s54, {sr(S_W)}, 20')
    a(f's_lshl_b32 s55, {sr(S_H)}, 8')
    a('s_add_u32 s54, s54, s55')
    a(f's_add_u32 s{SWQ}, s42, s54')
    a(f's_addc_u32 s{SWQ+1}, s43, 0')
    a(f's_sub_u32 s{SWQ+2}, 4194304, s54')
    a(f's_mov_b32 s{SWQ+3}, 0x20000')
    a(f's_lshl_b32 {sr(S_KSLOT)}, {sr(S_W)}, 13')
    a(f's_add_u32 {sr(S_VSLOT)}, {sr(S_KSLOT)}, 32768')
    a(f's_lshl_b32 {sr(S_SCR)}, {sr(S_W)}, 12')
    a(f's_add_u32 {sr(S_SCR)}, {sr(S_SCR)}, 65536')
    a('v_lshrrev_b32 v1, 4, v0')
    a('v_and_b32 v2, 15, v0')
    a('v_xor_b32 v3, v2, v1')
    for n, hk in enumerate([0, 3, 2, 1]):
        a(f'v_xor_b32 {vr(VOFFK + n)}, {hk << 2}, v3')
        a(f'v_lshlrev_b32 {vr(VOFFK + n)}, 4, {vr(VOFFK + n)}')
        a(f'v_lshl_add_u32 {vr(VOFFK + n)}, v1, 8, {vr(VOFFK + n)}')
    XOFF = 216
    a('v_mul_u32_u24 v3, 768, v1')
    for n in range(4): a(f'v_add_u32 {vr(XOFF + n)}, {vr(VOFFK + n)}, v3')
    for n in range(12 if not cfg.noprol else 0):
        if n < 8: a(f's_add_u32 m0, {sr(S_VSLOT)}, {n * 1024}')
        else: a(f's_add_u32 m0, {sr(S_SCR)}, {(n - 8) * 1024}')
        a(f's_mov_b32 {sr(S_T)}, {n * 4096}')
        a(f'buffer_load_dwordx4 {vr(XOFF + (n & 3))}, {sr(SX, 4)}, {sr(S_T)} offen lds')
    WQOFF = 254
    a(f'v_lshlrev_b32 {vr(WQOFF)}, 16, v1')
    a(f'v_lshl_add_u32 {vr(WQOFF)}, v2, 4, {vr(WQOFF)}')
    R = [F0, S0]
    def wq_loads(ks):
        for n in range(8):
            a(f's_mov_b32 {sr(S_T)}, {(32 * ks + n) * 8192}')
            a(f'buffer_load_dwordx4 {vr(R[ks & 1] + 4 * n, 4)}, {vr(WQOFF)}, {sr(SWQ, 4)}, {sr(S_T)} offen')
    if not cfg.noprol:
        wq_loads(0); wq_loads(1)
        a('v_lshlrev_b32 v3, 13, v0')
        a(f's_mov_b32 {sr(S_T)}, {64 * 8192}')
        a(f'buffer_load_dword v255, v3, {sr(SWQ, 4)}, {sr(S_T)} offen')
        a(f'buffer_load_dword v253, v3, {sr(SWQ, 4)}, {sr(S_T)} offen offset:128')
    if cfg.rot:
        a(f's_and_b32 s54, s2, 7')
        a(f's_cmp_eq_u32 {sr(S_ISB)}, 1')
        a(f's_cselect_b32 s54, {sr(S_H)}, s54')
        a(f's_mul_i32 s54, s54, 5')
        a(f's_mul_i32 s55, {sr(S_B)}, 3')
        a('s_add_u32 s54, s54, s55')
        a(f's_mul_i32 s55, {sr(S_W)}, 7')
        a('s_add_u32 s54, s54, s55')
        a('s_and_b32 s54, s54, 15')
        a(f's_lshl_b32 {sr(S_KOFF)}, s54, 13')
    else:
        a(f's_mov_b32 {sr(S_KOFF)}, 0')
    a(f's_mov_b32 {sr(S_VOFF)}, {sr(S_KOFF)}')
    def both(fn):
        fn()
    def k0(nt): dma_tile(a, cfg, SK, lambda n: VOFFK + (n & 3), S_KOFF, S_KSLOT, nt[0])
    def v0_(nt): dma_tile(a, cfg, SV, lambda n: VOFFV + (n & 1), S_VOFF, S_VSLOT, nt[1])
    def ab(fn, tag):
        if cfg.ntA == cfg.ntB: fn(cfg.ntA)
        else:
            a(f's_cmp_eq_u32 {sr(S_ISB)}, 1')
            a(f's_cbranch_scc1 {tag}_B')
            fn(cfg.ntA)
            a(f's_branch {tag}_E')
            a.label(f'{tag}_B')
            fn(cfg.ntB)
            a.label(f'{tag}_E')
    ab(k0, 'K0')
    for p in range(2):
        a(f'v_add_u32 v3, {4 * p}, v1')
        a('v_lshlrev_b32 v3, 1, v3')
        a('v_xor_b32 v3, v2, v3')
        a('v_lshlrev_b32 v3, 4, v3')
        a(f'v_lshl_add_u32 {vr(VOFFV + p)}, v1, 8, v3')
    a('v_and_b32 v3, 4, v2')
    a('v_lshlrev_b32 v3, 1, v3')
    a('v_xor_b32 v3, v2, v3')
    a(f'v_lshlrev_b32 {vr(TMP)}, 2, v1')
    a(f'v_xor_b32 {vr(TMP)}, {vr(TMP)}, v3')
    a(f'v_lshlrev_b32 {vr(TMP)}, 4, {vr(TMP)}')
    a(f'v_lshl_add_u32 {vr(TMP)}, v2, 8, {vr(TMP)}')
    a(f'v_add_u32 {vr(KADDR)}, {sr(S_KSLOT)}, {vr(TMP)}')
    for kk in range(1, 4): a(f'v_xor_b32 {vr(KADDR + kk)}, {kk << 4}, {vr(KADDR)}')
    XA = 252
    a(f'v_xor_b32 {vr(XA)}, v1, v3')
    a(f'v_lshlrev_b32 {vr(XA)}, 4, {vr(XA)}')
    a(f'v_lshl_add_u32 {vr(XA)}, v2, 8, {vr(XA)}')
    a('v_lshrrev_b32 v3, 2, v2')
    a('v_lshl_add_u32 v3, v1, 2, v3')
    a(f'v_and_b32 {vr(TMP)}, 7, v3')
    a(f'v_lshlrev_b32 {vr(TMP)}, 5, {vr(TMP)}')
    a(f'v_lshl_add_u32 {vr(TMP)}, v3, 8, {vr(TMP)}')
    a('v_and_b32 v3, 3, v2')
    a(f'v_lshl_add_u32 {vr(TMP)}, v3, 3, {vr(TMP)}')
    a(f'v_add_u32 {vr(VADDR)}, {sr(S_VSLOT)}, {vr(TMP)}')
    for td in range(1, 8): a(f'v_xor_b32 {vr(VADDR + td)}, {td << 5}, {vr(VADDR)}')
    a(f's_mov_b32 {sr(S_C)}, 0x3e0293ee')
    a(f's_mov_b32 {sr(S_THR)}, 0x43800000')
    a(f's_mov_b32 {sr(S_SELLO)}, 0x05040100')
    a(f's_mov_b32 {sr(S_SELHI)}, 0x07060302')
    def prol_rest():
        a('s_waitcnt vmcnt(26)')
        stamp(a, cfg, 1)
        for ks in range(4):
            a(f'v_xor_b32 v3, {ks << 6}, {vr(XA)}')
            a(f'v_add_u32 {vr(TMP)}, {sr(S_VSLOT)}, v3')
            a(f'v_add_u32 v3, {sr(S_SCR)}, v3')
            a(f'ds_read_b128 {vr(Q(0, ks), 4)}, {vr(TMP)}')
            a(f'ds_read_b128 {vr(Q(1, ks), 4)}, {vr(TMP)} offset:4096')
            a(f'ds_read_b128 {vr(Q(2, ks), 4)}, v3')
        def qproj(ks):
            Rb = R[ks & 1]
            def perms(e, T):
                m, p = e >> 1, e & 1
                sel = S_SELHI if p else S_SELLO
                for q4 in range(4):
                    a(f'v_perm_b32 {vr(T + q4)}, {vr(Rb + 4 * (2 * q4 + 1) + m)}, {vr(Rb + 4 * (2 * q4) + m)}, {sr(sel)}')
            def mfmas(e, T):
                for tq in range(3):
                    c = '0' if ks == 0 else vr(O(e, tq), 4)
                    a(f'v_mfma_f32_16x16x32_bf16 {vr(O(e, tq), 4)}, {vr(T, 4)}, {vr(Q(tq, ks), 4)}, {c}')
            Ts = [T0, T0 + 4]
            perms(0, Ts[0])
            for e in range(8):
                if e < 7: perms(e + 1, Ts[(e + 1) & 1])
                else: a('s_nop 1')
                mfmas(e, Ts[e & 1])
        a('s_waitcnt vmcnt(18) lgkmcnt(0)')
        qproj(0); wq_loads(2)
        a('s_waitcnt vmcnt(18)')
        qproj(1); wq_loads(3)
        ab(v0_, 'V0')
        a('s_waitcnt vmcnt(16)')
        qproj(2)
        a('s_waitcnt vmcnt(8)')
        qproj(3)
        stamp(a, cfg, 2)
        LB = 3
        a('v_lshlrev_b32 v3, 4, v0')
        a('v_add_u32 v3, 65536, v3')
        a('s_nop 7')
        for w in range(4):
            if w < 3:
                a(f's_cmp_eq_u32 {sr(S_W)}, {w}')
                a(f's_cbranch_scc0 QR_{w + 1}')
            for rho in range(1, 4):
                dst = (w + rho) & 3; src = (w - rho) & 3
                for s in range(2):
                    for tq in range(3):
                        a(f'ds_write_b128 v3, {vr(O(2 * dst + s, tq), 4)} offset:{w * 4096 + tq * 1024}')
                    a('s_waitcnt lgkmcnt(0)')
                    a('s_barrier')
                    for tq in range(3):
                        a(f'ds_read_b128 {vr(F0 + 4 * tq, 4)}, v3 offset:{src * 4096 + tq * 1024}')
                    a('s_waitcnt lgkmcnt(0)')
                    for tq in range(3):
                        for r in range(4):
                            o = O(2 * w + s, tq) + r
                            a(f'v_add_f32 {vr(o)}, {vr(o)}, {vr(F0 + 4 * tq + r)}')
                    a('s_barrier')
            for tq in range(3):
                for r in range(4):
                    a(f'v_cvt_pk_bf16_f32 {vr(F0 + 4 * tq + r)}, {vr(O(2 * w, tq) + r)}, {vr(O(2 * w + 1, tq) + r)}')
            for tq in range(3):
                for r in range(4):
                    a(f'ds_write_b32 v3, {vr(F0 + 4 * tq + r)} offset:{tq * 4096 + r * 1024 + w * 4}')
            if w < 3:
                a('s_branch QR_END')
                a.label(f'QR_{w + 1}')
        a.label('QR_END')
        a('s_waitcnt lgkmcnt(0)')
        a('s_barrier')
        for tq in range(3):
            for kk in range(4):
                a(f'ds_read_b128 {vr(Q(tq, kk), 4)}, v3 offset:{tq * 4096 + kk * 1024}')
    if cfg.noprol:
        ab(v0_, 'V0')
    else:
        prol_rest()
    for r in range(96): a(f'v_mov_b32 {vr(O0 + r)}, 0')
    for tq in range(3):
        a(f'v_mov_b32 {vr(MREF + tq)}, 0xff800000')
        a(f'v_mov_b32 {vr(LSUM + tq)}, 0')
    a('s_waitcnt lgkmcnt(0)')
    stamp(a, cfg, 3)
    a(f's_mov_b32 {sr(S_CNT)}, 15')
    variants = [('A', cfg.ntA)] if cfg.ntA == cfg.ntB else [('A', cfg.ntA), ('B', cfg.ntB)]
    if len(variants) > 1:
        a(f's_cmp_eq_u32 {sr(S_ISB)}, 1')
        a('s_cbranch_scc1 LOOP_B')
    for v, nt in variants:
        a.L.append('.p2align 3')
        a.label(f'LOOP_{v}')
        body(a, cfg, f'{v}L', True, nt)
        a(f's_sub_u32 {sr(S_CNT)}, {sr(S_CNT)}, 1')
        a(f's_cmp_lg_u32 {sr(S_CNT)}, 0')
        a(f's_cbranch_scc1 LOOP_{v}')
        if v != variants[-1][0]: a('s_branch LAST')
    a.label('LAST')
    body(a, cfg, 'F', False, ('', ''))
    stamp(a, cfg, 4)
    def epi():
        for tq in range(3): xlane_reduce(a, 'v_add_f32', LSUM + tq, TMP)
        a('v_lshlrev_b32 v1, 4, v0')
        a('v_add_u32 v3, 65536, v1')
        a('v_lshlrev_b32 v2, 2, v0')
        a('v_add_u32 v2, 65536, v2')
        a(f's_lshl_b32 s54, {sr(S_ISB)}, 3')
        a(f's_add_u32 s54, s54, {sr(S_B)}')
        a('s_mul_i32 s54, s54, 393216')
        a(f's_lshl_b32 s55, {sr(S_H)}, 2')
        a(f's_add_u32 s55, s55, {sr(S_W)}')
        a('s_lshl_b32 s55, s55, 10')
        a('s_add_u32 s54, s54, s55')
        a(f's_add_u32 s{SX}, s52, s54')
        a(f's_addc_u32 s{SX+1}, s53, 0')
        a(f's_mov_b32 s{SX+2}, {2 * 131072 + 1024}')
        a(f's_mov_b32 s{SX+3}, 0x20000')
        def lds_u(w, u):
            if u < 8: return ('v1', KSLOT(w) + u * 1024)
            if u < 16: return ('v1', VSLOT(w) + (u - 8) * 1024)
            return ('v3', w * 4096 + (u - 16) * 1024)
        for w in range(4):
            if w < 3:
                a(f's_cmp_eq_u32 {sr(S_W)}, {w}')
                a(f's_cbranch_scc0 EP_{w + 1}')
            for k in range(3):
                a(f'ds_write_b32 v2, {vr(MREF + k)} offset:{w * 4096 + 2048 + k * 256}')
                a(f'ds_write_b32 v2, {vr(LSUM + k)} offset:{w * 4096 + 2048 + (3 + k) * 256}')
            for rho in range(1, 4):
                dst = (w + rho) & 3
                for s in range(2):
                    for tq in range(3):
                        b_, off = lds_u(w, (rho - 1) * 6 + s * 3 + tq)
                        a(f'ds_write_b128 {b_}, {vr(O(2 * dst + s, tq), 4)} offset:{off}')
            a('s_waitcnt lgkmcnt(0)')
            a('s_barrier')
            for w2 in range(4):
                for k in range(6):
                    a(f'ds_read_b32 {vr(F0 + w2 * 6 + k)}, v2 offset:{w2 * 4096 + 2048 + k * 256}')
            def buf(idx): return Q0 + idx * 4 if idx < 12 else S0 + (idx - 12) * 4
            idx = 0; where = {}
            for rho in range(1, 4):
                src = (w - rho) & 3
                for s in range(2):
                    for tq in range(3):
                        b_, off = lds_u(src, (rho - 1) * 6 + s * 3 + tq)
                        a(f'ds_read_b128 {vr(buf(idx), 4)}, {b_} offset:{off}')
                        where[(src, s, tq)] = buf(idx); idx += 1
            a('s_waitcnt lgkmcnt(0)')
            for tq in range(3):
                M = T0 + tq
                m = lambda w2: F0 + w2 * 6 + tq
                l = lambda w2: F0 + w2 * 6 + 3 + tq
                a(f'v_max3_f32 {vr(M)}, {vr(m(0))}, {vr(m(1))}, {vr(m(2))}')
                a(f'v_max_f32 {vr(M)}, {vr(M)}, {vr(m(3))}')
                for w2 in range(4): a(f'v_sub_f32 {vr(m(w2))}, {vr(m(w2))}, {vr(M)}')
                for w2 in range(4): a(f'v_exp_f32 {vr(m(w2))}, {vr(m(w2))}')
                a('s_nop 0')
                a(f'v_mul_f32 {vr(M)}, {vr(m(0))}, {vr(l(0))}')
                for w2 in range(1, 4): a(f'v_fma_f32 {vr(M)}, {vr(m(w2))}, {vr(l(w2))}, {vr(M)}')
                a(f'v_rcp_f32 {vr(M)}, {vr(M)}')
                a('s_nop 0')
                for w2 in range(4): a(f'v_mul_f32 {vr(m(w2))}, {vr(m(w2))}, {vr(M)}')
                for s in range(2):
                    o = O(2 * w + s, tq)
                    for r in range(4): a(f'v_mul_f32 {vr(o + r)}, {vr(o + r)}, {vr(m(w))}')
                    for w2 in range(4):
                        if w2 == w: continue
                        for r in range(4):
                            a(f'v_fma_f32 {vr(o + r)}, {vr(where[(w2, s, tq)] + r)}, {vr(m(w2))}, {vr(o + r)}')
                d = P(tq)
                a(f'v_cvt_pk_bf16_f32 {vr(d)}, {vr(O(2 * w, tq))}, {vr(O(2 * w, tq) + 1)}')
                a(f'v_cvt_pk_bf16_f32 {vr(d + 1)}, {vr(O(2 * w, tq) + 2)}, {vr(O(2 * w, tq) + 3)}')
                a(f'v_cvt_pk_bf16_f32 {vr(d + 2)}, {vr(O(2 * w + 1, tq))}, {vr(O(2 * w + 1, tq) + 1)}')
                a(f'v_cvt_pk_bf16_f32 {vr(d + 3)}, {vr(O(2 * w + 1, tq) + 2)}, {vr(O(2 * w + 1, tq) + 3)}')
                a(f's_mov_b32 {sr(S_T)}, {tq * 131072}')
                a(f'buffer_store_dwordx4 {vr(d, 4)}, v1, {sr(SX, 4)}, {sr(S_T)} offen')
            if w < 3:
                a('s_branch EP_END')
                a.label(f'EP_{w + 1}')
        a.label('EP_END')
    if not cfg.noepi: epi()
    if cfg.stamps: stamp_store(a, cfg, 52, 0, sr(S_W), 'K1_END')
    a.label('K1_END')
    a('s_endpgm')
    if cfg.compute:
        for v, nt in variants: slow(a, cfg, f'{v}L')
        slow(a, cfg, 'F')

def proj_kernel(a, cfg):
    K = cfg.k2name
    a.L.append(f'.globl {K}')
    a.L.append('.p2align 8')
    a.L.append(f'.type {K},@function')
    a.label(K)
    a('s_cmp_ge_u32 s2, 256')
    a('s_cbranch_scc1 K2_END')
    stamp_init(a, cfg)
    stamp(a, cfg, 0)
    a('s_load_dwordx2 s[36:37], s[0:1], 32')
    a('s_load_dwordx2 s[38:39], s[0:1], 72')
    a('s_load_dwordx2 s[40:41], s[0:1], 80')
    a('s_load_dwordx2 s[42:43], s[0:1], 96')
    a('v_lshrrev_b32 v1, 6, v0')
    a('v_and_b32 v0, 63, v0')
    a('s_and_b32 s34, s2, 7')
    a('s_lshr_b32 s35, s2, 3')
    a('v_readfirstlane_b32 s20, v1')
    a('s_lshr_b32 s23, s34, 2')
    a('s_lshr_b32 s21, s34, 1')
    a('s_and_b32 s21, s21, 1')
    a('s_lshl_b32 s21, s21, 2')
    a('s_lshr_b32 s54, s35, 3')
    a('s_add_u32 s21, s21, s54')
    a('s_and_b32 s22, s34, 1')
    a('s_lshl_b32 s22, s22, 3')
    a('s_and_b32 s54, s35, 7')
    a('s_add_u32 s22, s22, s54')
    a('s_cmp_eq_u32 s23, 1')
    a('s_waitcnt lgkmcnt(0)')
    a('s_cselect_b64 s[36:37], s[38:39], s[36:37]')
    a('s_lshl_b32 s54, s20, 19')
    a('s_lshl_b32 s55, s22, 6')
    a('s_add_u32 s54, s54, s55')
    a('s_add_u32 s4, s36, s54')
    a('s_addc_u32 s5, s37, 0')
    a('s_sub_u32 s6, 4194304, s54')
    a('s_mov_b32 s7, 0x20000')
    a('s_lshl_b32 s54, s23, 3')
    a('s_add_u32 s54, s54, s21')
    a('s_mul_i32 s54, s54, 393216')
    a('s_lshl_b32 s55, s20, 14')
    a('s_add_u32 s54, s54, s55')
    a('s_add_u32 s8, s42, s54')
    a('s_addc_u32 s9, s43, 0')
    a(f's_mov_b32 s10, {2 * 131072 + 16384}')
    a('s_mov_b32 s11, 0x20000')
    a('v_lshrrev_b32 v1, 4, v0')
    a('v_and_b32 v2, 15, v0')
    a('v_lshlrev_b32 v4, 12, v1')
    a('v_lshl_add_u32 v4, v2, 2, v4')
    a('v_add_u32 v5, 16384, v4')
    a('v_lshlrev_b32 v6, 4, v0')
    a('s_mov_b32 s32, 0x05040100')
    a('s_mov_b32 s33, 0x07060302')
    ACC = 8
    T = 32
    BUF = [40, 80]
    NKS = 2
    def issue(c):
        B = BUF[c & 1]
        for ks in range(NKS):
            a(f's_mov_b32 s35, {(c * NKS + ks) * 32768}')
            for n in range(8):
                a(f'buffer_load_dword {vr(B + 24 + ks * 8 + n)}, {"v4" if n < 4 else "v5"}, s[4:7], s35 offen offset:{(n & 3) * 1024}')
            for tq in range(3):
                a(f's_mov_b32 s34, {tq * 131072 + c * NKS * 1024}')
                a(f'buffer_load_dwordx4 {vr(B + (ks * 3 + tq) * 4, 4)}, v6, s[8:11], s34 offen offset:{ks * 1024}')
    def compute(c):
        B = BUF[c & 1]
        for ks in range(NKS):
            raw = B + 24 + ks * 8
            for e in range(2):
                sel = 's33' if e else 's32'
                for q4 in range(4):
                    a(f'v_perm_b32 {vr(T + 4 * e + q4)}, {vr(raw + 2 * q4 + 1)}, {vr(raw + 2 * q4)}, {sel}')
            a('s_nop 0')
            for e in range(2):
                for tq in range(3):
                    acc = ACC + (e * 3 + tq) * 4
                    cc = '0' if (c == 0 and ks == 0) else vr(acc, 4)
                    a(f'v_mfma_f32_16x16x32_bf16 {vr(acc, 4)}, {vr(T + 4 * e, 4)}, {vr(B + (ks * 3 + tq) * 4, 4)}, {cc}')
    issue(0); issue(1)
    for c in range(8):
        a(f's_waitcnt vmcnt({22 if c < 7 else 0})')
        compute(c)
        if c < 6: issue(c + 2)
    stamp(a, cfg, 4)
    a('s_mul_i32 s54, s20, 6144')
    a('v_add_u32 v7, s54, v6')
    a('s_nop 7')
    for t in range(6):
        a(f'ds_write_b128 v7, {vr(ACC + 4 * t, 4)} offset:{t * 1024}')
    a('s_waitcnt lgkmcnt(0)')
    a('s_barrier')
    a('s_cmp_ge_u32 s20, 3')
    a('s_cbranch_scc1 K2_END')
    a('s_lshl_b32 s54, s20, 10')
    a('v_add_u32 v7, s54, v6')
    for v in range(8):
        for e in range(2):
            a(f'ds_read_b128 {vr(40 + (v * 2 + e) * 4, 4)}, v7 offset:{v * 6144 + e * 3072}')
    a('s_waitcnt lgkmcnt(0)')
    for v in range(1, 8):
        for k in range(8):
            a(f'v_add_f32 {vr(40 + k)}, {vr(40 + k)}, {vr(40 + v * 8 + k)}')
    for r in range(4):
        a(f'v_cvt_pk_bf16_f32 {vr(32 + r)}, {vr(40 + r)}, {vr(44 + r)}')
    a('s_mul_i32 s54, s21, 48')
    a('s_lshl_b32 s55, s20, 4')
    a('s_add_u32 s54, s54, s55')
    a('s_lshl_b32 s54, s54, 11')
    a('s_lshl_b32 s55, s23, 10')
    a('s_add_u32 s54, s54, s55')
    a('s_lshl_b32 s55, s22, 6')
    a('s_add_u32 s54, s54, s55')
    a('v_lshlrev_b32 v4, 11, v2')
    a('v_lshl_add_u32 v4, v1, 4, v4')
    a('s_mov_b32 s12, s40')
    a('s_mov_b32 s13, s41')
    a('s_mov_b32 s14, 786432')
    a('s_mov_b32 s15, 0x20000')
    a('buffer_store_dwordx4 v[32:35], v4, s[12:15], s54 offen')
    if cfg.stamps: stamp_store(a, cfg, 42, 512, 's20', 'K2_END')
    a.label('K2_END')
    a('s_endpgm')

HDR = open('cdna_kernels/' + NAME + '.s.ref').read().split('; Override launch')[0]

def kd(name, vgpr, sgpr):
    return f'''.amdhsa_kernel {name}
  .amdhsa_next_free_vgpr {vgpr}
  .amdhsa_next_free_sgpr {sgpr}
  .amdhsa_accum_offset {((vgpr + 3) // 4) * 4}
  .amdhsa_group_segment_fixed_size 0
  .amdhsa_kernarg_size 104
  .amdhsa_user_sgpr_count 2
  .amdhsa_user_sgpr_kernarg_segment_ptr 1
  .amdhsa_system_sgpr_workgroup_id_x 1
.end_amdhsa_kernel
'''

def gen(cfg):
    a = Asm()
    cfg.k1name = 'attn_kernel'
    cfg.k2name = 'proj_kernel'
    out = HDR
    out += f'; @launch kernel={cfg.k1name} grid=(512,1,1) block=(256,1,1) lds=81920\n'
    if not cfg.only1:
        out += f'; @launch kernel={cfg.k2name} grid=(256,1,1) block=(512,1,1) lds=49152\n'
    out += '.amdgcn_target "amdgcn-amd-amdhsa--gfx950"\n.text\n'
    attn_kernel(a, cfg)
    if not cfg.only1: proj_kernel(a, cfg)
    out += a.text()
    out += '.section .rodata,"a"\n.p2align 6\n'
    out += kd(cfg.k1name, 256, 80)
    if not cfg.only1:
        out += '.p2align 6\n' + kd(cfg.k2name, 128, 80)
    return out

if __name__ == '__main__':
    ap = argparse.ArgumentParser()
    ap.add_argument('-o', default='cdna_kernels/' + NAME + '.s')
    ap.add_argument('--stamps', type=int, default=0)
    ap.add_argument('--compute', type=int, default=1)
    ap.add_argument('--ntA', default='')
    ap.add_argument('--ntB', default='')
    ap.add_argument('--rot', type=int, default=0)
    ap.add_argument('--typemode', type=int, default=0)
    ap.add_argument('--swapab', type=int, default=0)
    ap.add_argument('--only1', type=int, default=0)
    ap.add_argument('--noprol', type=int, default=0)
    ap.add_argument('--noepi', type=int, default=0)
    cfg = ap.parse_args()
    def pf(x):
        x = x.replace('def', '')
        return tuple(x.split(',')) if ',' in x else (x, x)
    cfg.ntA = pf(cfg.ntA); cfg.ntB = pf(cfg.ntB)
    open(cfg.o, 'w').write(gen(cfg))
    print('wrote', cfg.o)
```

```python
import sys, argparse

NAME = 'concat_heads__gqa_block_cached__mha_block_cached__near_ridge'

class Asm:
    def __init__(self): self.L = []
    def __call__(self, s): self.L.append('    ' + s)
    def label(self, s): self.L.append(s + ':')
    def c(self, s): self.L.append('    ; ' + s)
    def text(self): return '\n'.join(self.L) + '\n'

def vr(b, n=1): return f'v{b}' if n == 1 else f'v[{b}:{b+n-1}]'
def sr(b, n=1): return f's{b}' if n == 1 else f's[{b}:{b+n-1}]'

VOFFK = 4
VOFFV = 8
KADDR = 10
VADDR = 14
MREF = 22
LSUM = 25
LT = 28
TMP = 31
T0 = 32
Q0 = 40
O0 = 88
S0 = 184
P0 = 208
F0 = 220
X0 = 252
def Q(tq, kk): return Q0 + (tq * 4 + kk) * 4
def O(td, tq): return O0 + (td * 3 + tq) * 4
def S(kt, tq): return S0 + (kt * 3 + tq) * 4
def P(tq): return P0 + tq * 4
def KF(kt, kk): return F0 + (kt * 4 + kk) * 4
def VF(td): return F0 + td * 4

SK, SV, SX, SWQ = 4, 8, 12, 16
S_W, S_B, S_H, S_ISB = 20, 21, 22, 23
S_KOFF, S_VOFF, S_CNT = 24, 25, 26
S_KSLOT, S_VSLOT, S_SCR = 27, 28, 29
S_C, S_THR, S_SELLO, S_SELHI = 30, 31, 32, 33
S_T = 34
S_SKIP = 58
S_STAMP = 76
S_DBG, S_WS = 68, 70

KSLOT = lambda w: w * 8192
VSLOT = lambda w: 32768 + w * 8192
SCR = lambda w: 65536 + w * 4096

class Cfg: pass

def stamp(a, cfg, k):
    if cfg.stamps:
        a(f's_memrealtime {sr(S_STAMP + 2 * k, 2)}')
        a('s_waitcnt lgkmcnt(0)')

def stamp_store(a, cfg, wsreg, rowbase, wavereg, endlabel):
    a('s_waitcnt vmcnt(0)')
    stamp(a, cfg, 7)
    a(f's_cmp_lg_u32 {wavereg}, 0')
    a(f's_cbranch_scc1 {endlabel}')
    a(f's_add_u32 s12, s{wsreg}, {0x10000000 + rowbase * 64}')
    a(f's_addc_u32 s13, s{wsreg + 1}, 0')
    a('s_lshl_b32 s54, s2, 6')
    a('s_add_u32 s12, s12, s54')
    a('s_addc_u32 s13, s13, 0')
    a('s_mov_b32 s14, 64')
    a('s_mov_b32 s15, 0x20000')
    a(f's_getreg_b32 s{S_STAMP + 10}, hwreg(HW_REG_HW_ID)')
    a(f's_getreg_b32 s{S_STAMP + 11}, hwreg(HW_REG_XCC_ID)')
    a('v_mbcnt_lo_u32_b32 v0, -1, 0')
    a('v_mbcnt_hi_u32_b32 v0, -1, v0')
    a('v_lshlrev_b32 v1, 2, v0')
    a('v_mov_b32 v2, 0')
    for k in range(16):
        a(f'v_mov_b32 v3, s{S_STAMP + k}')
        a(f'v_cmp_eq_u32 vcc, {k}, v0')
        a('s_nop 1')
        a('v_cndmask_b32 v2, v2, v3, vcc')
    a('buffer_store_dword v2, v1, s[12:15], 0 offen')

def stamp_init(a, cfg):
    if cfg.stamps:
        for k in range(16): a(f's_mov_b32 s{S_STAMP + k}, 0')

def dma_tile(a, cfg, srd, voffs, soff, slot, nt, inter=None):
    f = (' ' + nt.replace('+', ' ')) if nt else ''
    for n in range(8):
        if n == 0:
            a(f's_mov_b32 m0, {sr(slot)}')
            a(f's_add_u32 {sr(S_T)}, {sr(soff)}, 0x1000')
        if n == 4:
            a(f's_add_u32 m0, {sr(slot)}, 0x1000')
            a('s_nop 0')
        so = sr(soff) if n < 4 else sr(S_T)
        a(f'buffer_load_dwordx4 {vr(voffs(n))}, {sr(srd, 4)}, {so} offen offset:{(n & 3) * 1024}{f} lds')
        if inter:
            for s in inter[n]: a(s)
    a(f's_add_u32 {sr(soff)}, {sr(soff)}, {0x8000 if cfg.inter else 0x2000}')
    a(f's_and_b32 {sr(soff)}, {sr(soff)}, {0x7ffff if cfg.inter else 0x1ffff}')

def xlane_reduce(a, op, x, tmp):
    a(f'v_mov_b32 {vr(tmp)}, {vr(x)}')
    a('s_nop 1')
    a(f'v_permlane32_swap_b32 {vr(x)}, {vr(tmp)}')
    a('s_nop 1')
    a(f'{op} {vr(x)}, {vr(x)}, {vr(tmp)}')
    a(f'v_mov_b32 {vr(tmp)}, {vr(x)}')
    a('s_nop 1')
    a(f'v_permlane16_swap_b32 {vr(x)}, {vr(tmp)}')
    a('s_nop 1')
    a(f'{op} {vr(x)}, {vr(x)}, {vr(tmp)}')

def body(a, cfg, tag, prefetch, nt, ser):
    a(f's_waitcnt vmcnt({0 if ser else 8})')
    for kt in range(2):
        for kk in range(4):
            a(f'ds_read_b128 {vr(KF(kt, kk), 4)}, {vr(KADDR + kk)} offset:{kt * 4096}')
    a('s_waitcnt lgkmcnt(0)')
    mf = []
    if cfg.compute:
        for kk in range(4):
            for tq in range(3):
                for kt in range(2):
                    c = '0' if kk == 0 else vr(S(kt, tq), 4)
                    mf.append(f'v_mfma_f32_16x16x32_bf16 {vr(S(kt, tq), 4)}, {vr(KF(kt, kk), 4)}, {vr(Q(tq, kk), 4)}, {c}')
    if ser:
        inter = [mf[3 * n:3 * n + 3] for n in range(8)]
        dma_tile(a, cfg, SV, lambda n: VOFFV + (n & 1), S_VOFF, S_VSLOT, nt[1], inter)
    elif prefetch:
        inter = [mf[3 * n:3 * n + 3] for n in range(8)]
        dma_tile(a, cfg, SK, lambda n: VOFFK + (n & 3), S_KOFF, S_KSLOT, nt[0], inter)
    else:
        for s in mf: a(s)
    if cfg.compute:
        a('s_nop 2')
        a.label(f'SM_{tag}')
        for tq in range(3):
            A, B = T0, T0 + 4
            m = vr(MREF + tq)
            for r in range(4): a(f'v_fma_f32 {vr(A + r)}, {vr(S(0, tq) + r)}, {sr(S_C)}, -{m}')
            for r in range(4): a(f'v_fma_f32 {vr(B + r)}, {vr(S(1, tq) + r)}, {sr(S_C)}, -{m}')
            for r in range(4): a(f'v_exp_f32 {vr(A + r)}, {vr(A + r)}')
            for r in range(4): a(f'v_exp_f32 {vr(B + r)}, {vr(B + r)}')
            a(f'v_cvt_pk_bf16_f32 {vr(P(tq))}, {vr(A)}, {vr(A + 1)}')
            a(f'v_cvt_pk_bf16_f32 {vr(P(tq) + 1)}, {vr(A + 2)}, {vr(A + 3)}')
            a(f'v_add_f32 {vr(A)}, {vr(A)}, {vr(A + 1)}')
            a(f'v_add_f32 {vr(A + 2)}, {vr(A + 2)}, {vr(A + 3)}')
            a(f'v_cvt_pk_bf16_f32 {vr(P(tq) + 2)}, {vr(B)}, {vr(B + 1)}')
            a(f'v_cvt_pk_bf16_f32 {vr(P(tq) + 3)}, {vr(B + 2)}, {vr(B + 3)}')
            a(f'v_add_f32 {vr(B)}, {vr(B)}, {vr(B + 1)}')
            a(f'v_add_f32 {vr(B + 2)}, {vr(B + 2)}, {vr(B + 3)}')
            a(f'v_add_f32 {vr(A)}, {vr(A)}, {vr(A + 2)}')
            a(f'v_add_f32 {vr(B)}, {vr(B)}, {vr(B + 2)}')
            a(f'v_add_f32 {vr(LT + tq)}, {vr(A)}, {vr(B)}')
        a(f'v_max3_f32 {vr(TMP)}, {vr(LT)}, {vr(LT + 1)}, {vr(LT + 2)}')
        a(f'v_cmp_lt_f32 vcc, {sr(S_THR)}, {vr(TMP)}')
        a(f's_cbranch_vccnz SLOW_{tag}')
        a(f's_mov_b32 {sr(S_THR)}, 0x43800000')
        for tq in range(3): a(f'v_add_f32 {vr(LSUM + tq)}, {vr(LSUM + tq)}, {vr(LT + tq)}')
    a(f's_waitcnt vmcnt({8 if (prefetch and not ser) else 0})')
    for td in range(8):
        a(f'ds_read_b64_tr_b16 {vr(VF(td), 2)}, {vr(VADDR + td)}')
        a(f'ds_read_b64_tr_b16 {vr(VF(td) + 2, 2)}, {vr(VADDR + td)} offset:4096')
    a('s_waitcnt lgkmcnt(0)')
    mf = []
    if cfg.compute:
        for td in range(8):
            for tq in range(3):
                mf.append(f'v_mfma_f32_16x16x32_bf16 {vr(O(td, tq), 4)}, {vr(VF(td), 4)}, {vr(P(tq), 4)}, {vr(O(td, tq), 4)}')
    if prefetch and ser:
        inter = [mf[3 * n:3 * n + 3] for n in range(8)]
        dma_tile(a, cfg, SK, lambda n: VOFFK + (n & 3), S_KOFF, S_KSLOT, nt[0], inter)
    elif prefetch:
        inter = [mf[3 * n:3 * n + 3] for n in range(8)]
        dma_tile(a, cfg, SV, lambda n: VOFFV + (n & 1), S_VOFF, S_VSLOT, nt[1], inter)
    else:
        for s in mf: a(s)

def slow(a, cfg, tag):
    a.label(f'SLOW_{tag}')
    for tq in range(3):
        mx = T0 + tq
        s0, s1 = S(0, tq), S(1, tq)
        a(f'v_max3_f32 {vr(mx)}, {vr(s0)}, {vr(s0 + 1)}, {vr(s0 + 2)}')
        a(f'v_max3_f32 {vr(mx)}, {vr(mx)}, {vr(s0 + 3)}, {vr(s1)}')
        a(f'v_max3_f32 {vr(mx)}, {vr(mx)}, {vr(s1 + 1)}, {vr(s1 + 2)}')
        a(f'v_max_f32 {vr(mx)}, {vr(mx)}, {vr(s1 + 3)}')
    for tq in range(3):
        xlane_reduce(a, 'v_max_f32', T0 + tq, TMP)
    for tq in range(3):
        mx, al = T0 + tq, T0 + 4 + tq
        a(f'v_mul_f32 {vr(mx)}, {sr(S_C)}, {vr(mx)}')
        a(f'v_max_f32 {vr(mx)}, {vr(mx)}, {vr(MREF + tq)}')
        a(f'v_sub_f32 {vr(al)}, {vr(MREF + tq)}, {vr(mx)}')
        a(f'v_exp_f32 {vr(al)}, {vr(al)}')
        a(f'v_mov_b32 {vr(MREF + tq)}, {vr(mx)}')
        a(f'v_mul_f32 {vr(LSUM + tq)}, {vr(LSUM + tq)}, {vr(al)}')
        for td in range(8):
            for r in range(4):
                a(f'v_mul_f32 {vr(O(td, tq) + r)}, {vr(O(td, tq) + r)}, {vr(al)}')
    a(f's_mov_b32 {sr(S_THR)}, 0x7f800000')
    a(f's_branch SM_{tag}')

def attn_kernel(a, cfg):
    K = cfg.k1name
    a.L.append(f'.globl {K}')
    a.L.append('.p2align 8')
    a.L.append(f'.type {K},@function')
    a.label(K)
    a('s_cmp_ge_u32 s2, 512')
    a('s_cbranch_scc1 K1_END')
    stamp_init(a, cfg)
    stamp(a, cfg, 0)
    if cfg.codepf:
        a('s_getpc_b64 s[56:57]')
        a('v_and_b32 v1, 63, v0')
        a('v_lshlrev_b32 v1, 7, v1')
        for i in range(cfg.codepf):
            a(f'global_load_dword v255, v1, s[56:57]')
            if i + 1 < cfg.codepf:
                a('s_add_u32 s56, s56, 8192')
                a('s_addc_u32 s57, s57, 0')
    a('s_load_dwordx8 s[36:43], s[0:1], 0')
    a('s_load_dwordx8 s[44:51], s[0:1], 40')
    a('s_load_dwordx4 s[68:71], s[0:1], 88')
    a('s_load_dwordx2 s[72:73], s[0:1], 32')
    a('s_load_dwordx2 s[74:75], s[0:1], 72')
    a('v_lshrrev_b32 v1, 6, v0')
    a('v_and_b32 v0, 63, v0')
    a('s_and_b32 s34, s2, 7')
    a('s_lshr_b32 s35, s2, 3')
    if cfg.typemode == 0:
        a(f's_lshr_b32 {sr(S_ISB)}, s35, 5')
        a('s_and_b32 s35, s35, 31')
    else:
        a(f's_and_b32 {sr(S_ISB)}, s35, 1')
        a('s_lshr_b32 s35, s35, 1')
    if cfg.swapab:
        a(f's_xor_b32 {sr(S_ISB)}, {sr(S_ISB)}, 1')
    if cfg.onlytype >= 0:
        a(f's_cmp_lg_u32 {sr(S_ISB)}, {cfg.onlytype}')
        a('s_cbranch_scc1 K1_END')
    a(f'v_readfirstlane_b32 {sr(S_W)}, v1')
    a(f's_lshr_b32 {sr(S_B)}, s35, 2')
    a('s_and_b32 s35, s35, 3')
    a('s_lshl_b32 s54, s34, 2')
    a(f's_add_u32 {sr(S_H)}, s54, s35')
    a(f's_lshl_b32 s54, {sr(S_B)}, 3')
    a('s_add_u32 s54, s54, s34')
    a(f's_lshl_b32 s55, {sr(S_B)}, 5')
    a(f's_add_u32 s55, s55, {sr(S_H)}')
    a(f's_cmp_eq_u32 {sr(S_ISB)}, 1')
    a('s_cselect_b32 s54, s55, s54')
    a('s_waitcnt lgkmcnt(0)')
    a('s_cselect_b64 s[36:37], s[44:45], s[36:37]')
    a('s_cselect_b64 s[38:39], s[46:47], s[38:39]')
    a('s_cselect_b64 s[40:41], s[48:49], s[40:41]')
    a('s_cselect_b64 s[42:43], s[50:51], s[42:43]')
    if cfg.inter:
        a('s_lshr_b32 s55, s54, 13')
        a('s_lshl_b32 s54, s54, 19')
        a(f's_lshl_b32 s56, {sr(S_W)}, 13')
        a('s_add_u32 s54, s54, s56')
    else:
        a('s_lshl_b32 s54, s54, 2')
        a(f's_add_u32 s54, s54, {sr(S_W)}')
        a('s_lshr_b32 s55, s54, 15')
        a('s_lshl_b32 s54, s54, 17')
    a(f's_add_u32 s{SK}, s38, s54')
    a(f's_addc_u32 s{SK+1}, s39, s55')
    a(f's_mov_b32 s{SK+2}, {0x80000 - 3 * 8192 if cfg.inter else 0x20000}')
    a(f's_mov_b32 s{SK+3}, 0x20000')
    a(f's_add_u32 s{SV}, s40, s54')
    a(f's_addc_u32 s{SV+1}, s41, s55')
    a(f's_mov_b32 s{SV+2}, {0x80000 - 3 * 8192 if cfg.inter else 0x20000}')
    a(f's_mov_b32 s{SV+3}, 0x20000')
    a(f's_mul_i32 s54, {sr(S_B)}, 49152')
    a(f's_lshl_b32 s55, {sr(S_W)}, 8')
    a('s_add_u32 s54, s54, s55')
    a(f's_add_u32 s{SX}, s36, s54')
    a(f's_addc_u32 s{SX+1}, s37, 0')
    a(f's_sub_u32 s{SX+2}, 393216, s54')
    a(f's_mov_b32 s{SX+3}, 0x20000')
    a(f's_lshl_b32 s54, {sr(S_W)}, 20')
    a(f's_lshl_b32 s55, {sr(S_H)}, 8')
    a('s_add_u32 s54, s54, s55')
    a(f's_add_u32 s{SWQ}, s42, s54')
    a(f's_addc_u32 s{SWQ+1}, s43, 0')
    a(f's_sub_u32 s{SWQ+2}, 4194304, s54')
    a(f's_mov_b32 s{SWQ+3}, 0x20000')
    a(f's_lshl_b32 {sr(S_KSLOT)}, {sr(S_W)}, 13')
    a(f's_add_u32 {sr(S_VSLOT)}, {sr(S_KSLOT)}, 32768')
    a(f's_lshl_b32 {sr(S_SCR)}, {sr(S_W)}, 12')
    a(f's_add_u32 {sr(S_SCR)}, {sr(S_SCR)}, 65536')
    a('v_lshrrev_b32 v1, 4, v0')
    a('v_and_b32 v2, 15, v0')
    a('v_xor_b32 v3, v2, v1')
    for n, hk in enumerate([0, 3, 2, 1]):
        a(f'v_xor_b32 {vr(VOFFK + n)}, {hk << 2}, v3')
        a(f'v_lshlrev_b32 {vr(VOFFK + n)}, 4, {vr(VOFFK + n)}')
        a(f'v_lshl_add_u32 {vr(VOFFK + n)}, v1, 8, {vr(VOFFK + n)}')
    RAW = [10, 42, 184, 216]
    XF = 74
    TT = 248
    XA = 86
    XOFF = O0
    WQOFF = O0 + 4
    a('v_mul_u32_u24 v3, 768, v1')
    for n in range(4): a(f'v_add_u32 {vr(XOFF + n)}, {vr(VOFFK + n)}, v3')
    a(f'v_lshlrev_b32 {vr(WQOFF)}, 16, v1')
    a(f'v_lshl_add_u32 {vr(WQOFF)}, v2, 4, {vr(WQOFF)}')
    if not cfg.noprol:
        for n in range(12):
            if n < 8: a(f's_add_u32 m0, {sr(S_VSLOT)}, {n * 1024}')
            else: a(f's_add_u32 m0, {sr(S_SCR)}, {(n - 8) * 1024}')
            a(f's_mov_b32 {sr(S_T)}, {n * 4096}')
            a(f'buffer_load_dwordx4 {vr(XOFF + (n & 3))}, {sr(SX, 4)}, {sr(S_T)} offen lds')
        for ks in range(4):
            for n in range(8):
                a(f's_mov_b32 {sr(S_T)}, {(32 * ks + n) * 8192}')
                a(f'buffer_load_dwordx4 {vr(RAW[ks] + 4 * n, 4)}, {vr(WQOFF)}, {sr(SWQ, 4)}, {sr(S_T)} offen')
    if cfg.rot:
        a(f's_and_b32 s54, s2, 7')
        a(f's_cmp_eq_u32 {sr(S_ISB)}, 1')
        a(f's_cselect_b32 s54, {sr(S_H)}, s54')
        a(f's_mul_i32 s54, s54, 5')
        a(f's_mul_i32 s55, {sr(S_B)}, 3')
        a('s_add_u32 s54, s54, s55')
        a(f's_mul_i32 s55, {sr(S_W)}, 7')
        a('s_add_u32 s54, s54, s55')
        a('s_and_b32 s54, s54, 15')
        a(f's_lshl_b32 {sr(S_KOFF)}, s54, {15 if cfg.inter else 13}')
    else:
        a(f's_mov_b32 {sr(S_KOFF)}, 0')
    a(f's_mov_b32 {sr(S_VOFF)}, {sr(S_KOFF)}')
    def k0(nt, ser): dma_tile(a, cfg, SK, lambda n: VOFFK + (n & 3), S_KOFF, S_KSLOT, nt[0])
    def v0_(nt, ser):
        if not ser: dma_tile(a, cfg, SV, lambda n: VOFFV + (n & 1), S_VOFF, S_VSLOT, nt[1])
    def ab(fn, tag):
        if cfg.ntA == cfg.ntB and cfg.serA == cfg.serB: fn(cfg.ntA, cfg.serA)
        else:
            a(f's_cmp_eq_u32 {sr(S_ISB)}, 1')
            a(f's_cbranch_scc1 {tag}_B')
            fn(cfg.ntA, cfg.serA)
            a(f's_branch {tag}_E')
            a.label(f'{tag}_B')
            fn(cfg.ntB, cfg.serB)
            a.label(f'{tag}_E')
    ab(k0, 'K0')
    for p in range(2):
        a(f'v_add_u32 v3, {4 * p}, v1')
        a('v_lshlrev_b32 v3, 1, v3')
        a('v_xor_b32 v3, v2, v3')
        a('v_lshlrev_b32 v3, 4, v3')
        a(f'v_lshl_add_u32 {vr(VOFFV + p)}, v1, 8, v3')
    a('v_and_b32 v3, 4, v2')
    a('v_lshlrev_b32 v3, 1, v3')
    a('v_xor_b32 v3, v2, v3')
    a(f'v_xor_b32 {vr(XA)}, v1, v3')
    a(f'v_lshlrev_b32 {vr(XA)}, 4, {vr(XA)}')
    a(f'v_lshl_add_u32 {vr(XA)}, v2, 8, {vr(XA)}')
    a(f's_mov_b32 {sr(S_C)}, 0x3e0293ee')
    a(f's_mov_b32 {sr(S_THR)}, 0x43800000')
    a(f's_mov_b32 {sr(S_SELLO)}, 0x05040100')
    a(f's_mov_b32 {sr(S_SELHI)}, 0x07060302')
    def xread(ks):
        a(f'v_xor_b32 v3, {ks << 6}, {vr(XA)}')
        a(f'v_add_u32 v87, {sr(S_VSLOT)}, v3')
        a(f'v_add_u32 v3, {sr(S_SCR)}, v3')
        a(f'ds_read_b128 {vr(XF, 4)}, v87')
        a(f'ds_read_b128 {vr(XF + 4, 4)}, v87 offset:4096')
        a(f'ds_read_b128 {vr(XF + 8, 4)}, v3')
    def qproj(ks):
        Rb = RAW[ks]
        def perms(e, T):
            m, p = e >> 1, e & 1
            sel = S_SELHI if p else S_SELLO
            for q4 in range(4):
                a(f'v_perm_b32 {vr(T + q4)}, {vr(Rb + 4 * (2 * q4 + 1) + m)}, {vr(Rb + 4 * (2 * q4) + m)}, {sr(sel)}')
        def mfmas(e, T):
            for tq in range(3):
                c = '0' if ks == 0 else vr(O(e, tq), 4)
                a(f'v_mfma_f32_16x16x32_bf16 {vr(O(e, tq), 4)}, {vr(T, 4)}, {vr(XF + 4 * tq, 4)}, {c}')
        Ts = [TT, TT + 4]
        xread(ks)
        perms(0, Ts[0])
        for e in range(8):
            if e < 7: perms(e + 1, Ts[(e + 1) & 1])
            else: a('s_nop 1')
            if e == 0: a('s_waitcnt lgkmcnt(0)')
            mfmas(e, Ts[e & 1])
    def prol_rest():
        a('s_waitcnt vmcnt(32)')
        stamp(a, cfg, 1)
        qproj(0)
        a('s_waitcnt vmcnt(24)')
        qproj(1)
        a('s_waitcnt vmcnt(16)')
        qproj(2)
        a('s_waitcnt vmcnt(8)')
        qproj(3)
        stamp(a, cfg, 2)
        a('v_lshlrev_b32 v1, 4, v0')
        a('v_add_u32 v3, 65536, v1')
        a('s_nop 5')
        def reg_u(w, u):
            if u < 8: return ('v1', VSLOT(w) + u * 1024)
            return ('v3', w * 4096 + (u - 8) * 1024)
        RB = 10
        for w in range(4):
            if w < 3:
                a(f's_cmp_eq_u32 {sr(S_W)}, {w}')
                a(f's_cbranch_scc0 QR_{w + 1}')
            for rhos in ([1, 2], [3]):
                for k, rho in enumerate(rhos):
                    dst = (w + rho) & 3
                    for s in range(2):
                        for tq in range(3):
                            b_, off = reg_u(w, k * 6 + s * 3 + tq)
                            a(f'ds_write_b128 {b_}, {vr(O(2 * dst + s, tq), 4)} offset:{off}')
                a('s_waitcnt lgkmcnt(0)')
                a('s_barrier')
                if rhos[0] == 1: stamp(a, cfg, 6)
                for k, rho in enumerate(rhos):
                    src = (w - rho) & 3
                    for s in range(2):
                        for tq in range(3):
                            b_, off = reg_u(src, k * 6 + s * 3 + tq)
                            a(f'ds_read_b128 {vr(RB + (k * 6 + s * 3 + tq) * 4, 4)}, {b_} offset:{off}')
                for k, rho in enumerate(rhos):
                    a(f's_waitcnt lgkmcnt({6 * (len(rhos) - 1 - k)})')
                    for s in range(2):
                        for tq in range(3):
                            for r in range(4):
                                o = O(2 * w + s, tq) + r
                                a(f'v_add_f32 {vr(o)}, {vr(o)}, {vr(RB + (k * 6 + s * 3 + tq) * 4 + r)}')
                if rhos[0] == 1: a('s_barrier')
            for tq in range(3):
                for r in range(4):
                    a(f'v_cvt_pk_bf16_f32 {vr(RB + 4 * tq + r)}, {vr(O(2 * w, tq) + r)}, {vr(O(2 * w + 1, tq) + r)}')
            for tq in range(3):
                for r in range(4):
                    a(f'ds_write_b32 v3, {vr(RB + 4 * tq + r)} offset:{tq * 4096 + r * 1024 + w * 4}')
            if w < 3:
                a('s_branch QR_END')
                a.label(f'QR_{w + 1}')
        a.label('QR_END')
        a('s_waitcnt lgkmcnt(0)')
        a('s_barrier')
        for tq in range(3):
            for kk in range(4):
                a(f'ds_read_b128 {vr(Q(tq, kk), 4)}, v3 offset:{tq * 4096 + kk * 1024}')
    if not cfg.noprol: prol_rest()
    ab(v0_, 'V0')
    a('v_lshrrev_b32 v1, 4, v0')
    a('v_and_b32 v2, 15, v0')
    a('v_and_b32 v3, 4, v2')
    a('v_lshlrev_b32 v3, 1, v3')
    a('v_xor_b32 v3, v2, v3')
    a(f'v_lshlrev_b32 {vr(TMP)}, 2, v1')
    a(f'v_xor_b32 {vr(TMP)}, {vr(TMP)}, v3')
    a(f'v_lshlrev_b32 {vr(TMP)}, 4, {vr(TMP)}')
    a(f'v_lshl_add_u32 {vr(TMP)}, v2, 8, {vr(TMP)}')
    a(f'v_add_u32 {vr(KADDR)}, {sr(S_KSLOT)}, {vr(TMP)}')
    for kk in range(1, 4): a(f'v_xor_b32 {vr(KADDR + kk)}, {kk << 4}, {vr(KADDR)}')
    a('v_lshrrev_b32 v3, 2, v2')
    a('v_lshl_add_u32 v3, v1, 2, v3')
    a(f'v_and_b32 {vr(TMP)}, 7, v3')
    a(f'v_lshlrev_b32 {vr(TMP)}, 5, {vr(TMP)}')
    a(f'v_lshl_add_u32 {vr(TMP)}, v3, 8, {vr(TMP)}')
    a('v_and_b32 v3, 3, v2')
    a(f'v_lshl_add_u32 {vr(TMP)}, v3, 3, {vr(TMP)}')
    a(f'v_add_u32 {vr(VADDR)}, {sr(S_VSLOT)}, {vr(TMP)}')
    for td in range(1, 8): a(f'v_xor_b32 {vr(VADDR + td)}, {td << 5}, {vr(VADDR)}')
    for r in range(96): a(f'v_mov_b32 {vr(O0 + r)}, 0')
    for tq in range(3):
        a(f'v_mov_b32 {vr(MREF + tq)}, 0xff800000')
        a(f'v_mov_b32 {vr(LSUM + tq)}, 0')
    a('s_waitcnt lgkmcnt(0)')
    stamp(a, cfg, 3)
    a(f's_mov_b32 {sr(S_CNT)}, 15')
    same = (cfg.ntA == cfg.ntB and cfg.serA == cfg.serB)
    variants = [('A', cfg.ntA, cfg.serA)] if same else [('A', cfg.ntA, cfg.serA), ('B', cfg.ntB, cfg.serB)]
    if len(variants) > 1:
        a(f's_cmp_eq_u32 {sr(S_ISB)}, 1')
        a('s_cbranch_scc1 LOOP_B')
    for v, nt, ser in variants:
        a.L.append('.p2align 3')
        a.label(f'LOOP_{v}')
        body(a, cfg, f'{v}L', True, nt, ser)
        a(f's_sub_u32 {sr(S_CNT)}, {sr(S_CNT)}, 1')
        a(f's_cmp_lg_u32 {sr(S_CNT)}, 0')
        a(f's_cbranch_scc1 LOOP_{v}')
        body(a, cfg, f'{v}F', False, nt, ser)
        if v != variants[-1][0]: a('s_branch LAST')
    a.label('LAST')
    stamp(a, cfg, 4)
    def relayout():
        a(f's_cmp_eq_u32 {sr(S_ISB)}, 1')
        a('s_cbranch_scc1 RL_END')
        a('s_and_b32 s54, s2, 255')
        a('s_lshr_b32 s55, s54, 7')
        a('s_and_b32 s54, s54, 127')
        a('s_cmp_eq_u32 s55, 1')
        a('s_cselect_b64 s[72:73], s[74:75], s[72:73]')
        a('s_lshl_b32 s56, s54, 15')
        a(f's_lshl_b32 s57, {sr(S_W)}, 8')
        a('s_add_u32 s56, s56, s57')
        a(f's_add_u32 s{SWQ}, s72, s56')
        a(f's_addc_u32 s{SWQ+1}, s73, 0')
        a(f's_sub_u32 s{SWQ+2}, 4194304, s56')
        a(f's_mov_b32 s{SWQ+3}, 0x20000')
        a('v_lshrrev_b32 v1, 4, v0')
        a('v_mul_u32_u24 v1, 768, v1')
        a(f'v_add_u32 v2, {vr(VOFFV)}, v1')
        a(f'v_add_u32 v3, {vr(VOFFV + 1)}, v1')
        for n in range(8):
            a(f's_add_u32 m0, {sr(S_VSLOT)}, {n * 1024}')
            a(f's_mov_b32 {sr(S_T)}, {n * 4096}')
            a(f'buffer_load_dwordx4 {"v3" if n & 1 else "v2"}, {sr(SWQ, 4)}, {sr(S_T)} offen lds')
        a('s_lshl_b32 s55, s55, 5')
        a(f's_lshl_b32 s57, {sr(S_W)}, 3')
        a('s_add_u32 s55, s55, s57')
        a('s_lshl_b32 s55, s55, 7')
        a('s_add_u32 s55, s55, s54')
        a('s_lshl_b32 s55, s55, 10')
        a('s_add_u32 s55, s55, 0x800000')
        a(f's_add_u32 s{SX}, s70, s55')
        a(f's_addc_u32 s{SX+1}, s71, 0')
        a(f's_mov_b32 s{SX+2}, {7 * 131072 + 1024}')
        a(f's_mov_b32 s{SX+3}, 0x20000')
        a('v_lshlrev_b32 v1, 4, v0')
        a('s_waitcnt vmcnt(0)')
        for td in range(8):
            a(f'ds_read_b64_tr_b16 {vr(VF(td), 2)}, {vr(VADDR + td)}')
            a(f'ds_read_b64_tr_b16 {vr(VF(td) + 2, 2)}, {vr(VADDR + td)} offset:4096')
        a('s_waitcnt lgkmcnt(0)')
        for td in range(8):
            a(f's_mov_b32 {sr(S_T)}, {td * 131072}')
            a(f'buffer_store_dwordx4 {vr(VF(td), 4)}, v1, {sr(SX, 4)}, {sr(S_T)} offen')
        a.label('RL_END')
    if not cfg.noepi: relayout()
    def epi():
        for tq in range(3): xlane_reduce(a, 'v_add_f32', LSUM + tq, TMP)
        a('v_lshlrev_b32 v1, 4, v0')
        a('v_add_u32 v3, 65536, v1')
        a('v_lshlrev_b32 v2, 2, v0')
        a('v_add_u32 v2, 65536, v2')
        a(f's_lshl_b32 s54, {sr(S_ISB)}, 3')
        a(f's_add_u32 s54, s54, {sr(S_B)}')
        a('s_mul_i32 s54, s54, 393216')
        a(f's_lshl_b32 s55, {sr(S_H)}, 2')
        a(f's_add_u32 s55, s55, {sr(S_W)}')
        a('s_lshl_b32 s55, s55, 10')
        a('s_add_u32 s54, s54, s55')
        a(f's_add_u32 s{SX}, s70, s54')
        a(f's_addc_u32 s{SX+1}, s71, 0')
        a(f's_mov_b32 s{SX+2}, {2 * 131072 + 1024}')
        a(f's_mov_b32 s{SX+3}, 0x20000')
        def lds_u(w, u):
            if u < 8: return ('v1', KSLOT(w) + u * 1024)
            if u < 16: return ('v1', VSLOT(w) + (u - 8) * 1024)
            return ('v3', w * 4096 + (u - 16) * 1024)
        for w in range(4):
            if w < 3:
                a(f's_cmp_eq_u32 {sr(S_W)}, {w}')
                a(f's_cbranch_scc0 EP_{w + 1}')
            for k in range(3):
                a(f'ds_write_b32 v2, {vr(MREF + k)} offset:{w * 4096 + 2048 + k * 256}')
                a(f'ds_write_b32 v2, {vr(LSUM + k)} offset:{w * 4096 + 2048 + (3 + k) * 256}')
            for rho in range(1, 4):
                dst = (w + rho) & 3
                for s in range(2):
                    for tq in range(3):
                        b_, off = lds_u(w, (rho - 1) * 6 + s * 3 + tq)
                        a(f'ds_write_b128 {b_}, {vr(O(2 * dst + s, tq), 4)} offset:{off}')
            a('s_waitcnt lgkmcnt(0)')
            a('s_barrier')
            for w2 in range(4):
                for k in range(6):
                    a(f'ds_read_b32 {vr(F0 + w2 * 6 + k)}, v2 offset:{w2 * 4096 + 2048 + k * 256}')
            def buf(idx): return Q0 + idx * 4 if idx < 12 else S0 + (idx - 12) * 4
            idx = 0; where = {}
            for rho in range(1, 4):
                src = (w - rho) & 3
                for s in range(2):
                    for tq in range(3):
                        b_, off = lds_u(src, (rho - 1) * 6 + s * 3 + tq)
                        a(f'ds_read_b128 {vr(buf(idx), 4)}, {b_} offset:{off}')
                        where[(src, s, tq)] = buf(idx); idx += 1
            a('s_waitcnt lgkmcnt(0)')
            for tq in range(3):
                M = T0 + tq
                m = lambda w2: F0 + w2 * 6 + tq
                l = lambda w2: F0 + w2 * 6 + 3 + tq
                a(f'v_max3_f32 {vr(M)}, {vr(m(0))}, {vr(m(1))}, {vr(m(2))}')
                a(f'v_max_f32 {vr(M)}, {vr(M)}, {vr(m(3))}')
                for w2 in range(4): a(f'v_sub_f32 {vr(m(w2))}, {vr(m(w2))}, {vr(M)}')
                for w2 in range(4): a(f'v_exp_f32 {vr(m(w2))}, {vr(m(w2))}')
                a('s_nop 0')
                a(f'v_mul_f32 {vr(M)}, {vr(m(0))}, {vr(l(0))}')
                for w2 in range(1, 4): a(f'v_fma_f32 {vr(M)}, {vr(m(w2))}, {vr(l(w2))}, {vr(M)}')
                a(f'v_rcp_f32 {vr(M)}, {vr(M)}')
                a('s_nop 0')
                for w2 in range(4): a(f'v_mul_f32 {vr(m(w2))}, {vr(m(w2))}, {vr(M)}')
                for s in range(2):
                    o = O(2 * w + s, tq)
                    for r in range(4): a(f'v_mul_f32 {vr(o + r)}, {vr(o + r)}, {vr(m(w))}')
                    for w2 in range(4):
                        if w2 == w: continue
                        for r in range(4):
                            a(f'v_fma_f32 {vr(o + r)}, {vr(where[(w2, s, tq)] + r)}, {vr(m(w2))}, {vr(o + r)}')
                d = P(tq)
                a(f'v_cvt_pk_bf16_f32 {vr(d)}, {vr(O(2 * w, tq))}, {vr(O(2 * w, tq) + 1)}')
                a(f'v_cvt_pk_bf16_f32 {vr(d + 1)}, {vr(O(2 * w, tq) + 2)}, {vr(O(2 * w, tq) + 3)}')
                a(f'v_cvt_pk_bf16_f32 {vr(d + 2)}, {vr(O(2 * w + 1, tq))}, {vr(O(2 * w + 1, tq) + 1)}')
                a(f'v_cvt_pk_bf16_f32 {vr(d + 3)}, {vr(O(2 * w + 1, tq) + 2)}, {vr(O(2 * w + 1, tq) + 3)}')
                a(f's_mov_b32 {sr(S_T)}, {tq * 131072}')
                a(f'buffer_store_dwordx4 {vr(d, 4)}, v1, {sr(SX, 4)}, {sr(S_T)} offen')
            if w < 3:
                a('s_branch EP_END')
                a.label(f'EP_{w + 1}')
        a.label('EP_END')
    if not cfg.noepi: epi()
    if cfg.stamps: stamp_store(a, cfg, 70, 0, sr(S_W), 'K1_END')
    a.label('K1_END')
    a('s_endpgm')
    if cfg.compute:
        for v, nt, ser in variants:
            slow(a, cfg, f'{v}L'); slow(a, cfg, f'{v}F')

def proj_kernel(a, cfg):
    K = cfg.k2name
    a.L.append(f'.globl {K}')
    a.L.append('.p2align 8')
    a.L.append(f'.type {K},@function')
    a.label(K)
    a('s_cmp_ge_u32 s2, 256')
    a('s_cbranch_scc1 K2_END')
    stamp_init(a, cfg)
    stamp(a, cfg, 0)
    a('s_load_dwordx2 s[40:41], s[0:1], 80')
    a('s_load_dwordx2 s[70:71], s[0:1], 96')
    a('v_lshrrev_b32 v1, 6, v0')
    a('v_and_b32 v0, 63, v0')
    a('s_and_b32 s34, s2, 7')
    a('s_lshr_b32 s35, s2, 3')
    a(f'v_readfirstlane_b32 {sr(S_W)}, v1')
    a('s_lshr_b32 s23, s34, 2')
    a('s_lshr_b32 s21, s34, 1')
    a('s_and_b32 s21, s21, 1')
    a('s_lshl_b32 s21, s21, 2')
    a('s_lshr_b32 s54, s35, 3')
    a('s_add_u32 s21, s21, s54')
    a('s_and_b32 s22, s34, 1')
    a('s_lshl_b32 s22, s22, 3')
    a('s_and_b32 s55, s35, 7')
    a('s_add_u32 s22, s22, s55')
    a('s_lshl_b32 s24, s55, 1')
    a('s_and_b32 s56, s54, 1')
    a('s_add_u32 s24, s24, s56')
    a('s_lshr_b32 s56, s54, 1')
    a('s_lshl_b32 s56, s56, 3')
    a('s_add_u32 s24, s24, s56')
    a('s_and_b32 s24, s24, 15')
    a('s_lshl_b32 s24, s24, 10')
    a('v_lshlrev_b32 v4, 4, v0')
    a('s_waitcnt lgkmcnt(0)')
    a('s_lshl_b32 s54, s23, 5')
    a('s_lshl_b32 s55, s22, 1')
    a('s_add_u32 s54, s54, s55')
    a('s_lshl_b32 s54, s54, 17')
    a(f's_lshl_b32 s55, {sr(S_W)}, 14')
    a('s_add_u32 s54, s54, s55')
    a('s_add_u32 s54, s54, 0x800000')
    a('s_add_u32 s4, s70, s54')
    a('s_addc_u32 s5, s71, 0')
    a(f's_mov_b32 s6, {131072 + 16384}')
    a('s_mov_b32 s7, 0x20000')
    a('s_lshl_b32 s54, s23, 3')
    a('s_add_u32 s54, s54, s21')
    a('s_mul_i32 s54, s54, 393216')
    a('s_add_u32 s54, s54, s55')
    a('s_add_u32 s8, s70, s54')
    a('s_addc_u32 s9, s71, 0')
    a(f's_mov_b32 s10, {2 * 131072 + 16384}')
    a('s_mov_b32 s11, 0x20000')
    ACC = 8
    RING = 32
    NR = cfg.k2ring
    def issue(s_):
        B = RING + (s_ % NR) * 20
        a(f'buffer_load_dwordx4 {vr(B, 4)}, v4, s[4:7], s24 offen')
        a('s_add_u32 s25, s24, 0x20000')
        a(f'buffer_load_dwordx4 {vr(B + 4, 4)}, v4, s[4:7], s25 offen')
        a(f'buffer_load_dwordx4 {vr(B + 8, 4)}, v4, s[8:11], s24 offen')
        a(f'buffer_load_dwordx4 {vr(B + 12, 4)}, v4, s[8:11], s25 offen')
        a('s_add_u32 s25, s24, 0x40000')
        a(f'buffer_load_dwordx4 {vr(B + 16, 4)}, v4, s[8:11], s25 offen')
        a('s_add_u32 s24, s24, 0x400')
        a('s_and_b32 s24, s24, 0x3fff')
    for s_ in range(NR): issue(s_)
    for s_ in range(16):
        left = min(15 - s_, NR - 1) * 5
        a(f's_waitcnt vmcnt({left})')
        B = RING + (s_ % NR) * 20
        for e in range(2):
            for tq in range(3):
                acc = ACC + (e * 3 + tq) * 4
                c = '0' if s_ == 0 else vr(acc, 4)
                a(f'v_mfma_f32_16x16x32_bf16 {vr(acc, 4)}, {vr(B + 4 * e, 4)}, {vr(B + 8 + 4 * tq, 4)}, {c}')
        if s_ + NR < 16: issue(s_ + NR)
    stamp(a, cfg, 4)
    a(f's_mul_i32 s54, {sr(S_W)}, 6144')
    a('v_add_u32 v7, s54, v4')
    a('s_nop 7')
    for t in range(6):
        a(f'ds_write_b128 v7, {vr(ACC + 4 * t, 4)} offset:{t * 1024}')
    a('s_waitcnt lgkmcnt(0)')
    a('s_barrier')
    a(f's_cmp_ge_u32 {sr(S_W)}, 6')
    a('s_cbranch_scc1 K2_X')
    a(f's_lshl_b32 s54, {sr(S_W)}, 10')
    a('v_add_u32 v7, s54, v4')
    for v in range(8):
        a(f'ds_read_b128 {vr(32 + 4 * v, 4)}, v7 offset:{v * 6144}')
    a(f's_cmp_ge_u32 {sr(S_W)}, 3')
    a('s_cselect_b32 s55, 1, 0')
    a('s_mul_i32 s56, s55, 3')
    a(f's_sub_u32 s56, {sr(S_W)}, s56')
    a('s_mul_i32 s54, s21, 48')
    a('s_lshl_b32 s56, s56, 4')
    a('s_add_u32 s54, s54, s56')
    a('s_lshl_b32 s54, s54, 11')
    a('s_lshl_b32 s56, s23, 10')
    a('s_add_u32 s54, s54, s56')
    a('s_lshl_b32 s56, s22, 6')
    a('s_add_u32 s54, s54, s56')
    a('s_lshl_b32 s55, s55, 5')
    a('s_add_u32 s54, s54, s55')
    a('v_and_b32 v2, 15, v0')
    a('v_lshrrev_b32 v1, 4, v0')
    a('v_lshlrev_b32 v2, 11, v2')
    a('v_lshl_add_u32 v2, v1, 3, v2')
    a('s_mov_b32 s12, s40')
    a('s_mov_b32 s13, s41')
    a('s_mov_b32 s14, 786432')
    a('s_mov_b32 s15, 0x20000')
    a('s_waitcnt lgkmcnt(0)')
    for st in (16, 8, 4):
        n = st // 4
        for v in range(n):
            for r in range(4):
                a(f'v_add_f32 {vr(32 + 4 * v + r)}, {vr(32 + 4 * v + r)}, {vr(32 + st + 4 * v + r)}')
    a('v_cvt_pk_bf16_f32 v32, v32, v33')
    a('v_cvt_pk_bf16_f32 v33, v34, v35')
    a('buffer_store_dwordx2 v[32:33], v2, s[12:15], s54 offen')
    a.label('K2_X')
    if cfg.stamps:
        stamp_store(a, cfg, 70, 512, sr(S_W), 'K2_END')
    a.label('K2_END')
    a('s_endpgm')

HDR = open('cdna_kernels/' + NAME + '.s.ref').read().split('; Override launch')[0]

def kd(name, vgpr, sgpr):
    return f'''.amdhsa_kernel {name}
  .amdhsa_next_free_vgpr {vgpr}
  .amdhsa_next_free_sgpr {sgpr}
  .amdhsa_accum_offset {((vgpr + 3) // 4) * 4}
  .amdhsa_group_segment_fixed_size 0
  .amdhsa_kernarg_size 104
  .amdhsa_user_sgpr_count 2
  .amdhsa_user_sgpr_kernarg_segment_ptr 1
  .amdhsa_system_sgpr_workgroup_id_x 1
.end_amdhsa_kernel
'''

def gen(cfg):
    a = Asm()
    cfg.k1name = 'attn_kernel'
    cfg.k2name = 'proj_kernel'
    out = HDR
    out += f'; @launch kernel={cfg.k1name} grid=(512,1,1) block=(256,1,1) lds=81920\n'
    if not cfg.only1: out += f'; @launch kernel={cfg.k2name} grid=(256,1,1) block=(512,1,1) lds=49152\n'
    out += '.amdgcn_target "amdgcn-amd-amdhsa--gfx950"\n.text\n'
    attn_kernel(a, cfg)
    if not cfg.only1: proj_kernel(a, cfg)
    out += a.text()
    out += '.section .rodata,"a"\n.p2align 6\n'
    out += kd(cfg.k1name, 256, 96)
    if not cfg.only1: out += '.p2align 6\n' + kd(cfg.k2name, ((32 + 20 * cfg.k2ring + 7) // 8) * 8 if cfg.k2ring >= 2 else 72, 96)
    return out

if __name__ == '__main__':
    ap = argparse.ArgumentParser()
    ap.add_argument('-o', default='cdna_kernels/' + NAME + '.s')
    ap.add_argument('--stamps', type=int, default=0)
    ap.add_argument('--compute', type=int, default=1)
    ap.add_argument('--ntA', default='')
    ap.add_argument('--ntB', default='')
    ap.add_argument('--rot', type=int, default=0)
    ap.add_argument('--typemode', type=int, default=0)
    ap.add_argument('--swapab', type=int, default=0)
    ap.add_argument('--only1', type=int, default=0)
    ap.add_argument('--k2ring', type=int, default=6)
    ap.add_argument('--serA', type=int, default=0)
    ap.add_argument('--serB', type=int, default=0)
    ap.add_argument('--codepf', type=int, default=0)
    ap.add_argument('--onlytype', type=int, default=-1)
    ap.add_argument('--inter', type=int, default=0)
    ap.add_argument('--noprol', type=int, default=0)
    ap.add_argument('--noepi', type=int, default=0)
    cfg = ap.parse_args()
    def pf(x):
        x = x.replace('def', '')
        return tuple(x.split(',')) if ',' in x else (x, x)
    cfg.ntA = pf(cfg.ntA); cfg.ntB = pf(cfg.ntB)
    open(cfg.o, 'w').write(gen(cfg))
    print('wrote', cfg.o)
```

```python
import sys, argparse

NAME = 'concat_heads__gqa_block_cached__mha_block_cached__near_ridge'

class Asm:
    def __init__(self): self.L = []
    def __call__(self, s): self.L.append('    ' + s)
    def label(self, s): self.L.append(s + ':')
    def c(self, s): self.L.append('    ; ' + s)
    def text(self): return '\n'.join(self.L) + '\n'

def vr(b, n=1): return f'v{b}' if n == 1 else f'v[{b}:{b+n-1}]'
def sr(b, n=1): return f's{b}' if n == 1 else f's[{b}:{b+n-1}]'

VOFFK = 4
VOFFV = 8
KADDR = 10
VADDR = 14
MREF = 22
LSUM = 25
LT = 28
TMP = 31
T0 = 32
Q0 = 40
O0 = 88
S0 = 184
P0 = 208
F0 = 220
def Q(tq, kk): return Q0 + (tq * 4 + kk) * 4
def O(td, tq): return O0 + (td * 3 + tq) * 4
def S(kt, tq): return S0 + (kt * 3 + tq) * 4
def P(tq): return P0 + tq * 4
def KF(kt, kk): return F0 + (kt * 4 + kk) * 4
def VF(td): return F0 + td * 4

SK, SV, SX, SWQ = 4, 8, 12, 16
S_W, S_B, S_H, S_ISB = 20, 21, 22, 23
S_KOFF, S_VOFF, S_CNT = 24, 25, 26
S_KSLOT, S_VSLOT, S_SCR = 27, 28, 29
S_C, S_THR, S_SELLO, S_SELHI = 30, 31, 32, 33
S_T = 34
S_G = 58
S_KQ = 60
S_RING = 61
S_RCHK = 64
S_BASE = 64
S_SEC = 62
S_DBG, S_WS = 68, 70
S_STAMP = 76

KSLOT = lambda w: w * 8192
VSLOT = lambda w: 32768 + w * 8192

WS_O = 0
WS_WOF = 8 << 20
WS_QX = 16 << 20
WS_PX = 20 << 20
WS_FLAG = 40 << 20
WS_ML = 32 << 20

def stamp(a, cfg, k):
    if cfg.stamps:
        a(f's_memrealtime {sr(S_STAMP + 2 * k, 2)}')
        a('s_waitcnt lgkmcnt(0)')

def stamp_init(a, cfg):
    if cfg.stamps:
        for k in range(16): a(f's_mov_b32 s{S_STAMP + k}, 0')

def stamp_store(a, cfg, wsreg, rowbase, wavereg, endlabel):
    a('s_waitcnt vmcnt(0)')
    stamp(a, cfg, 7)
    a(f's_cmp_lg_u32 {wavereg}, 0')
    a(f's_cbranch_scc1 {endlabel}')
    a(f's_add_u32 s12, s{wsreg}, {0x10000000 + rowbase * 64}')
    a(f's_addc_u32 s13, s{wsreg + 1}, 0')
    a('s_lshl_b32 s54, s2, 6')
    a('s_add_u32 s12, s12, s54')
    a('s_addc_u32 s13, s13, 0')
    a('s_mov_b32 s14, 64')
    a('s_mov_b32 s15, 0x20000')
    a(f's_getreg_b32 s{S_STAMP + 10}, hwreg(HW_REG_HW_ID)')
    a(f's_getreg_b32 s{S_STAMP + 11}, hwreg(HW_REG_XCC_ID)')
    a('v_mbcnt_lo_u32_b32 v0, -1, 0')
    a('v_mbcnt_hi_u32_b32 v0, -1, v0')
    a('v_lshlrev_b32 v1, 2, v0')
    a('v_mov_b32 v2, 0')
    for k in range(16):
        a(f'v_mov_b32 v3, s{S_STAMP + k}')
        a(f'v_cmp_eq_u32 vcc, {k}, v0')
        a('s_nop 1')
        a('v_cndmask_b32 v2, v2, v3, vcc')
    a('buffer_store_dword v2, v1, s[12:15], 0 offen')

def tl(a, cfg):
    if cfg.stamps >= 2:
        a('s_memrealtime s[92:93]')
        a('s_waitcnt lgkmcnt(0)')
        a('s_mov_b32 m0, s59')
        a('s_nop 0')
        a('v_writelane_b32 v252, s92, m0')
        a('s_add_u32 s59, s59, 1')

def fl(nt): return (' ' + nt.replace('+', ' ')) if nt else ''

def dma_tile(a, cfg, srd, voffs, soff, slot, nt, inter=None):
    f = fl(nt)
    for n in range(8):
        if n == 0:
            a(f's_mov_b32 m0, {sr(slot)}')
            a(f's_add_u32 {sr(S_T)}, {sr(soff)}, 0x1000')
        if n == 4:
            a(f's_add_u32 m0, {sr(slot)}, 0x1000')
            a('s_nop 0')
        so = sr(soff) if n < 4 else sr(S_T)
        a(f'buffer_load_dwordx4 {vr(voffs(n))}, {sr(srd, 4)}, {so} offen offset:{(n & 3) * 1024}{f} lds')
        if inter:
            for s in inter[n]: a(s)
    a(f's_add_u32 {sr(soff)}, {sr(soff)}, 0x8000')
    a(f's_and_b32 {sr(soff)}, {sr(soff)}, 0x7ffff')

def xlane_reduce(a, op, x, tmp):
    a(f'v_mov_b32 {vr(tmp)}, {vr(x)}')
    a('s_nop 1')
    a(f'v_permlane32_swap_b32 {vr(x)}, {vr(tmp)}')
    a('s_nop 1')
    a(f'{op} {vr(x)}, {vr(x)}, {vr(tmp)}')
    a(f'v_mov_b32 {vr(tmp)}, {vr(x)}')
    a('s_nop 1')
    a(f'v_permlane16_swap_b32 {vr(x)}, {vr(tmp)}')
    a('s_nop 1')
    a(f'{op} {vr(x)}, {vr(x)}, {vr(tmp)}')

def qk_mfmas():
    mf = []
    for kk in range(4):
        for tq in range(3):
            for kt in range(2):
                c = '0' if kk == 0 else vr(S(kt, tq), 4)
                mf.append(f'v_mfma_f32_16x16x32_bf16 {vr(S(kt, tq), 4)}, {vr(KF(kt, kk), 4)}, {vr(Q(tq, kk), 4)}, {c}')
    return mf

def pv_mfmas():
    return [f'v_mfma_f32_16x16x32_bf16 {vr(O(td, tq), 4)}, {vr(VF(td), 4)}, {vr(P(tq), 4)}, {vr(O(td, tq), 4)}'
            for td in range(8) for tq in range(3)]

def softmax(a, cfg, tag):
    a('s_nop 2')
    a.label(f'SM_{tag}')
    for tq in range(3):
        A, B = T0, T0 + 4
        m = vr(MREF + tq)
        for r in range(4): a(f'v_fma_f32 {vr(A + r)}, {vr(S(0, tq) + r)}, {sr(S_C)}, -{m}')
        for r in range(4): a(f'v_fma_f32 {vr(B + r)}, {vr(S(1, tq) + r)}, {sr(S_C)}, -{m}')
        for r in range(4): a(f'v_exp_f32 {vr(A + r)}, {vr(A + r)}')
        for r in range(4): a(f'v_exp_f32 {vr(B + r)}, {vr(B + r)}')
        a(f'v_cvt_pk_bf16_f32 {vr(P(tq))}, {vr(A)}, {vr(A + 1)}')
        a(f'v_cvt_pk_bf16_f32 {vr(P(tq) + 1)}, {vr(A + 2)}, {vr(A + 3)}')
        a(f'v_add_f32 {vr(A)}, {vr(A)}, {vr(A + 1)}')
        a(f'v_add_f32 {vr(A + 2)}, {vr(A + 2)}, {vr(A + 3)}')
        a(f'v_cvt_pk_bf16_f32 {vr(P(tq) + 2)}, {vr(B)}, {vr(B + 1)}')
        a(f'v_cvt_pk_bf16_f32 {vr(P(tq) + 3)}, {vr(B + 2)}, {vr(B + 3)}')
        a(f'v_add_f32 {vr(B)}, {vr(B)}, {vr(B + 1)}')
        a(f'v_add_f32 {vr(B + 2)}, {vr(B + 2)}, {vr(B + 3)}')
        a(f'v_add_f32 {vr(A)}, {vr(A)}, {vr(A + 2)}')
        a(f'v_add_f32 {vr(B)}, {vr(B)}, {vr(B + 2)}')
        a(f'v_add_f32 {vr(LT + tq)}, {vr(A)}, {vr(B)}')
    a(f'v_max3_f32 {vr(TMP)}, {vr(LT)}, {vr(LT + 1)}, {vr(LT + 2)}')
    a(f'v_cmp_lt_f32 vcc, {sr(S_THR)}, {vr(TMP)}')
    a(f's_cbranch_vccnz SLOW_{tag}')
    a(f's_mov_b32 {sr(S_THR)}, 0x43800000')
    for tq in range(3): a(f'v_add_f32 {vr(LSUM + tq)}, {vr(LSUM + tq)}, {vr(LT + tq)}')

def body_b(a, cfg, tag, prefetch, nt, mode):
    ser = (mode == 1)
    kdma = lambda inter=None: dma_tile(a, cfg, SK, lambda n: VOFFK + (n & 3), S_KOFF, S_KSLOT, nt[0], inter)
    vdma = lambda inter=None: dma_tile(a, cfg, SV, lambda n: VOFFV + (n & 1), S_VOFF, S_VSLOT, nt[1], inter)
    a(f's_waitcnt vmcnt({0 if ser else 8})')
    tl(a, cfg)
    for kt in range(2):
        for kk in range(4):
            a(f'ds_read_b128 {vr(KF(kt, kk), 4)}, {vr(KADDR + kk)} offset:{kt * 4096}')
    a('s_waitcnt lgkmcnt(0)')
    mf = qk_mfmas()
    inter = [mf[3 * n:3 * n + 3] for n in range(8)]
    if ser: vdma(inter)
    elif prefetch and mode in (0, 3): kdma(inter)
    else:
        for s_ in mf: a(s_)
    softmax(a, cfg, tag)
    if prefetch and mode == 2: kdma()
    a(f's_waitcnt vmcnt({8 if (prefetch and not ser) else 0})')
    tl(a, cfg)
    for td in range(8):
        a(f'ds_read_b64_tr_b16 {vr(VF(td), 2)}, {vr(VADDR + td)}')
        a(f'ds_read_b64_tr_b16 {vr(VF(td) + 2, 2)}, {vr(VADDR + td)} offset:4096')
    a('s_waitcnt lgkmcnt(0)')
    mf = pv_mfmas()
    inter = [mf[3 * n:3 * n + 3] for n in range(8)]
    if prefetch and ser: kdma(inter)
    elif prefetch and mode == 0: vdma(inter)
    else:
        for s_ in mf: a(s_)
        if prefetch and mode in (2, 3): vdma()

def a_dma(a, cfg, srd, voff, soff, ldsbase, nt):
    a(f's_mov_b32 m0, {sr(ldsbase)}')
    a('s_nop 0')
    for p in range(2):
        a(f'buffer_load_dwordx4 {vr(voff + p)}, {sr(srd, 4)}, {sr(soff)} offen offset:{p * 1024}{fl(nt)} lds')

def body_a(a, cfg, tag):
    nt = cfg.ntA
    a('s_waitcnt vmcnt(8)')
    a('s_barrier')
    tl(a, cfg)
    for kt in range(2):
        for kk in range(4):
            a(f'ds_read_b128 {vr(KF(kt, kk), 4)}, {vr(KADDR + kk)} offset:{kt * 4096}')
    a_dma(a, cfg, SK, VOFFK, S_KOFF, S_RING, nt[0])
    a(f's_add_u32 {sr(S_T)}, {sr(S_RING)}, 0x8000')
    a_dma(a, cfg, SV, VOFFV, S_KOFF, S_T, nt[1])
    a(f's_add_u32 {sr(S_KOFF)}, {sr(S_KOFF)}, 0x2000')
    a(f's_add_u32 {sr(S_RING)}, {sr(S_RING)}, 0x2000')
    a(f's_and_b32 {sr(S_RING)}, {sr(S_RING)}, 0x7fff')
    for kk in range(4):
        a(f'v_add_u32 {vr(KADDR + kk)}, 0x2000, {vr(KADDR + kk)}')
    for kk in range(4):
        a(f'v_and_b32 {vr(KADDR + kk)}, 0x7fff, {vr(KADDR + kk)}')
    a('s_waitcnt lgkmcnt(0)')
    for s_ in qk_mfmas(): a(s_)
    softmax(a, cfg, tag)
    for td in range(8):
        a(f'ds_read_b64_tr_b16 {vr(VF(td), 2)}, {vr(VADDR + td)} offset:32768')
        a(f'ds_read_b64_tr_b16 {vr(VF(td) + 2, 2)}, {vr(VADDR + td)} offset:{32768 + 4096}')
    for td in range(8):
        a(f'v_add_u32 {vr(VADDR + td)}, 0x2000, {vr(VADDR + td)}')
    for td in range(8):
        a(f'v_and_b32 {vr(VADDR + td)}, 0x7fff, {vr(VADDR + td)}')
    a('s_waitcnt lgkmcnt(0)')
    for s_ in pv_mfmas(): a(s_)

def slow(a, cfg, tag):
    a.label(f'SLOW_{tag}')
    for tq in range(3):
        mx = T0 + tq
        s0, s1 = S(0, tq), S(1, tq)
        a(f'v_max3_f32 {vr(mx)}, {vr(s0)}, {vr(s0 + 1)}, {vr(s0 + 2)}')
        a(f'v_max3_f32 {vr(mx)}, {vr(mx)}, {vr(s0 + 3)}, {vr(s1)}')
        a(f'v_max3_f32 {vr(mx)}, {vr(mx)}, {vr(s1 + 1)}, {vr(s1 + 2)}')
        a(f'v_max_f32 {vr(mx)}, {vr(mx)}, {vr(s1 + 3)}')
    for tq in range(3):
        xlane_reduce(a, 'v_max_f32', T0 + tq, TMP)
    for tq in range(3):
        mx, al = T0 + tq, T0 + 4 + tq
        a(f'v_mul_f32 {vr(mx)}, {sr(S_C)}, {vr(mx)}')
        a(f'v_max_f32 {vr(mx)}, {vr(mx)}, {vr(MREF + tq)}')
        a(f'v_sub_f32 {vr(al)}, {vr(MREF + tq)}, {vr(mx)}')
        a(f'v_exp_f32 {vr(al)}, {vr(al)}')
        a(f'v_mov_b32 {vr(MREF + tq)}, {vr(mx)}')
        a(f'v_mul_f32 {vr(LSUM + tq)}, {vr(LSUM + tq)}, {vr(al)}')
        for td in range(8):
            for r in range(4):
                a(f'v_mul_f32 {vr(O(td, tq) + r)}, {vr(O(td, tq) + r)}, {vr(al)}')
    a(f's_mov_b32 {sr(S_THR)}, 0x7f800000')
    a(f's_branch SM_{tag}')

def srd(a, dst, base, off_sgpr, nrec, off_imm=0):
    if off_imm:
        a(f's_add_u32 {off_sgpr}, {off_sgpr}, {off_imm}')
    a(f's_add_u32 s{dst}, s{base}, {off_sgpr}')
    a(f's_addc_u32 s{dst + 1}, s{base + 1}, 0')
    a(f's_mov_b32 s{dst + 2}, {nrec}')
    a(f's_mov_b32 s{dst + 3}, 0x20000')

def sync_group(a, cfg, tag, add, shift):
    a('s_barrier')
    a(f's_cmp_lg_u32 {sr(S_W)}, 0')
    a(f's_cbranch_scc1 {tag}_D')
    a('s_mov_b32 s12, s68')
    a('s_mov_b32 s13, s69')
    a('s_mov_b32 s14, 256')
    a('s_mov_b32 s15, 0x20000')
    a(f's_lshl_b32 s54, {sr(S_G)}, 2')
    a('v_mov_b32 v2, s54')
    a(f'v_mov_b32 v1, {add}')
    a('s_mov_b64 exec, 1')
    a('buffer_atomic_add v1, v2, s[12:15], 0 offen sc1')
    a('s_mov_b64 exec, -1')
    a('s_mov_b32 s56, 0x40000')
    a.label(f'{tag}_L')
    a('buffer_load_dword v1, v2, s[12:15], 0 offen sc1')
    a('s_waitcnt vmcnt(0)')
    a(f'v_bfe_u32 v1, v1, {shift}, 8')
    a('v_cmp_ne_u32 vcc, 4, v1')
    a(f's_cbranch_vccz {tag}_D')
    a(f's_sleep {cfg.sleep}')
    a('s_sub_u32 s56, s56, 1')
    a('s_cmp_lg_u32 s56, 0')
    a(f's_cbranch_scc1 {tag}_L')
    a.label(f'{tag}_D')
    a('s_barrier')

RCNT_OFF = 192

def signal(a, tag, off_sgpr, off_imm):
    a('s_mov_b32 s12, s68')
    a('s_mov_b32 s13, s69')
    a('s_mov_b32 s14, 256')
    a('s_mov_b32 s15, 0x20000')
    a('s_mov_b64 exec, 1')
    a('v_mov_b32 v248, 1')
    a(f'v_mov_b32 v249, {off_sgpr if off_sgpr else off_imm}')
    a('buffer_atomic_add v248, v249, s[12:15], 0 offen sc1')
    a('s_mov_b64 exec, -1')

def proj_ids(a):
    pass

def flag_line(a, dst):
    a('s_and_b32 s54, s2, 7')
    a('s_lshr_b32 s55, s2, 3')
    a('s_and_b32 s55, s55, 31')
    a('s_lshr_b32 s56, s54, 1')
    a('s_lshl_b32 s56, s56, 2')
    a('s_lshr_b32 s55, s55, 3')
    a('s_add_u32 s56, s56, s55')
    a(f's_lshl_b32 {dst}, s56, 7')

def rflag_line(a, dst):
    a('s_and_b32 s54, s2, 7')
    a('s_lshr_b32 s55, s2, 3')
    a('s_and_b32 s55, s55, 7')
    a('s_and_b32 s56, s54, 1')
    a('s_lshl_b32 s56, s56, 3')
    a('s_add_u32 s56, s56, s55')
    a('s_lshr_b32 s56, s56, 2')
    a('s_lshr_b32 s54, s54, 2')
    a('s_lshl_b32 s54, s54, 2')
    a('s_add_u32 s56, s56, s54')
    a('s_lshl_b32 s56, s56, 7')
    a(f's_add_u32 {dst}, s56, 2048')

def loop_consts(a, kbase, vbase):
    a('v_lshrrev_b32 v1, 4, v0')
    a('v_and_b32 v2, 15, v0')
    a('v_and_b32 v3, 4, v2')
    a('v_lshlrev_b32 v3, 1, v3')
    a('v_xor_b32 v3, v2, v3')
    a(f'v_lshlrev_b32 {vr(TMP)}, 2, v1')
    a(f'v_xor_b32 {vr(TMP)}, {vr(TMP)}, v3')
    a(f'v_lshlrev_b32 {vr(TMP)}, 4, {vr(TMP)}')
    a(f'v_lshl_add_u32 {vr(KADDR)}, v2, 8, {vr(TMP)}')
    if kbase: a(f'v_add_u32 {vr(KADDR)}, {kbase}, {vr(KADDR)}')
    for kk in range(1, 4): a(f'v_xor_b32 {vr(KADDR + kk)}, {kk << 4}, {vr(KADDR)}')
    a('v_lshrrev_b32 v3, 2, v2')
    a('v_lshl_add_u32 v3, v1, 2, v3')
    a(f'v_and_b32 {vr(TMP)}, 7, v3')
    a(f'v_lshlrev_b32 {vr(TMP)}, 5, {vr(TMP)}')
    a(f'v_lshl_add_u32 {vr(TMP)}, v3, 8, {vr(TMP)}')
    a('v_and_b32 v3, 3, v2')
    a(f'v_lshl_add_u32 {vr(VADDR)}, v3, 3, {vr(TMP)}')
    if vbase: a(f'v_add_u32 {vr(VADDR)}, {vbase}, {vr(VADDR)}')
    for td in range(1, 8): a(f'v_xor_b32 {vr(VADDR + td)}, {td << 5}, {vr(VADDR)}')
    for r in range(96): a(f'v_mov_b32 {vr(O0 + r)}, 0')
    for tq in range(3):
        a(f'v_mov_b32 {vr(MREF + tq)}, 0xff800000')
        a(f'v_mov_b32 {vr(LSUM + tq)}, 0')

def attn_kernel(a, cfg):
    K = cfg.k1name
    a.L.append(f'.globl {K}')
    a.L.append('.p2align 8')
    a.L.append(f'.type {K},@function')
    a.label(K)
    a('s_cmp_ge_u32 s2, 512')
    a('s_cbranch_scc1 K1_END')
    stamp_init(a, cfg)
    stamp(a, cfg, 0)
    a('s_load_dwordx8 s[36:43], s[0:1], 0')
    a('s_load_dwordx8 s[44:51], s[0:1], 40')
    a('s_load_dwordx4 s[68:71], s[0:1], 88')
    a('s_load_dwordx2 s[72:73], s[0:1], 32')
    a('s_load_dwordx2 s[74:75], s[0:1], 72')
    a('s_load_dwordx2 s[66:67], s[0:1], 80')
    a(f's_lshr_b32 {sr(S_SEC)}, s2, 8')
    a('v_lshrrev_b32 v1, 6, v0')
    a('v_and_b32 v0, 63, v0')
    a('s_and_b32 s34, s2, 7')
    a('s_lshr_b32 s35, s2, 3')
    a(f's_lshr_b32 {sr(S_ISB)}, s35, 5')
    a('s_and_b32 s35, s35, 31')
    if cfg.swapab:
        a(f's_xor_b32 {sr(S_ISB)}, {sr(S_ISB)}, 1')
    a(f'v_readfirstlane_b32 {sr(S_W)}, v1')
    a(f's_lshr_b32 {sr(S_B)}, s35, 2')
    if cfg.bxor: a(f's_xor_b32 {sr(S_B)}, {sr(S_B)}, {cfg.bxor}')
    a(f's_and_b32 {sr(S_KQ)}, s35, 3')
    a('s_lshl_b32 s54, s34, 2')
    a(f's_add_u32 {sr(S_H)}, s54, {sr(S_KQ)}')
    a(f's_lshl_b32 {sr(S_G)}, {sr(S_B)}, 3')
    a(f's_add_u32 {sr(S_G)}, {sr(S_G)}, s34')
    a(f's_lshl_b32 s55, {sr(S_B)}, 5')
    a(f's_add_u32 s55, s55, {sr(S_H)}')
    a(f's_mov_b32 s56, {0x80000 - 3 * 8192}')
    a(f's_cmp_eq_u32 {sr(S_ISB)}, 1')
    a(f's_cselect_b32 s54, s55, {sr(S_G)}')
    a('s_mov_b32 s57, s35')
    a('s_waitcnt lgkmcnt(0)')
    a('s_cselect_b64 s[36:37], s[44:45], s[36:37]')
    a('s_cselect_b64 s[38:39], s[46:47], s[38:39]')
    a('s_cselect_b64 s[40:41], s[48:49], s[40:41]')
    a('s_cselect_b64 s[42:43], s[50:51], s[42:43]')
    a('s_lshl_b32 s54, s54, 19')
    a(f's_lshl_b32 s55, {sr(S_W)}, 13')
    a('s_add_u32 s54, s54, s55')
    a(f's_add_u32 s{SK}, s38, s54')
    a(f's_addc_u32 s{SK+1}, s39, 0')
    a(f's_mov_b32 s{SK+2}, s56')
    a(f's_mov_b32 s{SK+3}, 0x20000')
    a(f's_add_u32 s{SV}, s40, s54')
    a(f's_addc_u32 s{SV+1}, s41, 0')
    a(f's_mov_b32 s{SV+2}, s56')
    a(f's_mov_b32 s{SV+3}, 0x20000')
    a(f's_mul_i32 s54, {sr(S_B)}, 49152')
    a(f's_lshl_b32 s55, {sr(S_W)}, 8')
    a('s_add_u32 s54, s54, s55')
    a(f's_add_u32 s{SX}, s36, s54')
    a(f's_addc_u32 s{SX+1}, s37, 0')
    a(f's_sub_u32 s{SX+2}, 393216, s54')
    a(f's_mov_b32 s{SX+3}, 0x20000')
    a(f's_lshl_b32 s54, {sr(S_W)}, 20')
    a(f's_lshl_b32 s55, {sr(S_H)}, 8')
    a('s_add_u32 s54, s54, s55')
    a(f's_add_u32 s{SWQ}, s42, s54')
    a(f's_addc_u32 s{SWQ+1}, s43, 0')
    a(f's_sub_u32 s{SWQ+2}, 4194304, s54')
    a(f's_mov_b32 s{SWQ+3}, 0x20000')
    a(f's_lshl_b32 {sr(S_KSLOT)}, {sr(S_W)}, 13')
    a(f's_add_u32 {sr(S_VSLOT)}, {sr(S_KSLOT)}, 32768')
    a(f's_lshl_b32 {sr(S_SCR)}, {sr(S_W)}, 12')
    a(f's_add_u32 {sr(S_SCR)}, {sr(S_SCR)}, 65536')
    a('v_lshrrev_b32 v1, 4, v0')
    a('v_and_b32 v2, 15, v0')
    a('v_xor_b32 v3, v2, v1')
    for n, hk in enumerate([0, 3, 2, 1]):
        a(f'v_xor_b32 {vr(VOFFK + n)}, {hk << 2}, v3')
        a(f'v_lshlrev_b32 {vr(VOFFK + n)}, 4, {vr(VOFFK + n)}')
        a(f'v_lshl_add_u32 {vr(VOFFK + n)}, v1, 8, {vr(VOFFK + n)}')
    RAW = [10, 42, 184, 216]
    XF = 74
    TT = 248
    XA = 86
    XOFF = O0
    WQOFF = O0 + 4
    a('v_mul_u32_u24 v3, 768, v1')
    for n in range(4): a(f'v_add_u32 {vr(XOFF + n)}, {vr(VOFFK + n)}, v3')
    a(f'v_lshlrev_b32 {vr(WQOFF)}, 16, v1')
    a(f'v_lshl_add_u32 {vr(WQOFF)}, v2, 4, {vr(WQOFF)}')
    def k0_issue(tg):
        a(f's_mov_b32 {sr(S_KOFF)}, 0')
        a(f's_mov_b32 {sr(S_VOFF)}, 0')
        if cfg.ntA[0] == cfg.ntB[0]:
            dma_tile(a, cfg, SK, lambda n: VOFFK + (n & 3), S_KOFF, S_KSLOT, cfg.ntB[0])
        else:
            a(f's_cmp_eq_u32 {sr(S_ISB)}, 1')
            a(f's_cbranch_scc1 K0_B{tg}')
            dma_tile(a, cfg, SK, lambda n: VOFFK + (n & 3), S_KOFF, S_KSLOT, cfg.ntA[0])
            a(f's_branch K0_E{tg}')
            a.label(f'K0_B{tg}')
            dma_tile(a, cfg, SK, lambda n: VOFFK + (n & 3), S_KOFF, S_KSLOT, cfg.ntB[0])
            a.label(f'K0_E{tg}')
    for n in range(12):
        if n < 8: a(f's_add_u32 m0, {sr(S_VSLOT)}, {n * 1024}')
        else: a(f's_add_u32 m0, {sr(S_SCR)}, {(n - 8) * 1024}')
        a(f's_mov_b32 {sr(S_T)}, {n * 4096}')
        a(f'buffer_load_dwordx4 {vr(XOFF + (n & 3))}, {sr(SX, 4)}, {sr(S_T)} offen lds')
    for ks in range(4):
        for n in range(8):
            a(f's_mov_b32 {sr(S_T)}, {(32 * ks + n) * 8192}')
            a(f'buffer_load_dwordx4 {vr(RAW[ks] + 4 * n, 4)}, {vr(WQOFF)}, {sr(SWQ, 4)}, {sr(S_T)} offen')
    for p in range(2):
        a(f'v_add_u32 v3, {4 * p}, v1')
        a('v_lshlrev_b32 v3, 1, v3')
        a('v_xor_b32 v3, v2, v3')
        a('v_lshlrev_b32 v3, 4, v3')
        a(f'v_lshl_add_u32 {vr(VOFFV + p)}, v1, 8, v3')
    k0_issue('F')
    a('v_and_b32 v3, 4, v2')
    a('v_lshlrev_b32 v3, 1, v3')
    a('v_xor_b32 v3, v2, v3')
    a(f'v_xor_b32 {vr(XA)}, v1, v3')
    a(f'v_lshlrev_b32 {vr(XA)}, 4, {vr(XA)}')
    a(f'v_lshl_add_u32 {vr(XA)}, v2, 8, {vr(XA)}')
    a(f's_mov_b32 {sr(S_C)}, 0x3e0293ee')
    a(f's_mov_b32 {sr(S_THR)}, 0x43800000')
    a(f's_mov_b32 {sr(S_SELLO)}, 0x05040100')
    a(f's_mov_b32 {sr(S_SELHI)}, 0x07060302')
    def xread(ks):
        a(f'v_xor_b32 v3, {ks << 6}, {vr(XA)}')
        a(f'v_add_u32 v87, {sr(S_VSLOT)}, v3')
        a(f'v_add_u32 v3, {sr(S_SCR)}, v3')
        a(f'ds_read_b128 {vr(XF, 4)}, v87')
        a(f'ds_read_b128 {vr(XF + 4, 4)}, v87 offset:4096')
        a(f'ds_read_b128 {vr(XF + 8, 4)}, v3')
    def qproj(ks):
        Rb = RAW[ks]
        def perms(e, T):
            m, p = e >> 1, e & 1
            sel = S_SELHI if p else S_SELLO
            for q4 in range(4):
                a(f'v_perm_b32 {vr(T + q4)}, {vr(Rb + 4 * (2 * q4 + 1) + m)}, {vr(Rb + 4 * (2 * q4) + m)}, {sr(sel)}')
        def mfmas(e, T):
            for tq in range(3):
                c = '0' if ks == 0 else vr(O(e, tq), 4)
                a(f'v_mfma_f32_16x16x32_bf16 {vr(O(e, tq), 4)}, {vr(T, 4)}, {vr(XF + 4 * tq, 4)}, {c}')
        Ts = [TT, TT + 4]
        xread(ks)
        perms(0, Ts[0])
        for e in range(8):
            if e < 7: perms(e + 1, Ts[(e + 1) & 1])
            else: a('s_nop 1')
            if e == 0: a('s_waitcnt lgkmcnt(0)')
            mfmas(e, Ts[e & 1])
    kk0 = 8
    a(f's_waitcnt vmcnt({24 + kk0})')
    stamp(a, cfg, 1)
    qproj(0)
    a(f's_waitcnt vmcnt({16 + kk0})')
    qproj(1)
    a(f's_waitcnt vmcnt({8 + kk0})')
    qproj(2)
    a(f's_waitcnt vmcnt({kk0})')
    qproj(3)
    stamp(a, cfg, 2)
    a('v_lshlrev_b32 v1, 4, v0')
    a('v_add_u32 v3, 65536, v1')
    a('s_nop 5')
    def reg_u(w, u):
        if u < 8: return ('v1', VSLOT(w) + u * 1024)
        return ('v3', w * 4096 + (u - 8) * 1024)
    RB = 10
    for w in range(4):
        if w < 3:
            a(f's_cmp_eq_u32 {sr(S_W)}, {w}')
            a(f's_cbranch_scc0 QR_{w + 1}')
        for rhos in ([1, 2], [3]):
            for k, rho in enumerate(rhos):
                dst = (w + rho) & 3
                for s in range(2):
                    for tq in range(3):
                        b_, off = reg_u(w, k * 6 + s * 3 + tq)
                        a(f'ds_write_b128 {b_}, {vr(O(2 * dst + s, tq), 4)} offset:{off}')
            a('s_waitcnt lgkmcnt(0)')
            a('s_barrier')
            for k, rho in enumerate(rhos):
                src = (w - rho) & 3
                for s in range(2):
                    for tq in range(3):
                        b_, off = reg_u(src, k * 6 + s * 3 + tq)
                        a(f'ds_read_b128 {vr(RB + (k * 6 + s * 3 + tq) * 4, 4)}, {b_} offset:{off}')
            for k, rho in enumerate(rhos):
                a(f's_waitcnt lgkmcnt({6 * (len(rhos) - 1 - k)})')
                for s in range(2):
                    for tq in range(3):
                        for r in range(4):
                            o = O(2 * w + s, tq) + r
                            a(f'v_add_f32 {vr(o)}, {vr(o)}, {vr(RB + (k * 6 + s * 3 + tq) * 4 + r)}')
            if rhos[0] == 1: a('s_barrier')
        for tq in range(3):
            for r in range(4):
                a(f'v_cvt_pk_bf16_f32 {vr(RB + 4 * tq + r)}, {vr(O(2 * w, tq) + r)}, {vr(O(2 * w + 1, tq) + r)}')
        for tq in range(3):
            for r in range(4):
                a(f'ds_write_b32 v3, {vr(RB + 4 * tq + r)} offset:{tq * 4096 + r * 1024 + w * 4}')
        if w < 3:
            a('s_branch QR_END')
            a.label(f'QR_{w + 1}')
    a.label('QR_END')
    a('s_waitcnt lgkmcnt(0)')
    a('s_barrier')
    a(f's_cmp_eq_u32 {sr(S_SEC)}, 0')
    a('s_cbranch_scc1 RS_SKIP')
    a(f's_cmp_lg_u32 {sr(S_W)}, 0')
    a('s_cbranch_scc1 RS_SKIP')
    a('v_lshlrev_b32 v249, 2, v0')
    flag_line(a, 's57')
    srd(a, 12, S_WS, 's57', 128, WS_FLAG)
    a('buffer_load_dword v253, v249, s[12:15], 0 offen sc1')
    rflag_line(a, 's57')
    srd(a, 12, S_WS, 's57', 128, WS_FLAG)
    a('buffer_load_dword v254, v249, s[12:15], 0 offen sc1')
    a.label('RS_SKIP')
    for tq in range(3):
        for kk in range(4):
            a(f'ds_read_b128 {vr(Q(tq, kk), 4)}, v3 offset:{tq * 4096 + kk * 1024}')
    variants = [('A', cfg.ntA, cfg.modeA), ('B', cfg.ntB, cfg.modeB)]
    if cfg.ntA == cfg.ntB and cfg.modeA == cfg.modeB: variants = variants[1:]
    def v0(nt, mode):
        if mode != 1: dma_tile(a, cfg, SV, lambda n: VOFFV + (n & 1), S_VOFF, S_VSLOT, nt[1])
    if len(variants) == 1: v0(cfg.ntB, cfg.modeB)
    else:
        a(f's_cmp_eq_u32 {sr(S_ISB)}, 1')
        a('s_cbranch_scc1 V0_B')
        v0(cfg.ntA, cfg.modeA)
        a('s_branch V0_E')
        a.label('V0_B')
        v0(cfg.ntB, cfg.modeB)
        a.label('V0_E')
    loop_consts(a, sr(S_KSLOT), sr(S_VSLOT))
    if cfg.prioB:
        a(f's_cmp_eq_u32 {sr(S_ISB)}, 1')
        a('s_cbranch_scc0 PRIO_E')
        a(f's_setprio {cfg.prioB}')
        a.label('PRIO_E')
    a('s_waitcnt lgkmcnt(0)')
    stamp(a, cfg, 3)
    a(f's_mov_b32 {sr(S_CNT)}, 15')
    if cfg.stamps >= 2:
        a('v_mov_b32 v252, 0')
        a('s_mov_b32 s59, 0')
    if len(variants) > 1:
        a(f's_cmp_eq_u32 {sr(S_ISB)}, 1')
        a('s_cbranch_scc1 LOOP_B')
    for v, nt, mode in variants:
        a.L.append('.p2align 3')
        a.label(f'LOOP_{v}')
        body_b(a, cfg, f'{v}L', True, nt, mode)
        a(f's_sub_u32 {sr(S_CNT)}, {sr(S_CNT)}, 1')
        a(f's_cmp_lg_u32 {sr(S_CNT)}, 0')
        a(f's_cbranch_scc1 LOOP_{v}')
        body_b(a, cfg, f'{v}F', False, nt, mode)
        if v != variants[-1][0]: a('s_branch LAST')
    a.label('LAST')
    stamp(a, cfg, 4)
    a(f's_cmp_eq_u32 {sr(S_SEC)}, 1')
    a('s_cbranch_scc1 RL_END')
    a('s_lshr_b32 s57, s2, 7')
    a('s_lshr_b32 s56, s2, 5')
    a('s_and_b32 s56, s56, 3')
    a('s_and_b32 s54, s2, 31')
    a('s_lshl_b32 s54, s54, 2')
    a(f's_add_u32 s54, s54, {sr(S_W)}')
    a('s_cmp_eq_u32 s57, 1')
    a('s_cselect_b64 s[72:73], s[74:75], s[72:73]')
    a('s_lshl_b32 s55, s54, 15')
    a('s_lshl_b32 s65, s56, 8')
    a('s_add_u32 s55, s55, s65')
    a(f's_add_u32 s{SWQ}, s72, s55')
    a(f's_addc_u32 s{SWQ+1}, s73, 0')
    a(f's_sub_u32 s{SWQ+2}, 4194304, s55')
    a(f's_mov_b32 s{SWQ+3}, 0x20000')
    a('v_lshrrev_b32 v1, 4, v0')
    a('v_mul_u32_u24 v1, 768, v1')
    a(f'v_add_u32 v2, {vr(VOFFV)}, v1')
    a(f'v_add_u32 v3, {vr(VOFFV + 1)}, v1')
    for n in range(8):
        a(f's_add_u32 m0, {sr(S_VSLOT)}, {n * 1024}')
        a(f's_mov_b32 {sr(S_T)}, {n * 4096}')
        a(f'buffer_load_dwordx4 {"v3" if n & 1 else "v2"}, {sr(SWQ, 4)}, {sr(S_T)} offen lds')
    a('s_lshl_b32 s57, s57, 5')
    a('s_lshl_b32 s56, s56, 3')
    a('s_add_u32 s57, s57, s56')
    a('s_lshl_b32 s57, s57, 7')
    a('s_add_u32 s57, s57, s54')
    a('s_lshl_b32 s57, s57, 10')
    srd(a, SK, S_WS, 's57', 7 * 131072 + 1024, WS_WOF)
    a('v_lshlrev_b32 v1, 4, v0')
    a('s_waitcnt vmcnt(0)')
    for td in range(8):
        a(f'ds_read_b64_tr_b16 {vr(VF(td), 2)}, {vr(VADDR + td)}')
        a(f'ds_read_b64_tr_b16 {vr(VF(td) + 2, 2)}, {vr(VADDR + td)} offset:4096')
    a('s_waitcnt lgkmcnt(0)')
    for td in range(8):
        a(f's_mov_b32 {sr(S_T)}, {td * 131072}')
        a(f'buffer_store_dwordx4 {vr(VF(td), 4)}, v1, {sr(SK, 4)}, {sr(S_T)} offen sc1')
    a.label('RL_END')
    for tq in range(3): xlane_reduce(a, 'v_add_f32', LSUM + tq, TMP)
    a('v_lshlrev_b32 v1, 4, v0')
    a('v_add_u32 v3, 65536, v1')
    a('v_lshlrev_b32 v2, 2, v0')
    a('v_add_u32 v2, 65536, v2')
    a(f's_lshl_b32 s54, {sr(S_ISB)}, 3')
    a(f's_add_u32 s54, s54, {sr(S_B)}')
    a('s_mul_i32 s54, s54, 393216')
    a(f's_lshl_b32 s55, {sr(S_H)}, 2')
    a(f's_add_u32 s55, s55, {sr(S_W)}')
    a('s_lshl_b32 s55, s55, 10')
    a('s_add_u32 s54, s54, s55')
    srd(a, SX, S_WS, 's54', 2 * 131072 + 1024, WS_O)
    def lds_u(w, u):
        if u < 8: return ('v1', KSLOT(w) + u * 1024)
        if u < 16: return ('v1', VSLOT(w) + (u - 8) * 1024)
        return ('v3', w * 4096 + (u - 16) * 1024)
    for w in range(4):
        if w < 3:
            a(f's_cmp_eq_u32 {sr(S_W)}, {w}')
            a(f's_cbranch_scc0 EP_{w + 1}')
        for k in range(3):
            a(f'ds_write_b32 v2, {vr(MREF + k)} offset:{w * 4096 + 2048 + k * 256}')
            a(f'ds_write_b32 v2, {vr(LSUM + k)} offset:{w * 4096 + 2048 + (3 + k) * 256}')
        for rho in range(1, 4):
            dst = (w + rho) & 3
            for s in range(2):
                for tq in range(3):
                    b_, off = lds_u(w, (rho - 1) * 6 + s * 3 + tq)
                    a(f'ds_write_b128 {b_}, {vr(O(2 * dst + s, tq), 4)} offset:{off}')
        a('s_waitcnt lgkmcnt(0)')
        a('s_barrier')
        for w2 in range(4):
            for k in range(6):
                a(f'ds_read_b32 {vr(F0 + w2 * 6 + k)}, v2 offset:{w2 * 4096 + 2048 + k * 256}')
        def buf(idx): return Q0 + idx * 4 if idx < 12 else S0 + (idx - 12) * 4
        idx = 0; where = {}
        for rho in range(1, 4):
            src = (w - rho) & 3
            for s in range(2):
                for tq in range(3):
                    b_, off = lds_u(src, (rho - 1) * 6 + s * 3 + tq)
                    a(f'ds_read_b128 {vr(buf(idx), 4)}, {b_} offset:{off}')
                    where[(src, s, tq)] = buf(idx); idx += 1
        a('s_waitcnt lgkmcnt(0)')
        for tq in range(3):
            M = T0 + tq
            m = lambda w2: F0 + w2 * 6 + tq
            l = lambda w2: F0 + w2 * 6 + 3 + tq
            a(f'v_max3_f32 {vr(M)}, {vr(m(0))}, {vr(m(1))}, {vr(m(2))}')
            a(f'v_max_f32 {vr(M)}, {vr(M)}, {vr(m(3))}')
            for w2 in range(4): a(f'v_sub_f32 {vr(m(w2))}, {vr(m(w2))}, {vr(M)}')
            for w2 in range(4): a(f'v_exp_f32 {vr(m(w2))}, {vr(m(w2))}')
            a('s_nop 0')
            a(f'v_mul_f32 {vr(M)}, {vr(m(0))}, {vr(l(0))}')
            for w2 in range(1, 4): a(f'v_fma_f32 {vr(M)}, {vr(m(w2))}, {vr(l(w2))}, {vr(M)}')
            a(f'v_rcp_f32 {vr(M)}, {vr(M)}')
            a('s_nop 0')
            for w2 in range(4): a(f'v_mul_f32 {vr(m(w2))}, {vr(m(w2))}, {vr(M)}')
            for s in range(2):
                o = O(2 * w + s, tq)
                for r in range(4): a(f'v_mul_f32 {vr(o + r)}, {vr(o + r)}, {vr(m(w))}')
                for w2 in range(4):
                    if w2 == w: continue
                    for r in range(4):
                        a(f'v_fma_f32 {vr(o + r)}, {vr(where[(w2, s, tq)] + r)}, {vr(m(w2))}, {vr(o + r)}')
            d = P(tq)
            a(f'v_cvt_pk_bf16_f32 {vr(d)}, {vr(O(2 * w, tq))}, {vr(O(2 * w, tq) + 1)}')
            a(f'v_cvt_pk_bf16_f32 {vr(d + 1)}, {vr(O(2 * w, tq) + 2)}, {vr(O(2 * w, tq) + 3)}')
            a(f'v_cvt_pk_bf16_f32 {vr(d + 2)}, {vr(O(2 * w + 1, tq))}, {vr(O(2 * w + 1, tq) + 1)}')
            a(f'v_cvt_pk_bf16_f32 {vr(d + 3)}, {vr(O(2 * w + 1, tq) + 2)}, {vr(O(2 * w + 1, tq) + 3)}')
            a(f's_mov_b32 {sr(S_T)}, {tq * 131072}')
            a(f'buffer_store_dwordx4 {vr(d, 4)}, v1, {sr(SX, 4)}, {sr(S_T)} offen sc1')
        if w < 3:
            a('s_branch EP_END')
            a.label(f'EP_{w + 1}')
    a.label('EP_END')
    a('s_waitcnt vmcnt(0)')
    a('s_barrier')
    stamp(a, cfg, 6)
    a(f's_cmp_lg_u32 {sr(S_W)}, 0')
    a('s_cbranch_scc1 OSIG_SKIP')
    a('s_memrealtime s[56:57]')
    a(f's_lshl_b32 s54, {sr(S_ISB)}, 3')
    a(f's_add_u32 s54, s54, {sr(S_B)}')
    a('s_lshl_b32 s55, s54, 7')
    a(f's_lshl_b32 s65, {sr(S_H)}, 2')
    a('s_add_u32 s55, s55, s65')
    srd(a, 12, S_WS, 's55', 4, WS_FLAG)
    a('s_waitcnt lgkmcnt(0)')
    a('s_or_b32 s56, s56, 1')
    a('s_mov_b64 exec, 1')
    a('v_mov_b32 v248, s56')
    a('v_mov_b32 v249, 0')
    a('buffer_store_dword v248, v249, s[12:15], 0 offen sc1')
    a('s_mov_b64 exec, -1')
    a('s_lshl_b32 s54, s54, 3')
    a(f's_cmp_eq_u32 {sr(S_SEC)}, 1')
    a('s_cbranch_scc1 OSIG_C')
    a('s_lshr_b32 s55, s2, 5')
    a('s_lshl_b32 s55, s55, 7')
    a('s_and_b32 s65, s2, 31')
    a('s_lshl_b32 s65, s65, 2')
    a('s_add_u32 s55, s55, s65')
    srd(a, 12, S_WS, 's55', 4, WS_FLAG + 2048)
    a('s_mov_b64 exec, 1')
    a('buffer_store_dword v248, v249, s[12:15], 0 offen sc1')
    a('s_mov_b64 exec, -1')
    a('s_lshr_b32 s55, s2, 5')
    a('s_lshl_b32 s55, s55, 3')
    a('s_add_u32 s55, s55, 128')
    signal(a, 'RS', 's55', 0)
    a.label('OSIG_C')
    signal(a, 'OS', 's54', 0)
    a.label('OSIG_SKIP')
    a(f's_cmp_eq_u32 {sr(S_SEC)}, 1')
    a('s_cbranch_scc1 PROJ')
    a.label('FIN')
    if cfg.stamps >= 2:
        a('s_add_u32 s12, s70, 0x14000000')
        a('s_addc_u32 s13, s71, 0')
        a('s_lshl_b32 s54, s2, 2')
        a(f's_add_u32 s54, s54, {sr(S_W)}')
        a('s_lshl_b32 s54, s54, 8')
        a('s_add_u32 s12, s12, s54')
        a('s_addc_u32 s13, s13, 0')
        a('s_mov_b32 s14, 256')
        a('s_mov_b32 s15, 0x20000')
        a('v_lshlrev_b32 v1, 2, v0')
        a('buffer_store_dword v252, v1, s[12:15], 0 offen')
    if cfg.stamps: stamp_store(a, cfg, 70, 0, sr(S_W), 'K1_END')
    a.label('K1_END')
    a('s_endpgm')
    proj_phase(a, cfg)
    for v, nt, mode in variants:
        slow(a, cfg, f'{v}L'); slow(a, cfg, f'{v}F')


def proj_phase(a, cfg):
    a.label('PROJ')
    a('s_and_b32 s34, s2, 7')
    a('s_lshr_b32 s35, s2, 3')
    a('s_and_b32 s35, s35, 31')
    a('s_lshr_b32 s23, s34, 2')
    a('s_lshr_b32 s21, s34, 1')
    a('s_and_b32 s21, s21, 1')
    a('s_lshl_b32 s21, s21, 2')
    a('s_lshr_b32 s54, s35, 3')
    a('s_add_u32 s21, s21, s54')
    a('s_and_b32 s22, s34, 1')
    a('s_lshl_b32 s22, s22, 3')
    a('s_and_b32 s55, s35, 7')
    a('s_add_u32 s22, s22, s55')
    a('s_lshl_b32 s24, s55, 2')
    a('s_and_b32 s56, s54, 1')
    a('s_lshl_b32 s56, s56, 1')
    a('s_add_u32 s24, s24, s56')
    a('s_lshr_b32 s56, s54, 1')
    a('s_lshl_b32 s56, s56, 4')
    a('s_add_u32 s24, s24, s56')
    a('s_and_b32 s24, s24, 31')
    a('s_lshl_b32 s26, s24, 10')
    a('v_lshlrev_b32 v4, 4, v0')
    a('s_lshl_b32 s54, s23, 5')
    a('s_lshl_b32 s55, s22, 1')
    a('s_add_u32 s54, s54, s55')
    a('s_lshl_b32 s54, s54, 17')
    a(f's_lshl_b32 s55, {sr(S_W)}, 15')
    a('s_add_u32 s54, s54, s55')
    srd(a, 4, S_WS, 's54', 131072 + 32768, WS_WOF)
    a('s_lshl_b32 s54, s23, 3')
    a('s_add_u32 s54, s54, s21')
    a('s_lshl_b32 s27, s54, 3')
    a('s_mul_i32 s54, s54, 393216')
    a('s_add_u32 s54, s54, s55')
    srd(a, 8, S_WS, 's54', 2 * 131072 + 32768, WS_O)
    a('s_mov_b32 s12, s68')
    a('s_mov_b32 s13, s69')
    a('s_mov_b32 s14, 256')
    a('s_mov_b32 s15, 0x20000')
    def wait_flags(tag, line_fn, basereg, cnt_setup):
        a(f's_cmp_lg_u32 {sr(S_W)}, 0')
        a(f's_cbranch_scc1 {tag}_D')
        a(f'v_mov_b32 v5, {basereg}')
        line_fn(a, 's57')
        srd(a, 16, S_WS, 's57', 128, WS_FLAG)
        a('v_lshlrev_b32 v1, 2, v0')
        for s_ in cnt_setup: a(s_)
        a('s_mov_b32 s56, 0x3ffff')
        a('s_mov_b32 exec_lo, -1')
        a('s_mov_b32 exec_hi, 0')
        a.label(f'{tag}_L')
        a('buffer_load_dword v2, v1, s[16:19], 0 offen sc1')
        a('s_waitcnt vmcnt(0)')
        a('v_cmp_eq_u32 vcc, v2, v5')
        a(f's_cbranch_vccz {tag}_E')
        a('s_and_b32 s57, s56, 63')
        a('s_cmp_lg_u32 s57, 0')
        a(f's_cbranch_scc1 {tag}_S')
        a('buffer_load_dword v2, v3, s[12:15], 0 offen sc1')
        a('s_waitcnt vmcnt(0)')
        a('v_cmp_ne_u32 vcc, 32, v2')
        a(f's_cbranch_vccz {tag}_E')
        a.label(f'{tag}_S')
        a(f's_sleep {cfg.sleep}')
        a('s_sub_u32 s56, s56, 1')
        a('s_cmp_lg_u32 s56, 0')
        a(f's_cbranch_scc1 {tag}_L')
        a.label(f'{tag}_E')
        a('s_mov_b64 exec, -1')
        a.label(f'{tag}_D')
        a('s_barrier')
    a('v_mov_b32 v6, v253')
    ACC, WF, OR = 8, 32, 160
    ld = ' sc1' if cfg.psc1 else ''
    wait_flags('PR', rflag_line, 'v254', ['s_sub_u32 s57, s57, 0', 's_lshr_b32 s55, s22, 2', 's_lshl_b32 s54, s23, 2', 's_add_u32 s55, s55, s54', 's_lshl_b32 s55, s55, 3', 's_add_u32 s55, s55, 128', 'v_mov_b32 v3, s55'])
    issued = []
    def wo_load(s_):
        B = WF + (s_ % 16) * 8
        a(f'buffer_load_dwordx4 {vr(B, 4)}, v4, s[4:7], s24 offen{ld}')
        a('s_add_u32 s25, s24, 0x20000')
        a(f'buffer_load_dwordx4 {vr(B + 4, 4)}, v4, s[4:7], s25 offen{ld}')
        a('s_add_u32 s24, s24, 0x400')
        a('s_and_b32 s24, s24, 0x7fff')
        issued.extend([('w', s_)] * 2)
    def o_load(s_):
        B = OR + (s_ % 8) * 12
        a(f'buffer_load_dwordx4 {vr(B, 4)}, v4, s[8:11], s28 offen{ld}')
        a('s_add_u32 s25, s28, 0x20000')
        a(f'buffer_load_dwordx4 {vr(B + 4, 4)}, v4, s[8:11], s25 offen{ld}')
        a('s_add_u32 s25, s28, 0x40000')
        a(f'buffer_load_dwordx4 {vr(B + 8, 4)}, v4, s[8:11], s25 offen{ld}')
        a('s_add_u32 s28, s28, 0x400')
        a('s_and_b32 s28, s28, 0x7fff')
        issued.extend([('o', s_)] * 3)
    a('s_mov_b32 s24, s26')
    for s_ in range(16): wo_load(s_)
    stamp(a, cfg, 1)
    wait_flags('PO', flag_line, 'v6', ['v_mov_b32 v3, s27'])
    stamp(a, cfg, 2)
    a('s_mov_b32 s28, s26')
    for s_ in range(8): o_load(s_)
    for s_ in range(32):
        last = max(i for i, (k, t) in enumerate(issued) if t == s_)
        left = len(issued) - 1 - last
        a(f's_waitcnt vmcnt({min(left, 63)})')
        for e in range(2):
            for tq in range(3):
                acc = ACC + (e * 3 + tq) * 4
                c = '0' if s_ == 0 else vr(acc, 4)
                a(f'v_mfma_f32_16x16x32_bf16 {vr(acc, 4)}, {vr(WF + (s_ % 16) * 8 + 4 * e, 4)}, {vr(OR + (s_ % 8) * 12 + 4 * tq, 4)}, {c}')
        if s_ + 8 < 32: o_load(s_ + 8)
        if s_ + 16 < 32: wo_load(s_ + 16)
    stamp(a, cfg, 3)
    a(f's_mul_i32 s54, {sr(S_W)}, 6144')
    a('v_add_u32 v7, s54, v4')
    a('s_nop 7')
    for t in range(6):
        a(f'ds_write_b128 v7, {vr(ACC + 4 * t, 4)} offset:{t * 1024}')
    a('s_waitcnt lgkmcnt(0)')
    a('s_barrier')
    a('v_and_b32 v2, 15, v0')
    a('v_lshrrev_b32 v1, 4, v0')
    a('v_lshlrev_b32 v2, 11, v2')
    a('v_lshl_add_u32 v2, v1, 3, v2')
    a('s_mov_b32 s12, s66')
    a('s_mov_b32 s13, s67')
    a('s_mov_b32 s14, 786432')
    a('s_mov_b32 s15, 0x20000')
    a('s_mul_i32 s58, s21, 48')
    a('s_lshl_b32 s58, s58, 11')
    a('s_lshl_b32 s56, s23, 10')
    a('s_add_u32 s58, s58, s56')
    a('s_lshl_b32 s56, s22, 6')
    a('s_add_u32 s58, s58, s56')
    a(f's_mov_b32 s59, {sr(S_W)}')
    a.label('PT_LOOP')
    a('s_lshl_b32 s54, s59, 10')
    a('v_add_u32 v7, s54, v4')
    for v in range(4):
        a(f'ds_read_b128 {vr(32 + 4 * v, 4)}, v7 offset:{v * 6144}')
    a('s_cmp_ge_u32 s59, 3')
    a('s_cselect_b32 s55, 1, 0')
    a('s_mul_i32 s56, s55, 3')
    a('s_sub_u32 s56, s59, s56')
    a('s_lshl_b32 s56, s56, 15')
    a('s_lshl_b32 s55, s55, 5')
    a('s_add_u32 s54, s58, s56')
    a('s_add_u32 s54, s54, s55')
    a('s_waitcnt lgkmcnt(0)')
    for r in range(4):
        a(f'v_add_f32 {vr(32 + r)}, {vr(32 + r)}, {vr(36 + r)}')
        a(f'v_add_f32 {vr(40 + r)}, {vr(40 + r)}, {vr(44 + r)}')
    for r in range(4):
        a(f'v_add_f32 {vr(32 + r)}, {vr(32 + r)}, {vr(40 + r)}')
    a('v_cvt_pk_bf16_f32 v48, v32, v33')
    a('v_cvt_pk_bf16_f32 v49, v34, v35')
    a('buffer_store_dwordx2 v[48:49], v2, s[12:15], s54 offen')
    a('s_add_u32 s59, s59, 4')
    a('s_cmp_lt_u32 s59, 6')
    a('s_cbranch_scc1 PT_LOOP')
    a('s_branch FIN')

HDR = open('cdna_kernels/' + NAME + '.s.ref').read().split('; Override launch')[0]

def kd(name, vgpr, sgpr):
    return f'''.amdhsa_kernel {name}
  .amdhsa_next_free_vgpr {vgpr}
  .amdhsa_next_free_sgpr {sgpr}
  .amdhsa_accum_offset {((vgpr + 3) // 4) * 4}
  .amdhsa_group_segment_fixed_size 0
  .amdhsa_kernarg_size 104
  .amdhsa_user_sgpr_count 2
  .amdhsa_user_sgpr_kernarg_segment_ptr 1
  .amdhsa_system_sgpr_workgroup_id_x 1
.end_amdhsa_kernel
'''

def gen(cfg):
    a = Asm()
    cfg.k1name = NAME + '_kernel'
    out = HDR
    out += '; @launch grid=(512,1,1) block=(256,1,1) lds=81920\n'
    out += '.amdgcn_target "amdgcn-amd-amdhsa--gfx950"\n.text\n'
    attn_kernel(a, cfg)
    out += a.text()
    out += '.section .rodata,"a"\n.p2align 6\n'
    out += kd(cfg.k1name, 256, 96)
    return out

if __name__ == '__main__':
    ap = argparse.ArgumentParser()
    ap.add_argument('-o', default='cdna_kernels/' + NAME + '.s')
    ap.add_argument('--stamps', type=int, default=0)
    ap.add_argument('--ntA', default='def')
    ap.add_argument('--modeA', type=int, default=1)
    ap.add_argument('--warm', type=int, default=1)
    ap.add_argument('--prioB', type=int, default=0)
    ap.add_argument('--ntB', default='nt')
    ap.add_argument('--modeB', type=int, default=1)
    ap.add_argument('--swapab', type=int, default=1)
    ap.add_argument('--only1', type=int, default=0)
    ap.add_argument('--k2ring', type=int, default=6)
    ap.add_argument('--sleep', type=int, default=16)
    ap.add_argument('--psc1', type=int, default=1)
    ap.add_argument('--bxor', type=int, default=0)
    cfg = ap.parse_args()
    def pf(x):
        x = x.replace('def', '')
        return tuple(x.split(',')) if ',' in x else (x, x)
    cfg.ntA = pf(cfg.ntA); cfg.ntB = pf(cfg.ntB)
    open(cfg.o, 'w').write(gen(cfg))
    print('wrote', cfg.o)
```

```python
import sys, argparse

NAME = 'concat_heads__gqa_block_cached__mha_block_cached__near_ridge'

class Asm:
    def __init__(self): self.L = []
    def __call__(self, s): self.L.append('    ' + s)
    def label(self, s): self.L.append(s + ':')
    def c(self, s): self.L.append('    ; ' + s)
    def text(self): return '\n'.join(self.L) + '\n'

def vr(b, n=1): return f'v{b}' if n == 1 else f'v[{b}:{b+n-1}]'
def sr(b, n=1): return f's{b}' if n == 1 else f's[{b}:{b+n-1}]'

VOFFK = 4
VOFFV = 8
KADDR = 10
VADDR = 14
MREF = 22
LSUM = 25
LT = 28
TMP = 31
T0 = 32
Q0 = 40
O0 = 88
S0 = 184
P0 = 208
F0 = 220
def Q(tq, kk): return Q0 + (tq * 4 + kk) * 4
def O(td, tq): return O0 + (td * 3 + tq) * 4
def S(kt, tq): return S0 + (kt * 3 + tq) * 4
def P(tq): return P0 + tq * 4
def KF(kt, kk): return F0 + (kt * 4 + kk) * 4
def VF(td): return F0 + td * 4

SK, SV, SX, SWQ = 4, 8, 12, 16
S_W, S_B, S_H, S_ISB = 20, 21, 22, 23
S_KOFF, S_VOFF, S_CNT = 24, 25, 26
S_KSLOT, S_VSLOT, S_SCR = 27, 28, 29
S_C, S_THR, S_SELLO, S_SELHI = 30, 31, 32, 33
S_T = 34
S_G = 58
S_KQ = 60
S_RING = 61
S_RCHK = 64
S_BASE = 64
S_SEC = 62
S_DBG, S_WS = 68, 70
S_STAMP = 76

KSLOT = lambda w: w * 8192
VSLOT = lambda w: 32768 + w * 8192

WS_O = 0
WS_WOF = 8 << 20
WS_QX = 16 << 20
WS_PX = 20 << 20
WS_FLAG = 40 << 20
WS_ML = 32 << 20

def stamp(a, cfg, k):
    if cfg.stamps:
        a(f's_memrealtime {sr(S_STAMP + 2 * k, 2)}')
        a('s_waitcnt lgkmcnt(0)')

def stamp_init(a, cfg):
    if cfg.stamps:
        for k in range(16): a(f's_mov_b32 s{S_STAMP + k}, 0')

def stamp_store(a, cfg, wsreg, rowbase, wavereg, endlabel):
    a('s_waitcnt vmcnt(0)')
    stamp(a, cfg, 7)
    a(f's_cmp_lg_u32 {wavereg}, 0')
    a(f's_cbranch_scc1 {endlabel}')
    a(f's_add_u32 s12, s{wsreg}, {0x10000000 + rowbase * 64}')
    a(f's_addc_u32 s13, s{wsreg + 1}, 0')
    a('s_lshl_b32 s54, s2, 6')
    a('s_add_u32 s12, s12, s54')
    a('s_addc_u32 s13, s13, 0')
    a('s_mov_b32 s14, 64')
    a('s_mov_b32 s15, 0x20000')
    a(f's_getreg_b32 s{S_STAMP + 10}, hwreg(HW_REG_HW_ID)')
    a(f's_getreg_b32 s{S_STAMP + 11}, hwreg(HW_REG_XCC_ID)')
    a('v_mbcnt_lo_u32_b32 v0, -1, 0')
    a('v_mbcnt_hi_u32_b32 v0, -1, v0')
    a('v_lshlrev_b32 v1, 2, v0')
    a('v_mov_b32 v2, 0')
    for k in range(16):
        a(f'v_mov_b32 v3, s{S_STAMP + k}')
        a(f'v_cmp_eq_u32 vcc, {k}, v0')
        a('s_nop 1')
        a('v_cndmask_b32 v2, v2, v3, vcc')
    a('buffer_store_dword v2, v1, s[12:15], 0 offen')

def tl(a, cfg):
    if cfg.stamps >= 2:
        a('s_memrealtime s[92:93]')
        a('s_waitcnt lgkmcnt(0)')
        a('s_mov_b32 m0, s59')
        a('s_nop 0')
        a('v_writelane_b32 v252, s92, m0')
        a('s_add_u32 s59, s59, 1')

def fl(nt): return (' ' + nt.replace('+', ' ')) if nt else ''

def dma_tile(a, cfg, srd, voffs, soff, slot, nt, inter=None):
    f = fl(nt)
    for n in range(8):
        if n == 0:
            a(f's_mov_b32 m0, {sr(slot)}')
            a(f's_add_u32 {sr(S_T)}, {sr(soff)}, 0x1000')
        if n == 4:
            a(f's_add_u32 m0, {sr(slot)}, 0x1000')
            a('s_nop 0')
        so = sr(soff) if n < 4 else sr(S_T)
        a(f'buffer_load_dwordx4 {vr(voffs(n))}, {sr(srd, 4)}, {so} offen offset:{(n & 3) * 1024}{f} lds')
        if inter:
            for s in inter[n]: a(s)
    a(f's_add_u32 {sr(soff)}, {sr(soff)}, 0x8000')
    a(f's_and_b32 {sr(soff)}, {sr(soff)}, 0x7ffff')

def xlane_reduce(a, op, x, tmp):
    a(f'v_mov_b32 {vr(tmp)}, {vr(x)}')
    a('s_nop 1')
    a(f'v_permlane32_swap_b32 {vr(x)}, {vr(tmp)}')
    a('s_nop 1')
    a(f'{op} {vr(x)}, {vr(x)}, {vr(tmp)}')
    a(f'v_mov_b32 {vr(tmp)}, {vr(x)}')
    a('s_nop 1')
    a(f'v_permlane16_swap_b32 {vr(x)}, {vr(tmp)}')
    a('s_nop 1')
    a(f'{op} {vr(x)}, {vr(x)}, {vr(tmp)}')

def qk_mfmas():
    mf = []
    for kk in range(4):
        for tq in range(3):
            for kt in range(2):
                c = '0' if kk == 0 else vr(S(kt, tq), 4)
                mf.append(f'v_mfma_f32_16x16x32_bf16 {vr(S(kt, tq), 4)}, {vr(KF(kt, kk), 4)}, {vr(Q(tq, kk), 4)}, {c}')
    return mf

def pv_mfmas():
    return [f'v_mfma_f32_16x16x32_bf16 {vr(O(td, tq), 4)}, {vr(VF(td), 4)}, {vr(P(tq), 4)}, {vr(O(td, tq), 4)}'
            for td in range(8) for tq in range(3)]

def softmax(a, cfg, tag):
    a('s_nop 2')
    a.label(f'SM_{tag}')
    for tq in range(3):
        A, B = T0, T0 + 4
        m = vr(MREF + tq)
        for r in range(4): a(f'v_fma_f32 {vr(A + r)}, {vr(S(0, tq) + r)}, {sr(S_C)}, -{m}')
        for r in range(4): a(f'v_fma_f32 {vr(B + r)}, {vr(S(1, tq) + r)}, {sr(S_C)}, -{m}')
        for r in range(4): a(f'v_exp_f32 {vr(A + r)}, {vr(A + r)}')
        for r in range(4): a(f'v_exp_f32 {vr(B + r)}, {vr(B + r)}')
        a(f'v_cvt_pk_bf16_f32 {vr(P(tq))}, {vr(A)}, {vr(A + 1)}')
        a(f'v_cvt_pk_bf16_f32 {vr(P(tq) + 1)}, {vr(A + 2)}, {vr(A + 3)}')
        a(f'v_add_f32 {vr(A)}, {vr(A)}, {vr(A + 1)}')
        a(f'v_add_f32 {vr(A + 2)}, {vr(A + 2)}, {vr(A + 3)}')
        a(f'v_cvt_pk_bf16_f32 {vr(P(tq) + 2)}, {vr(B)}, {vr(B + 1)}')
        a(f'v_cvt_pk_bf16_f32 {vr(P(tq) + 3)}, {vr(B + 2)}, {vr(B + 3)}')
        a(f'v_add_f32 {vr(B)}, {vr(B)}, {vr(B + 1)}')
        a(f'v_add_f32 {vr(B + 2)}, {vr(B + 2)}, {vr(B + 3)}')
        a(f'v_add_f32 {vr(A)}, {vr(A)}, {vr(A + 2)}')
        a(f'v_add_f32 {vr(B)}, {vr(B)}, {vr(B + 2)}')
        a(f'v_add_f32 {vr(LT + tq)}, {vr(A)}, {vr(B)}')
    a(f'v_max3_f32 {vr(TMP)}, {vr(LT)}, {vr(LT + 1)}, {vr(LT + 2)}')
    a(f'v_cmp_lt_f32 vcc, {sr(S_THR)}, {vr(TMP)}')
    a(f's_cbranch_vccnz SLOW_{tag}')
    a(f's_mov_b32 {sr(S_THR)}, 0x43800000')
    for tq in range(3): a(f'v_add_f32 {vr(LSUM + tq)}, {vr(LSUM + tq)}, {vr(LT + tq)}')

def body_b(a, cfg, tag, prefetch, nt, mode):
    ser = (mode == 1)
    kdma = lambda inter=None: dma_tile(a, cfg, SK, lambda n: VOFFK + (n & 3), S_KOFF, S_KSLOT, nt[0], inter)
    vdma = lambda inter=None: dma_tile(a, cfg, SV, lambda n: VOFFV + (n & 1), S_VOFF, S_VSLOT, nt[1], inter)
    a(f's_waitcnt vmcnt({0 if ser else 8})')
    tl(a, cfg)
    for kt in range(2):
        for kk in range(4):
            a(f'ds_read_b128 {vr(KF(kt, kk), 4)}, {vr(KADDR + kk)} offset:{kt * 4096}')
    a('s_waitcnt lgkmcnt(0)')
    mf = qk_mfmas()
    inter = [mf[3 * n:3 * n + 3] for n in range(8)]
    if ser: vdma(inter)
    elif prefetch and mode in (0, 3): kdma(inter)
    else:
        for s_ in mf: a(s_)
    softmax(a, cfg, tag)
    if prefetch and mode == 2: kdma()
    a(f's_waitcnt vmcnt({8 if (prefetch and not ser) else 0})')
    tl(a, cfg)
    for td in range(8):
        a(f'ds_read_b64_tr_b16 {vr(VF(td), 2)}, {vr(VADDR + td)}')
        a(f'ds_read_b64_tr_b16 {vr(VF(td) + 2, 2)}, {vr(VADDR + td)} offset:4096')
    a('s_waitcnt lgkmcnt(0)')
    mf = pv_mfmas()
    inter = [mf[3 * n:3 * n + 3] for n in range(8)]
    if prefetch and ser: kdma(inter)
    elif prefetch and mode == 0: vdma(inter)
    else:
        for s_ in mf: a(s_)
        if prefetch and mode in (2, 3): vdma()

def a_dma(a, cfg, srd, voff, soff, ldsbase, nt):
    a(f's_mov_b32 m0, {sr(ldsbase)}')
    a('s_nop 0')
    for p in range(2):
        a(f'buffer_load_dwordx4 {vr(voff + p)}, {sr(srd, 4)}, {sr(soff)} offen offset:{p * 1024}{fl(nt)} lds')

def body_a(a, cfg, tag):
    nt = cfg.ntA
    a('s_waitcnt vmcnt(8)')
    a('s_barrier')
    tl(a, cfg)
    for kt in range(2):
        for kk in range(4):
            a(f'ds_read_b128 {vr(KF(kt, kk), 4)}, {vr(KADDR + kk)} offset:{kt * 4096}')
    a_dma(a, cfg, SK, VOFFK, S_KOFF, S_RING, nt[0])
    a(f's_add_u32 {sr(S_T)}, {sr(S_RING)}, 0x8000')
    a_dma(a, cfg, SV, VOFFV, S_KOFF, S_T, nt[1])
    a(f's_add_u32 {sr(S_KOFF)}, {sr(S_KOFF)}, 0x2000')
    a(f's_add_u32 {sr(S_RING)}, {sr(S_RING)}, 0x2000')
    a(f's_and_b32 {sr(S_RING)}, {sr(S_RING)}, 0x7fff')
    for kk in range(4):
        a(f'v_add_u32 {vr(KADDR + kk)}, 0x2000, {vr(KADDR + kk)}')
    for kk in range(4):
        a(f'v_and_b32 {vr(KADDR + kk)}, 0x7fff, {vr(KADDR + kk)}')
    a('s_waitcnt lgkmcnt(0)')
    for s_ in qk_mfmas(): a(s_)
    softmax(a, cfg, tag)
    for td in range(8):
        a(f'ds_read_b64_tr_b16 {vr(VF(td), 2)}, {vr(VADDR + td)} offset:32768')
        a(f'ds_read_b64_tr_b16 {vr(VF(td) + 2, 2)}, {vr(VADDR + td)} offset:{32768 + 4096}')
    for td in range(8):
        a(f'v_add_u32 {vr(VADDR + td)}, 0x2000, {vr(VADDR + td)}')
    for td in range(8):
        a(f'v_and_b32 {vr(VADDR + td)}, 0x7fff, {vr(VADDR + td)}')
    a('s_waitcnt lgkmcnt(0)')
    for s_ in pv_mfmas(): a(s_)

def slow(a, cfg, tag):
    a.label(f'SLOW_{tag}')
    for tq in range(3):
        mx = T0 + tq
        s0, s1 = S(0, tq), S(1, tq)
        a(f'v_max3_f32 {vr(mx)}, {vr(s0)}, {vr(s0 + 1)}, {vr(s0 + 2)}')
        a(f'v_max3_f32 {vr(mx)}, {vr(mx)}, {vr(s0 + 3)}, {vr(s1)}')
        a(f'v_max3_f32 {vr(mx)}, {vr(mx)}, {vr(s1 + 1)}, {vr(s1 + 2)}')
        a(f'v_max_f32 {vr(mx)}, {vr(mx)}, {vr(s1 + 3)}')
    for tq in range(3):
        xlane_reduce(a, 'v_max_f32', T0 + tq, TMP)
    for tq in range(3):
        mx, al = T0 + tq, T0 + 4 + tq
        a(f'v_mul_f32 {vr(mx)}, {sr(S_C)}, {vr(mx)}')
        a(f'v_max_f32 {vr(mx)}, {vr(mx)}, {vr(MREF + tq)}')
        a(f'v_sub_f32 {vr(al)}, {vr(MREF + tq)}, {vr(mx)}')
        a(f'v_exp_f32 {vr(al)}, {vr(al)}')
        a(f'v_mov_b32 {vr(MREF + tq)}, {vr(mx)}')
        a(f'v_mul_f32 {vr(LSUM + tq)}, {vr(LSUM + tq)}, {vr(al)}')
        for td in range(8):
            for r in range(4):
                a(f'v_mul_f32 {vr(O(td, tq) + r)}, {vr(O(td, tq) + r)}, {vr(al)}')
    a(f's_mov_b32 {sr(S_THR)}, 0x7f800000')
    a(f's_branch SM_{tag}')

def srd(a, dst, base, off_sgpr, nrec, off_imm=0):
    if off_imm:
        a(f's_add_u32 {off_sgpr}, {off_sgpr}, {off_imm}')
    a(f's_add_u32 s{dst}, s{base}, {off_sgpr}')
    a(f's_addc_u32 s{dst + 1}, s{base + 1}, 0')
    a(f's_mov_b32 s{dst + 2}, {nrec}')
    a(f's_mov_b32 s{dst + 3}, 0x20000')

def sync_group(a, cfg, tag, add, shift):
    a('s_barrier')
    a(f's_cmp_lg_u32 {sr(S_W)}, 0')
    a(f's_cbranch_scc1 {tag}_D')
    a('s_mov_b32 s12, s68')
    a('s_mov_b32 s13, s69')
    a('s_mov_b32 s14, 256')
    a('s_mov_b32 s15, 0x20000')
    a(f's_lshl_b32 s54, {sr(S_G)}, 2')
    a('v_mov_b32 v2, s54')
    a(f'v_mov_b32 v1, {add}')
    a('s_mov_b64 exec, 1')
    a('buffer_atomic_add v1, v2, s[12:15], 0 offen sc1')
    a('s_mov_b64 exec, -1')
    a('s_mov_b32 s56, 0x40000')
    a.label(f'{tag}_L')
    a('buffer_load_dword v1, v2, s[12:15], 0 offen sc1')
    a('s_waitcnt vmcnt(0)')
    a(f'v_bfe_u32 v1, v1, {shift}, 8')
    a('v_cmp_ne_u32 vcc, 4, v1')
    a(f's_cbranch_vccz {tag}_D')
    a(f's_sleep {cfg.sleep}')
    a('s_sub_u32 s56, s56, 1')
    a('s_cmp_lg_u32 s56, 0')
    a(f's_cbranch_scc1 {tag}_L')
    a.label(f'{tag}_D')
    a('s_barrier')

RCNT_OFF = 192

def signal(a, tag, off_sgpr, off_imm):
    a('s_mov_b32 s12, s68')
    a('s_mov_b32 s13, s69')
    a('s_mov_b32 s14, 256')
    a('s_mov_b32 s15, 0x20000')
    a('s_mov_b64 exec, 1')
    a('v_mov_b32 v248, 1')
    a(f'v_mov_b32 v249, {off_sgpr if off_sgpr else off_imm}')
    a('buffer_atomic_add v248, v249, s[12:15], 0 offen sc1')
    a('s_mov_b64 exec, -1')

def proj_ids(a):
    pass

def flag_line(a, dst):
    a('s_and_b32 s54, s2, 7')
    a('s_lshr_b32 s55, s2, 3')
    a('s_and_b32 s55, s55, 31')
    a('s_lshr_b32 s56, s54, 1')
    a('s_lshl_b32 s56, s56, 2')
    a('s_lshr_b32 s55, s55, 3')
    a('s_add_u32 s56, s56, s55')
    a(f's_lshl_b32 {dst}, s56, 7')

def rflag_line(a, dst):
    a('s_and_b32 s54, s2, 7')
    a('s_lshr_b32 s55, s2, 3')
    a('s_and_b32 s55, s55, 7')
    a('s_and_b32 s56, s54, 1')
    a('s_lshl_b32 s56, s56, 3')
    a('s_add_u32 s56, s56, s55')
    a('s_lshr_b32 s56, s56, 2')
    a('s_lshr_b32 s54, s54, 2')
    a('s_lshl_b32 s54, s54, 2')
    a('s_add_u32 s56, s56, s54')
    a('s_lshl_b32 s56, s56, 7')
    a(f's_add_u32 {dst}, s56, 2048')

def body_up(a, cfg, tag, nt):
    kdma = lambda inter=None: dma_tile(a, cfg, SK, lambda n: VOFFK + (n & 3), S_KOFF, S_KSLOT, nt[0], inter)
    vdma = lambda inter=None: dma_tile(a, cfg, SV, lambda n: VOFFV + (n & 1), S_VOFF, S_VSLOT, nt[1], inter)
    a('s_waitcnt vmcnt(0)')
    for kt in range(2):
        for kk in range(4):
            a(f'ds_read_b128 {vr(KF(kt, kk), 4)}, {vr(KADDR + kk)} offset:{kt * 4096}')
    a('s_waitcnt lgkmcnt(0)')
    mf = qk_mfmas()
    vdma([mf[3 * n:3 * n + 3] for n in range(8)])
    kdma()
    softmax(a, cfg, tag)
    a('s_waitcnt vmcnt(8)')
    for td in range(8):
        a(f'ds_read_b64_tr_b16 {vr(VF(td), 2)}, {vr(VADDR + td)}')
        a(f'ds_read_b64_tr_b16 {vr(VF(td) + 2, 2)}, {vr(VADDR + td)} offset:4096')
    a('s_waitcnt lgkmcnt(0)')
    mf = pv_mfmas()
    vdma([mf[3 * n:3 * n + 3] for n in range(8)])

def loop_consts(a, kbase, vbase, cfg):
    a('v_lshrrev_b32 v1, 4, v0')
    a('v_and_b32 v2, 15, v0')
    a('v_and_b32 v3, 4, v2')
    a('v_lshlrev_b32 v3, 1, v3')
    a('v_xor_b32 v3, v2, v3')
    a(f'v_lshlrev_b32 {vr(TMP)}, 2, v1')
    a(f'v_xor_b32 {vr(TMP)}, {vr(TMP)}, v3')
    a(f'v_lshlrev_b32 {vr(TMP)}, 4, {vr(TMP)}')
    a(f'v_lshl_add_u32 {vr(KADDR)}, v2, 8, {vr(TMP)}')
    if kbase: a(f'v_add_u32 {vr(KADDR)}, {kbase}, {vr(KADDR)}')
    for kk in range(1, 4): a(f'v_xor_b32 {vr(KADDR + kk)}, {kk << 4}, {vr(KADDR)}')
    a('v_lshrrev_b32 v3, 2, v2')
    a('v_lshl_add_u32 v3, v1, 2, v3')
    a(f'v_and_b32 {vr(TMP)}, 7, v3')
    a(f'v_lshlrev_b32 {vr(TMP)}, 5, {vr(TMP)}')
    a(f'v_lshl_add_u32 {vr(TMP)}, v3, 8, {vr(TMP)}')
    a('v_and_b32 v3, 3, v2')
    a(f'v_lshl_add_u32 {vr(VADDR)}, v3, 3, {vr(TMP)}')
    if vbase: a(f'v_add_u32 {vr(VADDR)}, {vbase}, {vr(VADDR)}')
    for td in range(1, 8): a(f'v_xor_b32 {vr(VADDR + td)}, {td << 5}, {vr(VADDR)}')
    if not cfg.noinit:
        for r in range(96): a(f'v_mov_b32 {vr(O0 + r)}, 0')
    for tq in range(3):
        a(f'v_mov_b32 {vr(MREF + tq)}, 0xff800000')
        a(f'v_mov_b32 {vr(LSUM + tq)}, 0')

def attn_kernel(a, cfg):
    K = cfg.k1name
    a.L.append(f'.globl {K}')
    a.L.append('.p2align 8')
    a.L.append(f'.type {K},@function')
    a.label(K)
    a('s_cmp_ge_u32 s2, 512')
    a('s_cbranch_scc1 K1_END')
    stamp_init(a, cfg)
    stamp(a, cfg, 0)
    a('s_load_dwordx8 s[36:43], s[0:1], 0')
    a('s_load_dwordx8 s[44:51], s[0:1], 40')
    a('s_load_dwordx4 s[68:71], s[0:1], 88')
    a('s_load_dwordx2 s[72:73], s[0:1], 32')
    a('s_load_dwordx2 s[74:75], s[0:1], 72')
    a('s_load_dwordx2 s[66:67], s[0:1], 80')
    a(f's_lshr_b32 {sr(S_SEC)}, s2, 8')
    a('v_lshrrev_b32 v1, 6, v0')
    a('v_and_b32 v0, 63, v0')
    a('s_and_b32 s34, s2, 7')
    a('s_lshr_b32 s35, s2, 3')
    if cfg.typemode == 0:
        a(f's_lshr_b32 {sr(S_ISB)}, s35, 5')
        a('s_and_b32 s35, s35, 31')
    else:
        a(f's_and_b32 {sr(S_ISB)}, s35, 1')
        a('s_lshr_b32 s35, s35, 1')
    if cfg.swapab:
        a(f's_xor_b32 {sr(S_ISB)}, {sr(S_ISB)}, 1')
    a(f'v_readfirstlane_b32 {sr(S_W)}, v1')
    a(f's_lshr_b32 {sr(S_B)}, s35, 2')
    if cfg.bxor: a(f's_xor_b32 {sr(S_B)}, {sr(S_B)}, {cfg.bxor}')
    a(f's_and_b32 {sr(S_KQ)}, s35, 3')
    a('s_lshl_b32 s54, s34, 2')
    a(f's_add_u32 {sr(S_H)}, s54, {sr(S_KQ)}')
    a(f's_lshl_b32 {sr(S_G)}, {sr(S_B)}, 3')
    a(f's_add_u32 {sr(S_G)}, {sr(S_G)}, s34')
    a(f's_lshl_b32 s55, {sr(S_B)}, 5')
    a(f's_add_u32 s55, s55, {sr(S_H)}')
    a(f's_mov_b32 s56, {0x80000 - 3 * 8192}')
    a(f's_cmp_eq_u32 {sr(S_ISB)}, 1')
    a(f's_cselect_b32 s54, s55, {sr(S_G)}')
    a('s_mov_b32 s57, s35')
    a('s_waitcnt lgkmcnt(0)')
    a('s_cselect_b64 s[36:37], s[44:45], s[36:37]')
    a('s_cselect_b64 s[38:39], s[46:47], s[38:39]')
    a('s_cselect_b64 s[40:41], s[48:49], s[40:41]')
    a('s_cselect_b64 s[42:43], s[50:51], s[42:43]')
    a('s_lshl_b32 s54, s54, 19')
    a(f's_lshl_b32 s55, {sr(S_W)}, 13')
    a('s_add_u32 s54, s54, s55')
    a(f's_add_u32 s{SK}, s38, s54')
    a(f's_addc_u32 s{SK+1}, s39, 0')
    a(f's_mov_b32 s{SK+2}, s56')
    a(f's_mov_b32 s{SK+3}, 0x20000')
    a(f's_add_u32 s{SV}, s40, s54')
    a(f's_addc_u32 s{SV+1}, s41, 0')
    a(f's_mov_b32 s{SV+2}, s56')
    a(f's_mov_b32 s{SV+3}, 0x20000')
    if cfg.qrot:
        a(f's_lshr_b32 s64, {sr(S_B)}, 2')
        a('s_lshl_b32 s64, s64, 1')
        if cfg.qrot == 2: a(f's_add_u32 s64, s64, {sr(S_KQ)}')
        a(f's_add_u32 s64, s64, {sr(S_W)}')
        a('s_and_b32 s64, s64, 3')
        a(f's_and_b32 s65, {sr(S_B)}, 3')
    else:
        a(f's_mov_b32 s64, {sr(S_W)}')
        a('s_mov_b32 s65, 0')
    a(f's_mul_i32 s54, {sr(S_B)}, 49152')
    a('s_lshl_b32 s55, s64, 8')
    a('s_add_u32 s54, s54, s55')
    a(f's_add_u32 s{SX}, s36, s54')
    a(f's_addc_u32 s{SX+1}, s37, 0')
    a(f's_sub_u32 s{SX+2}, 393216, s54')
    a(f's_mov_b32 s{SX+3}, 0x20000')
    a('s_lshl_b32 s54, s64, 20')
    a(f's_lshl_b32 s55, {sr(S_H)}, 8')
    a('s_add_u32 s54, s54, s55')
    a(f's_add_u32 s{SWQ}, s42, s54')
    a(f's_addc_u32 s{SWQ+1}, s43, 0')
    a(f's_sub_u32 s{SWQ+2}, 4194304, s54')
    a(f's_mov_b32 s{SWQ+3}, 0x20000')
    a(f's_lshl_b32 {sr(S_KSLOT)}, {sr(S_W)}, 13')
    a(f's_add_u32 {sr(S_VSLOT)}, {sr(S_KSLOT)}, 32768')
    a(f's_lshl_b32 {sr(S_SCR)}, {sr(S_W)}, 12')
    a(f's_add_u32 {sr(S_SCR)}, {sr(S_SCR)}, 65536')
    a('v_lshrrev_b32 v1, 4, v0')
    a('v_and_b32 v2, 15, v0')
    a('v_xor_b32 v3, v2, v1')
    for n, hk in enumerate([0, 3, 2, 1]):
        a(f'v_xor_b32 {vr(VOFFK + n)}, {hk << 2}, v3')
        a(f'v_lshlrev_b32 {vr(VOFFK + n)}, 4, {vr(VOFFK + n)}')
        a(f'v_lshl_add_u32 {vr(VOFFK + n)}, v1, 8, {vr(VOFFK + n)}')
    RAW = [10, 42, 184, 216]
    XF = 74
    TT = 248
    XA = 86
    XOFF = O0
    WQOFF = 2
    a('v_mul_u32_u24 v3, 768, v1')
    for n in range(4): a(f'v_add_u32 {vr(XOFF + n)}, {vr(VOFFK + n)}, v3')
    def k0_issue(tg):
        a(f's_mov_b32 {sr(S_KOFF)}, 0')
        a(f's_mov_b32 {sr(S_VOFF)}, 0')
        if cfg.ntA[0] == cfg.ntB[0]:
            dma_tile(a, cfg, SK, lambda n: VOFFK + (n & 3), S_KOFF, S_KSLOT, cfg.ntB[0])
        else:
            a(f's_cmp_eq_u32 {sr(S_ISB)}, 1')
            a(f's_cbranch_scc1 K0_B{tg}')
            dma_tile(a, cfg, SK, lambda n: VOFFK + (n & 3), S_KOFF, S_KSLOT, cfg.ntA[0])
            a(f's_branch K0_E{tg}')
            a.label(f'K0_B{tg}')
            dma_tile(a, cfg, SK, lambda n: VOFFK + (n & 3), S_KOFF, S_KSLOT, cfg.ntB[0])
            a.label(f'K0_E{tg}')
    for n in range(12):
        if n < 8: a(f's_add_u32 m0, {sr(S_VSLOT)}, {n * 1024}')
        else: a(f's_add_u32 m0, {sr(S_SCR)}, {(n - 8) * 1024}')
        a(f's_mov_b32 {sr(S_T)}, {n * 4096}')
        a(f'buffer_load_dwordx4 {vr(XOFF + (n & 3))}, {sr(SX, 4)}, {sr(S_T)} offen lds')
    for p in range(2):
        a(f'v_add_u32 v3, {4 * p}, v1')
        a('v_lshlrev_b32 v3, 1, v3')
        a('v_xor_b32 v3, v2, v3')
        a('v_lshlrev_b32 v3, 4, v3')
        a(f'v_lshl_add_u32 {vr(VOFFV + p)}, v1, 8, v3')
    a('v_and_b32 v3, 4, v2')
    a('v_lshlrev_b32 v3, 1, v3')
    a('v_xor_b32 v3, v2, v3')
    a(f'v_xor_b32 {vr(XA)}, v1, v3')
    a(f'v_lshlrev_b32 {vr(XA)}, 4, {vr(XA)}')
    a(f'v_lshl_add_u32 {vr(XA)}, v2, 8, {vr(XA)}')
    a('v_lshlrev_b32 v2, 4, v2')
    a('v_lshl_add_u32 v2, v1, 16, v2')
    def wq_loads(ks):
        a(f's_add_u32 s63, s65, {ks}')
        a('s_and_b32 s63, s63, 3')
        a('s_lshl_b32 s63, s63, 18')
        for n in range(8):
            a(f's_add_u32 {sr(S_T)}, s63, {n * 8192}')
            a(f'buffer_load_dwordx4 {vr(RAW[ks] + 4 * n, 4)}, {vr(WQOFF)}, {sr(SWQ, 4)}, {sr(S_T)} offen')
    wq_loads(0); wq_loads(1)
    if cfg.pro == 0:
        wq_loads(2); wq_loads(3)
        k0_issue('F')
    elif cfg.pro == 2:
        wq_loads(2)
    a(f's_mov_b32 {sr(S_C)}, 0x3e0293ee')
    a(f's_mov_b32 {sr(S_THR)}, 0x43800000')
    a(f's_mov_b32 {sr(S_SELLO)}, 0x05040100')
    a(f's_mov_b32 {sr(S_SELHI)}, 0x07060302')
    def xread(ks):
        a(f's_add_u32 s63, s65, {ks}')
        a('s_and_b32 s63, s63, 3')
        a('s_lshl_b32 s63, s63, 6')
        a(f'v_xor_b32 v3, s63, {vr(XA)}')
        a(f'v_add_u32 v87, {sr(S_VSLOT)}, v3')
        a(f'v_add_u32 v3, {sr(S_SCR)}, v3')
        a(f'ds_read_b128 {vr(XF, 4)}, v87')
        a(f'ds_read_b128 {vr(XF + 4, 4)}, v87 offset:4096')
        a(f'ds_read_b128 {vr(XF + 8, 4)}, v3')
    def qproj(ks):
        Rb = RAW[ks]
        def perms(e, T):
            m, p = e >> 1, e & 1
            sel = S_SELHI if p else S_SELLO
            for q4 in range(4):
                a(f'v_perm_b32 {vr(T + q4)}, {vr(Rb + 4 * (2 * q4 + 1) + m)}, {vr(Rb + 4 * (2 * q4) + m)}, {sr(sel)}')
        def mfmas(e, T):
            for tq in range(3):
                c = '0' if ks == 0 else vr(O(e, tq), 4)
                a(f'v_mfma_f32_16x16x32_bf16 {vr(O(e, tq), 4)}, {vr(T, 4)}, {vr(XF + 4 * tq, 4)}, {c}')
        Ts = [TT, TT + 4]
        xread(ks)
        perms(0, Ts[0])
        for e in range(8):
            if e < 7: perms(e + 1, Ts[(e + 1) & 1])
            else: a('s_nop 1')
            if e == 0: a('s_waitcnt lgkmcnt(0)')
            mfmas(e, Ts[e & 1])
    if cfg.pro == 0:
        a('s_waitcnt vmcnt(32)'); stamp(a, cfg, 1); qproj(0)
        a('s_waitcnt vmcnt(24)'); qproj(1)
        a('s_waitcnt vmcnt(16)'); qproj(2)
        a('s_waitcnt vmcnt(8)'); qproj(3)
    elif cfg.pro == 1:
        a('s_waitcnt vmcnt(8)'); stamp(a, cfg, 1); qproj(0)
        wq_loads(2)
        a('s_waitcnt vmcnt(8)'); qproj(1)
        wq_loads(3); k0_issue('F')
        a('s_waitcnt vmcnt(16)'); qproj(2)
        a('s_waitcnt vmcnt(8)'); qproj(3)
    else:
        a('s_waitcnt vmcnt(16)'); stamp(a, cfg, 1); qproj(0)
        wq_loads(3); k0_issue('F')
        a('s_waitcnt vmcnt(24)'); qproj(1)
        a('s_waitcnt vmcnt(16)'); qproj(2)
        a('s_waitcnt vmcnt(8)'); qproj(3)
    stamp(a, cfg, 2)
    a('v_lshlrev_b32 v1, 4, v0')
    a('v_add_u32 v3, 65536, v1')
    a('s_nop 5')
    def reg_u(w, u):
        if u < 8: return ('v1', VSLOT(w) + u * 1024)
        return ('v3', w * 4096 + (u - 8) * 1024)
    RB = 10
    for w in range(4):
        if w < 3:
            a(f's_cmp_eq_u32 {sr(S_W)}, {w}')
            a(f's_cbranch_scc0 QR_{w + 1}')
        for rhos in ([1, 2], [3]):
            for k, rho in enumerate(rhos):
                dst = (w + rho) & 3
                for s in range(2):
                    for tq in range(3):
                        b_, off = reg_u(w, k * 6 + s * 3 + tq)
                        a(f'ds_write_b128 {b_}, {vr(O(2 * dst + s, tq), 4)} offset:{off}')
            a('s_waitcnt lgkmcnt(0)')
            a('s_barrier')
            for k, rho in enumerate(rhos):
                src = (w - rho) & 3
                for s in range(2):
                    for tq in range(3):
                        b_, off = reg_u(src, k * 6 + s * 3 + tq)
                        a(f'ds_read_b128 {vr(RB + (k * 6 + s * 3 + tq) * 4, 4)}, {b_} offset:{off}')
            for k, rho in enumerate(rhos):
                a(f's_waitcnt lgkmcnt({6 * (len(rhos) - 1 - k)})')
                for s in range(2):
                    for tq in range(3):
                        for r in range(4):
                            o = O(2 * w + s, tq) + r
                            a(f'v_add_f32 {vr(o)}, {vr(o)}, {vr(RB + (k * 6 + s * 3 + tq) * 4 + r)}')
            if rhos[0] == 1: a('s_barrier')
        for tq in range(3):
            for r in range(4):
                a(f'v_cvt_pk_bf16_f32 {vr(RB + 4 * tq + r)}, {vr(O(2 * w, tq) + r)}, {vr(O(2 * w + 1, tq) + r)}')
        for tq in range(3):
            for r in range(4):
                a(f'ds_write_b32 v3, {vr(RB + 4 * tq + r)} offset:{tq * 4096 + r * 1024 + w * 4}')
        if w < 3:
            a('s_branch QR_END')
            a.label(f'QR_{w + 1}')
    a.label('QR_END')
    a('s_waitcnt lgkmcnt(0)')
    a('s_barrier')
    a(f's_cmp_eq_u32 {sr(S_SEC)}, 0')
    a('s_cbranch_scc1 RS_SKIP')
    a(f's_cmp_lg_u32 {sr(S_W)}, 0')
    a('s_cbranch_scc1 RS_SKIP')
    a('v_lshlrev_b32 v249, 2, v0')
    flag_line(a, 's57')
    srd(a, 12, S_WS, 's57', 128, WS_FLAG)
    a('buffer_load_dword v253, v249, s[12:15], 0 offen sc1')
    a.label('RS_SKIP')
    for tq in range(3):
        for kk in range(4):
            a(f'ds_read_b128 {vr(Q(tq, kk), 4)}, v3 offset:{tq * 4096 + kk * 1024}')
    variants = [('A', cfg.ntA, cfg.upA, cfg.lateA), ('B', cfg.ntB, cfg.upB, cfg.lateB)]
    loop_consts(a, sr(S_KSLOT), sr(S_VSLOT), cfg)
    a('s_waitcnt lgkmcnt(0)')
    stamp(a, cfg, 3)
    a(f's_cmp_eq_u32 {sr(S_ISB)}, 1')
    a('s_cbranch_scc1 START_B')
    tags = []
    for v, nt, nlate, mlate in variants:
        a.label(f'START_{v}')
        nser = 15 if nlate == 0 else 16 - nlate
        a(f's_mov_b32 {sr(S_CNT)}, {nser}')
        a.L.append('.p2align 3')
        a.label(f'LOOP_{v}')
        body_b(a, cfg, f'{v}L', True, nt, 1)
        a(f's_sub_u32 {sr(S_CNT)}, {sr(S_CNT)}, 1')
        a(f's_cmp_lg_u32 {sr(S_CNT)}, 0')
        a(f's_cbranch_scc1 LOOP_{v}')
        tags.append(f'{v}L')
        if nlate:
            assert nlate >= 2
            body_up(a, cfg, f'{v}U', nt); tags.append(f'{v}U')
            if nlate > 2:
                a(f's_mov_b32 {sr(S_CNT)}, {nlate - 2}')
                a.L.append('.p2align 3')
                a.label(f'LOOP2_{v}')
                body_b(a, cfg, f'{v}2', True, nt, mlate)
                a(f's_sub_u32 {sr(S_CNT)}, {sr(S_CNT)}, 1')
                a(f's_cmp_lg_u32 {sr(S_CNT)}, 0')
                a(f's_cbranch_scc1 LOOP2_{v}')
                tags.append(f'{v}2')
            body_b(a, cfg, f'{v}F', False, nt, mlate)
        else:
            body_b(a, cfg, f'{v}F', False, nt, 1)
        tags.append(f'{v}F')
        if v != variants[-1][0]: a('s_branch LAST')
    a.label('LAST')
    stamp(a, cfg, 4)
    for tq in range(3): xlane_reduce(a, 'v_add_f32', LSUM + tq, TMP)
    a('v_lshlrev_b32 v1, 4, v0')
    a('v_add_u32 v3, 65536, v1')
    a('v_lshlrev_b32 v2, 2, v0')
    a('v_add_u32 v2, 65536, v2')
    a(f's_lshl_b32 s54, {sr(S_ISB)}, 3')
    a(f's_add_u32 s54, s54, {sr(S_B)}')
    a('s_mul_i32 s54, s54, 393216')
    a(f's_lshl_b32 s55, {sr(S_H)}, 2')
    a(f's_add_u32 s55, s55, {sr(S_W)}')
    a('s_lshl_b32 s55, s55, 10')
    a('s_add_u32 s54, s54, s55')
    srd(a, SX, S_WS, 's54', 2 * 131072 + 1024, WS_O)
    def lds_u(w, u):
        if u < 8: return ('v1', KSLOT(w) + u * 1024)
        if u < 16: return ('v1', VSLOT(w) + (u - 8) * 1024)
        return ('v3', w * 4096 + (u - 16) * 1024)
    for w in range(4):
        if w < 3:
            a(f's_cmp_eq_u32 {sr(S_W)}, {w}')
            a(f's_cbranch_scc0 EP_{w + 1}')
        for k in range(3):
            a(f'ds_write_b32 v2, {vr(MREF + k)} offset:{w * 4096 + 2048 + k * 256}')
            a(f'ds_write_b32 v2, {vr(LSUM + k)} offset:{w * 4096 + 2048 + (3 + k) * 256}')
        for rho in range(1, 4):
            dst = (w + rho) & 3
            for s in range(2):
                for tq in range(3):
                    b_, off = lds_u(w, (rho - 1) * 6 + s * 3 + tq)
                    a(f'ds_write_b128 {b_}, {vr(O(2 * dst + s, tq), 4)} offset:{off}')
        a('s_waitcnt lgkmcnt(0)')
        a('s_barrier')
        for w2 in range(4):
            for k in range(6):
                a(f'ds_read_b32 {vr(F0 + w2 * 6 + k)}, v2 offset:{w2 * 4096 + 2048 + k * 256}')
        def buf(idx): return Q0 + idx * 4 if idx < 12 else S0 + (idx - 12) * 4
        idx = 0; where = {}
        for rho in range(1, 4):
            src = (w - rho) & 3
            for s in range(2):
                for tq in range(3):
                    b_, off = lds_u(src, (rho - 1) * 6 + s * 3 + tq)
                    a(f'ds_read_b128 {vr(buf(idx), 4)}, {b_} offset:{off}')
                    where[(src, s, tq)] = buf(idx); idx += 1
        a('s_waitcnt lgkmcnt(0)')
        for tq in range(3):
            M = T0 + tq
            m = lambda w2: F0 + w2 * 6 + tq
            l = lambda w2: F0 + w2 * 6 + 3 + tq
            a(f'v_max3_f32 {vr(M)}, {vr(m(0))}, {vr(m(1))}, {vr(m(2))}')
            a(f'v_max_f32 {vr(M)}, {vr(M)}, {vr(m(3))}')
            for w2 in range(4): a(f'v_sub_f32 {vr(m(w2))}, {vr(m(w2))}, {vr(M)}')
            for w2 in range(4): a(f'v_exp_f32 {vr(m(w2))}, {vr(m(w2))}')
            a('s_nop 0')
            a(f'v_mul_f32 {vr(M)}, {vr(m(0))}, {vr(l(0))}')
            for w2 in range(1, 4): a(f'v_fma_f32 {vr(M)}, {vr(m(w2))}, {vr(l(w2))}, {vr(M)}')
            a(f'v_rcp_f32 {vr(M)}, {vr(M)}')
            a('s_nop 0')
            for w2 in range(4): a(f'v_mul_f32 {vr(m(w2))}, {vr(m(w2))}, {vr(M)}')
            for s in range(2):
                o = O(2 * w + s, tq)
                for r in range(4): a(f'v_mul_f32 {vr(o + r)}, {vr(o + r)}, {vr(m(w))}')
                for w2 in range(4):
                    if w2 == w: continue
                    for r in range(4):
                        a(f'v_fma_f32 {vr(o + r)}, {vr(where[(w2, s, tq)] + r)}, {vr(m(w2))}, {vr(o + r)}')
            d = P(tq)
            a(f'v_cvt_pk_bf16_f32 {vr(d)}, {vr(O(2 * w, tq))}, {vr(O(2 * w, tq) + 1)}')
            a(f'v_cvt_pk_bf16_f32 {vr(d + 1)}, {vr(O(2 * w, tq) + 2)}, {vr(O(2 * w, tq) + 3)}')
            a(f'v_cvt_pk_bf16_f32 {vr(d + 2)}, {vr(O(2 * w + 1, tq))}, {vr(O(2 * w + 1, tq) + 1)}')
            a(f'v_cvt_pk_bf16_f32 {vr(d + 3)}, {vr(O(2 * w + 1, tq) + 2)}, {vr(O(2 * w + 1, tq) + 3)}')
            a(f's_mov_b32 {sr(S_T)}, {tq * 131072}')
            a(f'buffer_store_dwordx4 {vr(d, 4)}, v1, {sr(SX, 4)}, {sr(S_T)} offen sc1')
        if w < 3:
            a('s_branch EP_END')
            a.label(f'EP_{w + 1}')
    a.label('EP_END')
    a('s_waitcnt vmcnt(0)')
    a('s_barrier')
    stamp(a, cfg, 6)
    a(f's_cmp_lg_u32 {sr(S_W)}, 0')
    a('s_cbranch_scc1 OSIG_SKIP')
    a('s_memrealtime s[56:57]')
    a(f's_lshl_b32 s54, {sr(S_ISB)}, 3')
    a(f's_add_u32 s54, s54, {sr(S_B)}')
    a('s_lshl_b32 s55, s54, 7')
    a(f's_lshl_b32 s65, {sr(S_H)}, 2')
    a('s_add_u32 s55, s55, s65')
    srd(a, 12, S_WS, 's55', 4, WS_FLAG)
    a('s_waitcnt lgkmcnt(0)')
    a('s_or_b32 s56, s56, 1')
    a('s_mov_b64 exec, 1')
    a('v_mov_b32 v248, s56')
    a('v_mov_b32 v249, 0')
    a('buffer_store_dword v248, v249, s[12:15], 0 offen sc1')
    a('s_mov_b64 exec, -1')
    a('s_lshl_b32 s54, s54, 3')
    signal(a, 'OS', 's54', 0)
    a.label('OSIG_SKIP')
    a(f's_cmp_eq_u32 {sr(S_SEC)}, 1')
    a('s_cbranch_scc1 PROJ')
    a.label('FIN')
    if cfg.stamps >= 2:
        a('s_add_u32 s12, s70, 0x14000000')
        a('s_addc_u32 s13, s71, 0')
        a('s_lshl_b32 s54, s2, 2')
        a(f's_add_u32 s54, s54, {sr(S_W)}')
        a('s_lshl_b32 s54, s54, 8')
        a('s_add_u32 s12, s12, s54')
        a('s_addc_u32 s13, s13, 0')
        a('s_mov_b32 s14, 256')
        a('s_mov_b32 s15, 0x20000')
        a('v_lshlrev_b32 v1, 2, v0')
        a('buffer_store_dword v252, v1, s[12:15], 0 offen')
    if cfg.stamps: stamp_store(a, cfg, 70, 0, sr(S_W), 'K1_END')
    a.label('K1_END')
    a('s_endpgm')
    proj_phase(a, cfg)
    for t_ in tags: slow(a, cfg, t_)


def proj_phase(a, cfg):
    a.label('PROJ')
    a('s_and_b32 s34, s2, 7')
    a('s_lshr_b32 s35, s2, 3')
    a('s_and_b32 s35, s35, 31')
    a('s_lshr_b32 s23, s34, 2')
    a('s_lshr_b32 s21, s34, 1')
    a('s_and_b32 s21, s21, 1')
    a('s_lshl_b32 s21, s21, 2')
    a('s_lshr_b32 s54, s35, 3')
    a('s_add_u32 s21, s21, s54')
    a('s_and_b32 s22, s34, 1')
    a('s_lshl_b32 s22, s22, 3')
    a('s_and_b32 s55, s35, 7')
    a('s_add_u32 s22, s22, s55')
    a('s_lshl_b32 s24, s55, 2')
    a('s_and_b32 s56, s54, 1')
    a('s_lshl_b32 s56, s56, 1')
    a('s_add_u32 s24, s24, s56')
    a('s_lshr_b32 s56, s54, 1')
    a('s_lshl_b32 s56, s56, 4')
    a('s_add_u32 s24, s24, s56')
    a('s_and_b32 s24, s24, 31')
    a('s_lshl_b32 s26, s24, 10')
    a('v_lshlrev_b32 v4, 4, v0')
    a('s_cmp_eq_u32 s23, 1')
    a('s_cselect_b64 s[72:73], s[74:75], s[72:73]')
    a(f's_lshl_b32 s54, {sr(S_W)}, 20')
    a('s_lshl_b32 s55, s22, 6')
    a('s_add_u32 s54, s54, s55')
    a('s_add_u32 s4, s72, s54')
    a('s_addc_u32 s5, s73, 0')
    a('s_sub_u32 s6, 4194304, s54')
    a('s_mov_b32 s7, 0x20000')
    a(f's_lshl_b32 s55, {sr(S_W)}, 15')
    a('s_lshl_b32 s54, s23, 3')
    a('s_add_u32 s54, s54, s21')
    a('s_lshl_b32 s27, s54, 3')
    a('s_mul_i32 s54, s54, 393216')
    a('s_add_u32 s54, s54, s55')
    srd(a, 8, S_WS, 's54', 2 * 131072 + 32768, WS_O)
    a('s_mov_b32 s12, s68')
    a('s_mov_b32 s13, s69')
    a('s_mov_b32 s14, 256')
    a('s_mov_b32 s15, 0x20000')
    def wait_flags(tag, line_fn, basereg, cnt_setup, cntreg):
        a(f's_cmp_lg_u32 {sr(S_W)}, 0')
        a(f's_cbranch_scc1 {tag}_D')
        line_fn(a, 's57')
        srd(a, 16, S_WS, 's57', 128, WS_FLAG)
        a('v_lshlrev_b32 v245, 2, v0')
        for s_ in cnt_setup: a(s_)
        a('s_mov_b32 s56, 0x3ffff')
        a('s_mov_b32 exec_lo, -1')
        a('s_mov_b32 exec_hi, 0')
        a.label(f'{tag}_L')
        a('buffer_load_dword v246, v245, s[16:19], 0 offen sc1')
        a('s_waitcnt vmcnt(0)')
        a(f'v_cmp_eq_u32 vcc, v246, {basereg}')
        a(f's_cbranch_vccz {tag}_E')
        a('s_and_b32 s57, s56, 63')
        a('s_cmp_lg_u32 s57, 0')
        a(f's_cbranch_scc1 {tag}_S')
        a(f'buffer_load_dword v246, {cntreg}, s[12:15], 0 offen sc1')
        a('s_waitcnt vmcnt(0)')
        a('v_cmp_ne_u32 vcc, 32, v246')
        a(f's_cbranch_vccz {tag}_E')
        a.label(f'{tag}_S')
        a(f's_sleep {cfg.sleep}')
        a('s_sub_u32 s56, s56, 1')
        a('s_cmp_lg_u32 s56, 0')
        a(f's_cbranch_scc1 {tag}_L')
        a.label(f'{tag}_E')
        a('s_mov_b64 exec, -1')
        a.label(f'{tag}_D')
        a('s_barrier')
    a('v_mov_b32 v6, v253')
    ACC, WF, OR = 8, 32, 160
    TF = 248
    NOR = 7
    SF = 244
    ld = ' sc1' if cfg.psc1 else ''
    NL = 10
    a('v_lshrrev_b32 v5, 2, v0')
    a('v_lshlrev_b32 v5, 10, v5')
    a('v_and_b32 v1, 3, v0')
    a('v_lshl_add_u32 v5, v1, 4, v5')
    a('v_lshrrev_b32 v7, 2, v0')
    a('v_lshlrev_b32 v7, 6, v7')
    a('v_lshl_add_u32 v7, v1, 3, v7')
    a(f's_lshl_b32 s58, {sr(S_W)}, 13')
    a('s_add_u32 s59, s58, 32768')
    a(f's_lshl_b32 s60, {sr(S_W)}, 12')
    a('s_add_u32 s60, s60, 65536')
    def slot_sgpr(i): return ('s58', i * 2048) if i < 4 else (('s59', (i - 4) * 2048) if i < 8 else ('s60', (i - 8) * 2048))
    a('v_add_u32 v1, s58, v7')
    a('v_add_u32 v2, s59, v7')
    a('v_add_u32 v3, s60, v7')
    def slot_vaddr(i): return ('v1', i * 2048) if i < 4 else (('v2', (i - 4) * 2048) if i < 8 else ('v3', (i - 8) * 2048))
    issued = []
    def wo_dma(s_):
        sg, off = slot_sgpr(s_ % NL)
        a(f's_add_u32 m0, {sg}, {off}')
        a('s_add_u32 s25, s24, 0x4000')
        a('buffer_load_dwordx4 v5, s[4:7], s24 offen lds')
        a(f's_add_u32 m0, {sg}, {off + 1024}')
        a('s_add_u32 s24, s24, 0x8000')
        a('buffer_load_dwordx4 v5, s[4:7], s25 offen lds')
        a('s_and_b32 s24, s24, 0xfffff')
        issued.extend([('w', s_)] * 2)
    def wo_tr(s_, dst):
        va, off = slot_vaddr(s_ % NL)
        for e in range(2):
            a(f'ds_read_b64_tr_b16 {vr(dst + 4 * e, 2)}, {va} offset:{off + e * 32}')
            a(f'ds_read_b64_tr_b16 {vr(dst + 4 * e + 2, 2)}, {va} offset:{off + e * 32 + 1024}')
    def waitfor(kind, s_):
        last = max(i for i, (k, t) in enumerate(issued) if k == kind and t == s_)
        a(f's_waitcnt vmcnt({min(len(issued) - 1 - last, 63)})')
    def o_load(s_):
        B = OR + (s_ % NOR) * 12
        a(f'buffer_load_dwordx4 {vr(B, 4)}, v4, s[8:11], s28 offen{ld}')
        a('s_add_u32 s25, s28, 0x20000')
        a(f'buffer_load_dwordx4 {vr(B + 4, 4)}, v4, s[8:11], s25 offen{ld}')
        a('s_add_u32 s25, s28, 0x40000')
        a(f'buffer_load_dwordx4 {vr(B + 8, 4)}, v4, s[8:11], s25 offen{ld}')
        a('s_add_u32 s28, s28, 0x400')
        a('s_and_b32 s28, s28, 0x7fff')
        issued.extend([('o', s_)] * 3)
    a('s_lshl_b32 s24, s26, 5')
    for s_ in range(NL): wo_dma(s_)
    for s_ in range(16):
        waitfor('w', s_)
        wo_tr(s_, WF + 8 * s_)
        a('s_waitcnt lgkmcnt(0)')
        if s_ + NL < 16 + NL: wo_dma(s_ + NL)
    stamp(a, cfg, 1)
    wait_flags('PO', flag_line, 'v6', ['v_mov_b32 v244, s27'], cntreg='v244')
    stamp(a, cfg, 2)
    a('s_mov_b32 s28, s26')
    for s_ in range(NOR): o_load(s_)
    for s_ in range(32):
        if s_ >= 16:
            waitfor('w', s_)
            wo_tr(s_, SF)
        waitfor('o', s_)
        if s_ >= 16: a('s_waitcnt lgkmcnt(0)')
        W = WF + 8 * s_ if s_ < 16 else SF
        for e in range(2):
            for tq in range(3):
                acc = ACC + (e * 3 + tq) * 4
                c = '0' if s_ == 0 else vr(acc, 4)
                a(f'v_mfma_f32_16x16x32_bf16 {vr(acc, 4)}, {vr(W + 4 * e, 4)}, {vr(OR + (s_ % NOR) * 12 + 4 * tq, 4)}, {c}')
        if s_ + NOR < 32: o_load(s_ + NOR)
        if s_ >= 16 and s_ + NL < 32: wo_dma(s_ + NL)
    a('s_barrier')
    stamp(a, cfg, 3)
    a(f's_mul_i32 s54, {sr(S_W)}, 6144')
    a('v_add_u32 v7, s54, v4')
    a('s_nop 7')
    for t in range(6):
        a(f'ds_write_b128 v7, {vr(ACC + 4 * t, 4)} offset:{t * 1024}')
    a('s_waitcnt lgkmcnt(0)')
    a('s_barrier')
    a('v_and_b32 v2, 15, v0')
    a('v_lshrrev_b32 v1, 4, v0')
    a('v_lshlrev_b32 v2, 11, v2')
    a('v_lshl_add_u32 v2, v1, 3, v2')
    a('s_mov_b32 s12, s66')
    a('s_mov_b32 s13, s67')
    a('s_mov_b32 s14, 786432')
    a('s_mov_b32 s15, 0x20000')
    a('s_mul_i32 s58, s21, 48')
    a('s_lshl_b32 s58, s58, 11')
    a('s_lshl_b32 s56, s23, 10')
    a('s_add_u32 s58, s58, s56')
    a('s_lshl_b32 s56, s22, 6')
    a('s_add_u32 s58, s58, s56')
    a(f's_mov_b32 s59, {sr(S_W)}')
    a.label('PT_LOOP')
    a('s_lshl_b32 s54, s59, 10')
    a('v_add_u32 v7, s54, v4')
    for v in range(4):
        a(f'ds_read_b128 {vr(32 + 4 * v, 4)}, v7 offset:{v * 6144}')
    a('s_cmp_ge_u32 s59, 3')
    a('s_cselect_b32 s55, 1, 0')
    a('s_mul_i32 s56, s55, 3')
    a('s_sub_u32 s56, s59, s56')
    a('s_lshl_b32 s56, s56, 15')
    a('s_lshl_b32 s55, s55, 5')
    a('s_add_u32 s54, s58, s56')
    a('s_add_u32 s54, s54, s55')
    a('s_waitcnt lgkmcnt(0)')
    for r in range(4):
        a(f'v_add_f32 {vr(32 + r)}, {vr(32 + r)}, {vr(36 + r)}')
        a(f'v_add_f32 {vr(40 + r)}, {vr(40 + r)}, {vr(44 + r)}')
    for r in range(4):
        a(f'v_add_f32 {vr(32 + r)}, {vr(32 + r)}, {vr(40 + r)}')
    a('v_cvt_pk_bf16_f32 v48, v32, v33')
    a('v_cvt_pk_bf16_f32 v49, v34, v35')
    a('buffer_store_dwordx2 v[48:49], v2, s[12:15], s54 offen')
    a('s_add_u32 s59, s59, 4')
    a('s_cmp_lt_u32 s59, 6')
    a('s_cbranch_scc1 PT_LOOP')
    a('s_branch FIN')

HDR = open('cdna_kernels/' + NAME + '.s.ref').read().split('; Override launch')[0]

def kd(name, vgpr, sgpr):
    return f'''.amdhsa_kernel {name}
  .amdhsa_next_free_vgpr {vgpr}
  .amdhsa_next_free_sgpr {sgpr}
  .amdhsa_accum_offset {((vgpr + 3) // 4) * 4}
  .amdhsa_group_segment_fixed_size 0
  .amdhsa_kernarg_size 104
  .amdhsa_user_sgpr_count 2
  .amdhsa_user_sgpr_kernarg_segment_ptr 1
  .amdhsa_system_sgpr_workgroup_id_x 1
.end_amdhsa_kernel
'''

def gen(cfg):
    a = Asm()
    cfg.k1name = NAME + '_kernel'
    out = HDR
    out += '; @launch grid=(512,1,1) block=(256,1,1) lds=81920\n'
    out += '.amdgcn_target "amdgcn-amd-amdhsa--gfx950"\n.text\n'
    attn_kernel(a, cfg)
    out += a.text()
    out += '.section .rodata,"a"\n.p2align 6\n'
    out += kd(cfg.k1name, 256, 96)
    return out

if __name__ == '__main__':
    ap = argparse.ArgumentParser()
    ap.add_argument('-o', default='cdna_kernels/' + NAME + '.s')
    ap.add_argument('--stamps', type=int, default=0)
    ap.add_argument('--ntA', default='def')
    ap.add_argument('--modeA', type=int, default=1)
    ap.add_argument('--warm', type=int, default=1)
    ap.add_argument('--prioB', type=int, default=0)
    ap.add_argument('--ntB', default='nt')
    ap.add_argument('--modeB', type=int, default=1)
    ap.add_argument('--swapab', type=int, default=1)
    ap.add_argument('--only1', type=int, default=0)
    ap.add_argument('--k2ring', type=int, default=6)
    ap.add_argument('--sleep', type=int, default=16)
    ap.add_argument('--psc1', type=int, default=1)
    ap.add_argument('--qrot', type=int, default=2)
    ap.add_argument('--upA', type=int, default=0)
    ap.add_argument('--upB', type=int, default=0)
    ap.add_argument('--lateA', type=int, default=0)
    ap.add_argument('--lateB', type=int, default=0)
    ap.add_argument('--pro', type=int, default=0)
    ap.add_argument('--typemode', type=int, default=0)
    ap.add_argument('--noinit', type=int, default=1)
    ap.add_argument('--bxor', type=int, default=0)
    cfg = ap.parse_args()
    def pf(x):
        x = x.replace('def', '')
        return tuple(x.split(',')) if ',' in x else (x, x)
    cfg.ntA = pf(cfg.ntA); cfg.ntB = pf(cfg.ntB)
    open(cfg.o, 'w').write(gen(cfg))
    print('wrote', cfg.o)
```

```python
import sys, argparse

NAME = 'concat_heads__gqa_block_cached__mha_block_cached__near_ridge'

class Asm:
    def __init__(self): self.L = []
    def __call__(self, s): self.L.append('    ' + s)
    def label(self, s): self.L.append(s + ':')
    def c(self, s): self.L.append('    ; ' + s)
    def text(self): return '\n'.join(self.L) + '\n'

def vr(b, n=1): return f'v{b}' if n == 1 else f'v[{b}:{b+n-1}]'
def sr(b, n=1): return f's{b}' if n == 1 else f's[{b}:{b+n-1}]'

VOFFK = 4
VOFFV = 8
KADDR = 10
VADDR = 14
MREF = 22
LSUM = 25
LT = 28
TMP = 31
T0 = 32
Q0 = 40
O0 = 88
S0 = 184
P0 = 208
F0 = 220
def Q(tq, kk): return Q0 + (tq * 4 + kk) * 4
def O(td, tq): return O0 + (td * 3 + tq) * 4
def S(kt, tq): return S0 + (kt * 3 + tq) * 4
def P(tq): return P0 + tq * 4
def KF(kt, kk): return F0 + (kt * 4 + kk) * 4
def VF(td): return F0 + td * 4

SK, SV, SX, SWQ = 4, 8, 12, 16
S_W, S_B, S_H, S_ISB = 20, 21, 22, 23
S_KOFF, S_VOFF, S_CNT = 24, 25, 26
S_KSLOT, S_VSLOT, S_SCR = 27, 28, 29
S_C, S_THR, S_SELLO, S_SELHI = 30, 31, 32, 33
S_T = 34
S_G = 58
S_KQ = 60
S_RING = 61
S_RCHK = 64
S_BASE = 64
S_KI, S_VI, S_AQ = 96, 97, 98
S_SEC = 62
S_DBG, S_WS = 68, 70
S_STAMP = 76

KSLOT = lambda w: w * 8192
VSLOT = lambda w: 32768 + w * 8192

WS_O = 0
WS_WOF = 8 << 20
WS_QX = 16 << 20
WS_PX = 20 << 20
WS_FLAG = 40 << 20
WS_XP = 48 << 20
WS_ML = 32 << 20

def stamp(a, cfg, k):
    if cfg.stamps:
        a(f's_memrealtime {sr(S_STAMP + 2 * k, 2)}')
        a('s_waitcnt lgkmcnt(0)')

def stamp_init(a, cfg):
    if cfg.stamps:
        for k in range(16): a(f's_mov_b32 s{S_STAMP + k}, 0')

def stamp_store(a, cfg, wsreg, rowbase, wavereg, endlabel):
    a('s_waitcnt vmcnt(0)')
    stamp(a, cfg, 7)
    a(f's_cmp_lg_u32 {wavereg}, 0')
    a(f's_cbranch_scc1 {endlabel}')
    a(f's_add_u32 s12, s{wsreg}, {0x10000000 + rowbase * 64}')
    a(f's_addc_u32 s13, s{wsreg + 1}, 0')
    a('s_lshl_b32 s54, s2, 6')
    a('s_add_u32 s12, s12, s54')
    a('s_addc_u32 s13, s13, 0')
    a('s_mov_b32 s14, 64')
    a('s_mov_b32 s15, 0x20000')
    a(f's_getreg_b32 s{S_STAMP + 10}, hwreg(HW_REG_HW_ID)')
    a(f's_getreg_b32 s{S_STAMP + 11}, hwreg(HW_REG_XCC_ID)')
    a('v_mbcnt_lo_u32_b32 v0, -1, 0')
    a('v_mbcnt_hi_u32_b32 v0, -1, v0')
    a('v_lshlrev_b32 v1, 2, v0')
    a('v_mov_b32 v2, 0')
    for k in range(16):
        a(f'v_mov_b32 v3, s{S_STAMP + k}')
        a(f'v_cmp_eq_u32 vcc, {k}, v0')
        a('s_nop 1')
        a('v_cndmask_b32 v2, v2, v3, vcc')
    a('buffer_store_dword v2, v1, s[12:15], 0 offen')

def tl(a, cfg):
    if cfg.stamps >= 2:
        a('s_memrealtime s[92:93]')
        a('s_waitcnt lgkmcnt(0)')
        a('s_mov_b32 m0, s59')
        a('s_nop 0')
        a('v_writelane_b32 v252, s92, m0')
        a('s_add_u32 s59, s59, 1')

def fl(nt): return (' ' + nt.replace('+', ' ')) if nt else ''

def dma_tile(a, cfg, srd, voffs, soff, slot, nt, inter=None):
    f = fl(nt)
    for n in range(8):
        if n == 0:
            a(f's_mov_b32 m0, {sr(slot)}')
            a(f's_add_u32 {sr(S_T)}, {sr(soff)}, 0x1000')
        if n == 4:
            a(f's_add_u32 m0, {sr(slot)}, 0x1000')
            a('s_nop 0')
        so = sr(soff) if n < 4 else sr(S_T)
        a(f'buffer_load_dwordx4 {vr(voffs(n))}, {sr(srd, 4)}, {so} offen offset:{(n & 3) * 1024}{f} lds')
        if inter:
            for s in inter[n]: a(s)
    if cfg.arot:
        idx = S_KI if soff == S_KOFF else S_VI
        a(f's_add_u32 {sr(idx)}, {sr(idx)}, 1')
        a(f's_add_u32 {sr(soff)}, {sr(idx)}, {sr(S_AQ)}')
        a(f's_and_b32 {sr(soff)}, {sr(soff)}, 3')
        a(f's_and_b32 {sr(S_T)}, {sr(idx)}, 12')
        a(f's_or_b32 {sr(soff)}, {sr(soff)}, {sr(S_T)}')
        a(f's_lshl_b32 {sr(soff)}, {sr(soff)}, 15')
    else:
        a(f's_add_u32 {sr(soff)}, {sr(soff)}, 0x8000')
        a(f's_and_b32 {sr(soff)}, {sr(soff)}, 0x7ffff')

def xlane_reduce(a, op, x, tmp):
    a(f'v_mov_b32 {vr(tmp)}, {vr(x)}')
    a('s_nop 1')
    a(f'v_permlane32_swap_b32 {vr(x)}, {vr(tmp)}')
    a('s_nop 1')
    a(f'{op} {vr(x)}, {vr(x)}, {vr(tmp)}')
    a(f'v_mov_b32 {vr(tmp)}, {vr(x)}')
    a('s_nop 1')
    a(f'v_permlane16_swap_b32 {vr(x)}, {vr(tmp)}')
    a('s_nop 1')
    a(f'{op} {vr(x)}, {vr(x)}, {vr(tmp)}')

def qk_mfmas():
    mf = []
    for kk in range(4):
        for tq in range(3):
            for kt in range(2):
                c = '0' if kk == 0 else vr(S(kt, tq), 4)
                mf.append(f'v_mfma_f32_16x16x32_bf16 {vr(S(kt, tq), 4)}, {vr(KF(kt, kk), 4)}, {vr(Q(tq, kk), 4)}, {c}')
    return mf

def pv_mfmas():
    return [f'v_mfma_f32_16x16x32_bf16 {vr(O(td, tq), 4)}, {vr(VF(td), 4)}, {vr(P(tq), 4)}, {vr(O(td, tq), 4)}'
            for td in range(8) for tq in range(3)]

def softmax(a, cfg, tag):
    a('s_nop 2')
    a.label(f'SM_{tag}')
    for tq in range(3):
        A, B = T0, T0 + 4
        m = vr(MREF + tq)
        for r in range(4): a(f'v_fma_f32 {vr(A + r)}, {vr(S(0, tq) + r)}, {sr(S_C)}, -{m}')
        for r in range(4): a(f'v_fma_f32 {vr(B + r)}, {vr(S(1, tq) + r)}, {sr(S_C)}, -{m}')
        for r in range(4): a(f'v_exp_f32 {vr(A + r)}, {vr(A + r)}')
        for r in range(4): a(f'v_exp_f32 {vr(B + r)}, {vr(B + r)}')
        a(f'v_cvt_pk_bf16_f32 {vr(P(tq))}, {vr(A)}, {vr(A + 1)}')
        a(f'v_cvt_pk_bf16_f32 {vr(P(tq) + 1)}, {vr(A + 2)}, {vr(A + 3)}')
        a(f'v_add_f32 {vr(A)}, {vr(A)}, {vr(A + 1)}')
        a(f'v_add_f32 {vr(A + 2)}, {vr(A + 2)}, {vr(A + 3)}')
        a(f'v_cvt_pk_bf16_f32 {vr(P(tq) + 2)}, {vr(B)}, {vr(B + 1)}')
        a(f'v_cvt_pk_bf16_f32 {vr(P(tq) + 3)}, {vr(B + 2)}, {vr(B + 3)}')
        a(f'v_add_f32 {vr(B)}, {vr(B)}, {vr(B + 1)}')
        a(f'v_add_f32 {vr(B + 2)}, {vr(B + 2)}, {vr(B + 3)}')
        a(f'v_add_f32 {vr(A)}, {vr(A)}, {vr(A + 2)}')
        a(f'v_add_f32 {vr(B)}, {vr(B)}, {vr(B + 2)}')
        a(f'v_add_f32 {vr(LT + tq)}, {vr(A)}, {vr(B)}')
    a(f'v_max3_f32 {vr(TMP)}, {vr(LT)}, {vr(LT + 1)}, {vr(LT + 2)}')
    a(f'v_cmp_lt_f32 vcc, {sr(S_THR)}, {vr(TMP)}')
    a(f's_cbranch_vccnz SLOW_{tag}')
    a(f's_mov_b32 {sr(S_THR)}, 0x43800000')
    for tq in range(3): a(f'v_add_f32 {vr(LSUM + tq)}, {vr(LSUM + tq)}, {vr(LT + tq)}')

def body_b(a, cfg, tag, prefetch, nt, mode):
    ser = (mode == 1)
    kdma = lambda inter=None: dma_tile(a, cfg, SK, lambda n: VOFFK + (n & 3), S_KOFF, S_KSLOT, nt[0], inter)
    vdma = lambda inter=None: dma_tile(a, cfg, SV, lambda n: VOFFV + (n & 1), S_VOFF, S_VSLOT, nt[1], inter)
    a(f's_waitcnt vmcnt({0 if ser else 8})')
    tl(a, cfg)
    for kt in range(2):
        for kk in range(4):
            a(f'ds_read_b128 {vr(KF(kt, kk), 4)}, {vr(KADDR + kk)} offset:{kt * 4096}')
    a('s_waitcnt lgkmcnt(0)')
    mf = qk_mfmas()
    inter = [mf[3 * n:3 * n + 3] for n in range(8)]
    if ser: vdma(inter)
    elif prefetch and mode in (0, 3): kdma(inter)
    else:
        for s_ in mf: a(s_)
    softmax(a, cfg, tag)
    if prefetch and mode == 2: kdma()
    a(f's_waitcnt vmcnt({8 if (prefetch and not ser) else 0})')
    tl(a, cfg)
    for td in range(8):
        a(f'ds_read_b64_tr_b16 {vr(VF(td), 2)}, {vr(VADDR + td)}')
        a(f'ds_read_b64_tr_b16 {vr(VF(td) + 2, 2)}, {vr(VADDR + td)} offset:4096')
    a('s_waitcnt lgkmcnt(0)')
    mf = pv_mfmas()
    inter = [mf[3 * n:3 * n + 3] for n in range(8)]
    if prefetch and ser: kdma(inter)
    elif prefetch and mode == 0: vdma(inter)
    else:
        for s_ in mf: a(s_)
        if prefetch and mode in (2, 3): vdma()

def a_dma(a, cfg, srd, voff, soff, ldsbase, nt):
    a(f's_mov_b32 m0, {sr(ldsbase)}')
    a('s_nop 0')
    for p in range(2):
        a(f'buffer_load_dwordx4 {vr(voff + p)}, {sr(srd, 4)}, {sr(soff)} offen offset:{p * 1024}{fl(nt)} lds')

def body_a(a, cfg, tag):
    nt = cfg.ntA
    a('s_waitcnt vmcnt(8)')
    a('s_barrier')
    tl(a, cfg)
    for kt in range(2):
        for kk in range(4):
            a(f'ds_read_b128 {vr(KF(kt, kk), 4)}, {vr(KADDR + kk)} offset:{kt * 4096}')
    a_dma(a, cfg, SK, VOFFK, S_KOFF, S_RING, nt[0])
    a(f's_add_u32 {sr(S_T)}, {sr(S_RING)}, 0x8000')
    a_dma(a, cfg, SV, VOFFV, S_KOFF, S_T, nt[1])
    a(f's_add_u32 {sr(S_KOFF)}, {sr(S_KOFF)}, 0x2000')
    a(f's_add_u32 {sr(S_RING)}, {sr(S_RING)}, 0x2000')
    a(f's_and_b32 {sr(S_RING)}, {sr(S_RING)}, 0x7fff')
    for kk in range(4):
        a(f'v_add_u32 {vr(KADDR + kk)}, 0x2000, {vr(KADDR + kk)}')
    for kk in range(4):
        a(f'v_and_b32 {vr(KADDR + kk)}, 0x7fff, {vr(KADDR + kk)}')
    a('s_waitcnt lgkmcnt(0)')
    for s_ in qk_mfmas(): a(s_)
    softmax(a, cfg, tag)
    for td in range(8):
        a(f'ds_read_b64_tr_b16 {vr(VF(td), 2)}, {vr(VADDR + td)} offset:32768')
        a(f'ds_read_b64_tr_b16 {vr(VF(td) + 2, 2)}, {vr(VADDR + td)} offset:{32768 + 4096}')
    for td in range(8):
        a(f'v_add_u32 {vr(VADDR + td)}, 0x2000, {vr(VADDR + td)}')
    for td in range(8):
        a(f'v_and_b32 {vr(VADDR + td)}, 0x7fff, {vr(VADDR + td)}')
    a('s_waitcnt lgkmcnt(0)')
    for s_ in pv_mfmas(): a(s_)

def slow(a, cfg, tag):
    a.label(f'SLOW_{tag}')
    for tq in range(3):
        mx = T0 + tq
        s0, s1 = S(0, tq), S(1, tq)
        a(f'v_max3_f32 {vr(mx)}, {vr(s0)}, {vr(s0 + 1)}, {vr(s0 + 2)}')
        a(f'v_max3_f32 {vr(mx)}, {vr(mx)}, {vr(s0 + 3)}, {vr(s1)}')
        a(f'v_max3_f32 {vr(mx)}, {vr(mx)}, {vr(s1 + 1)}, {vr(s1 + 2)}')
        a(f'v_max_f32 {vr(mx)}, {vr(mx)}, {vr(s1 + 3)}')
    for tq in range(3):
        xlane_reduce(a, 'v_max_f32', T0 + tq, TMP)
    for tq in range(3):
        mx, al = T0 + tq, T0 + 4 + tq
        a(f'v_mul_f32 {vr(mx)}, {sr(S_C)}, {vr(mx)}')
        a(f'v_max_f32 {vr(mx)}, {vr(mx)}, {vr(MREF + tq)}')
        a(f'v_sub_f32 {vr(al)}, {vr(MREF + tq)}, {vr(mx)}')
        a(f'v_exp_f32 {vr(al)}, {vr(al)}')
        a(f'v_mov_b32 {vr(MREF + tq)}, {vr(mx)}')
        a(f'v_mul_f32 {vr(LSUM + tq)}, {vr(LSUM + tq)}, {vr(al)}')
        for td in range(8):
            for r in range(4):
                a(f'v_mul_f32 {vr(O(td, tq) + r)}, {vr(O(td, tq) + r)}, {vr(al)}')
    a(f's_mov_b32 {sr(S_THR)}, 0x7f800000')
    a(f's_branch SM_{tag}')

def srd(a, dst, base, off_sgpr, nrec, off_imm=0):
    if off_imm:
        a(f's_add_u32 {off_sgpr}, {off_sgpr}, {off_imm}')
    a(f's_add_u32 s{dst}, s{base}, {off_sgpr}')
    a(f's_addc_u32 s{dst + 1}, s{base + 1}, 0')
    a(f's_mov_b32 s{dst + 2}, {nrec}')
    a(f's_mov_b32 s{dst + 3}, 0x20000')

def sync_group(a, cfg, tag, add, shift):
    a('s_barrier')
    a(f's_cmp_lg_u32 {sr(S_W)}, 0')
    a(f's_cbranch_scc1 {tag}_D')
    a('s_mov_b32 s12, s68')
    a('s_mov_b32 s13, s69')
    a('s_mov_b32 s14, 256')
    a('s_mov_b32 s15, 0x20000')
    a(f's_lshl_b32 s54, {sr(S_G)}, 2')
    a('v_mov_b32 v2, s54')
    a(f'v_mov_b32 v1, {add}')
    a('s_mov_b64 exec, 1')
    a('buffer_atomic_add v1, v2, s[12:15], 0 offen sc1')
    a('s_mov_b64 exec, -1')
    a('s_mov_b32 s56, 0x40000')
    a.label(f'{tag}_L')
    a('buffer_load_dword v1, v2, s[12:15], 0 offen sc1')
    a('s_waitcnt vmcnt(0)')
    a(f'v_bfe_u32 v1, v1, {shift}, 8')
    a('v_cmp_ne_u32 vcc, 4, v1')
    a(f's_cbranch_vccz {tag}_D')
    a(f's_sleep {cfg.sleep}')
    a('s_sub_u32 s56, s56, 1')
    a('s_cmp_lg_u32 s56, 0')
    a(f's_cbranch_scc1 {tag}_L')
    a.label(f'{tag}_D')
    a('s_barrier')

RCNT_OFF = 192

def signal(a, tag, off_sgpr, off_imm):
    a('s_mov_b32 s12, s68')
    a('s_mov_b32 s13, s69')
    a('s_mov_b32 s14, 256')
    a('s_mov_b32 s15, 0x20000')
    a('s_mov_b64 exec, 1')
    a('v_mov_b32 v248, 1')
    a(f'v_mov_b32 v249, {off_sgpr if off_sgpr else off_imm}')
    a('buffer_atomic_add v248, v249, s[12:15], 0 offen sc1')
    a('s_mov_b64 exec, -1')

def proj_ids(a):
    pass

def p2_ids(a):
    a('s_and_b32 s54, s2, 7')
    a('s_lshr_b32 s55, s2, 3')
    a('s_and_b32 s55, s55, 31')
    a('s_lshr_b32 s36, s54, 2')
    a('s_lshr_b32 s37, s54, 1')
    a('s_and_b32 s37, s37, 1')
    a('s_lshl_b32 s37, s37, 2')
    a('s_lshr_b32 s38, s55, 3')
    a('s_add_u32 s37, s37, s38')
    a('s_and_b32 s38, s54, 1')
    a('s_lshl_b32 s38, s38, 2')
    a('s_lshr_b32 s39, s55, 1')
    a('s_and_b32 s39, s39, 3')
    a('s_add_u32 s38, s38, s39')
    a('s_and_b32 s39, s55, 1')

def flag_line(a, dst):
    a('s_lshl_b32 s56, s36, 3')
    a('s_add_u32 s56, s56, s37')
    a('s_lshl_b32 s56, s56, 7')
    a('s_lshl_b32 s54, s39, 6')
    a(f's_add_u32 {dst}, s56, s54')

def xflag_line(a, dst):
    a('s_lshl_b32 s56, s36, 3')
    a('s_add_u32 s56, s56, s37')
    a('s_lshl_b32 s56, s56, 3')
    a('s_add_u32 s56, s56, s38')
    a('s_lshl_b32 s56, s56, 7')
    a(f's_add_u32 {dst}, s56, {32768}')

def rflag_line(a, dst):
    a('s_and_b32 s54, s2, 7')
    a('s_lshr_b32 s55, s2, 3')
    a('s_and_b32 s55, s55, 7')
    a('s_and_b32 s56, s54, 1')
    a('s_lshl_b32 s56, s56, 3')
    a('s_add_u32 s56, s56, s55')
    a('s_lshr_b32 s56, s56, 2')
    a('s_lshr_b32 s54, s54, 2')
    a('s_lshl_b32 s54, s54, 2')
    a('s_add_u32 s56, s56, s54')
    a('s_lshl_b32 s56, s56, 7')
    a(f's_add_u32 {dst}, s56, 2048')

def body_up(a, cfg, tag, nt):
    kdma = lambda inter=None: dma_tile(a, cfg, SK, lambda n: VOFFK + (n & 3), S_KOFF, S_KSLOT, nt[0], inter)
    vdma = lambda inter=None: dma_tile(a, cfg, SV, lambda n: VOFFV + (n & 1), S_VOFF, S_VSLOT, nt[1], inter)
    a('s_waitcnt vmcnt(0)')
    for kt in range(2):
        for kk in range(4):
            a(f'ds_read_b128 {vr(KF(kt, kk), 4)}, {vr(KADDR + kk)} offset:{kt * 4096}')
    a('s_waitcnt lgkmcnt(0)')
    mf = qk_mfmas()
    vdma([mf[3 * n:3 * n + 3] for n in range(8)])
    kdma()
    softmax(a, cfg, tag)
    a('s_waitcnt vmcnt(8)')
    for td in range(8):
        a(f'ds_read_b64_tr_b16 {vr(VF(td), 2)}, {vr(VADDR + td)}')
        a(f'ds_read_b64_tr_b16 {vr(VF(td) + 2, 2)}, {vr(VADDR + td)} offset:4096')
    a('s_waitcnt lgkmcnt(0)')
    mf = pv_mfmas()
    vdma([mf[3 * n:3 * n + 3] for n in range(8)])

def loop_consts(a, kbase, vbase, cfg):
    a('v_lshrrev_b32 v1, 4, v0')
    a('v_and_b32 v2, 15, v0')
    a('v_and_b32 v3, 4, v2')
    a('v_lshlrev_b32 v3, 1, v3')
    a('v_xor_b32 v3, v2, v3')
    a(f'v_lshlrev_b32 {vr(TMP)}, 2, v1')
    a(f'v_xor_b32 {vr(TMP)}, {vr(TMP)}, v3')
    a(f'v_lshlrev_b32 {vr(TMP)}, 4, {vr(TMP)}')
    a(f'v_lshl_add_u32 {vr(KADDR)}, v2, 8, {vr(TMP)}')
    if kbase: a(f'v_add_u32 {vr(KADDR)}, {kbase}, {vr(KADDR)}')
    for kk in range(1, 4): a(f'v_xor_b32 {vr(KADDR + kk)}, {kk << 4}, {vr(KADDR)}')
    a('v_lshrrev_b32 v3, 2, v2')
    a('v_lshl_add_u32 v3, v1, 2, v3')
    a(f'v_and_b32 {vr(TMP)}, 7, v3')
    a(f'v_lshlrev_b32 {vr(TMP)}, 5, {vr(TMP)}')
    a(f'v_lshl_add_u32 {vr(TMP)}, v3, 8, {vr(TMP)}')
    a('v_and_b32 v3, 3, v2')
    a(f'v_lshl_add_u32 {vr(VADDR)}, v3, 3, {vr(TMP)}')
    if vbase: a(f'v_add_u32 {vr(VADDR)}, {vbase}, {vr(VADDR)}')
    for td in range(1, 8): a(f'v_xor_b32 {vr(VADDR + td)}, {td << 5}, {vr(VADDR)}')
    if not cfg.noinit:
        for r in range(96): a(f'v_mov_b32 {vr(O0 + r)}, 0')
    for tq in range(3):
        a(f'v_mov_b32 {vr(MREF + tq)}, 0xff800000')
        a(f'v_mov_b32 {vr(LSUM + tq)}, 0')

def attn_kernel(a, cfg):
    K = cfg.k1name
    a.L.append(f'.globl {K}')
    a.L.append('.p2align 8')
    a.L.append(f'.type {K},@function')
    a.label(K)
    a('s_cmp_ge_u32 s2, 512')
    a('s_cbranch_scc1 K1_END')
    stamp_init(a, cfg)
    stamp(a, cfg, 0)
    a('s_load_dwordx8 s[36:43], s[0:1], 0')
    a('s_load_dwordx8 s[44:51], s[0:1], 40')
    a('s_load_dwordx4 s[68:71], s[0:1], 88')
    a('s_load_dwordx2 s[72:73], s[0:1], 32')
    a('s_load_dwordx2 s[74:75], s[0:1], 72')
    a('s_load_dwordx2 s[66:67], s[0:1], 80')
    a(f's_lshr_b32 {sr(S_SEC)}, s2, 8')
    a('v_lshrrev_b32 v1, 6, v0')
    a('v_and_b32 v0, 63, v0')
    a('s_and_b32 s34, s2, 7')
    a('s_lshr_b32 s35, s2, 3')
    if cfg.typemode == 0:
        a(f's_lshr_b32 {sr(S_ISB)}, s35, 5')
        a('s_and_b32 s35, s35, 31')
    else:
        a(f's_and_b32 {sr(S_ISB)}, s35, 1')
        a('s_lshr_b32 s35, s35, 1')
    if cfg.swapab:
        a(f's_xor_b32 {sr(S_ISB)}, {sr(S_ISB)}, 1')
    a(f'v_readfirstlane_b32 {sr(S_W)}, v1')
    a(f's_lshr_b32 {sr(S_B)}, s35, 2')
    if cfg.bxor: a(f's_xor_b32 {sr(S_B)}, {sr(S_B)}, {cfg.bxor}')
    a(f's_and_b32 {sr(S_KQ)}, s35, 3')
    a('s_lshl_b32 s54, s34, 2')
    a(f's_add_u32 {sr(S_H)}, s54, {sr(S_KQ)}')
    a(f's_lshl_b32 {sr(S_G)}, {sr(S_B)}, 3')
    a(f's_add_u32 {sr(S_G)}, {sr(S_G)}, s34')
    a(f's_lshl_b32 s55, {sr(S_B)}, 5')
    a(f's_add_u32 s55, s55, {sr(S_H)}')
    a(f's_mov_b32 s56, {0x80000 - 3 * 8192}')
    a(f's_cmp_eq_u32 {sr(S_ISB)}, 1')
    a(f's_cselect_b32 s54, s55, {sr(S_G)}')
    a('s_mov_b32 s57, s35')
    a('s_waitcnt lgkmcnt(0)')
    a('s_cselect_b64 s[36:37], s[44:45], s[36:37]')
    a('s_cselect_b64 s[38:39], s[46:47], s[38:39]')
    a('s_cselect_b64 s[40:41], s[48:49], s[40:41]')
    a('s_cselect_b64 s[42:43], s[50:51], s[42:43]')
    a('s_lshl_b32 s54, s54, 19')
    a(f's_lshl_b32 s55, {sr(S_W)}, 13')
    a('s_add_u32 s54, s54, s55')
    a(f's_add_u32 s{SK}, s38, s54')
    a(f's_addc_u32 s{SK+1}, s39, 0')
    a(f's_mov_b32 s{SK+2}, s56')
    a(f's_mov_b32 s{SK+3}, 0x20000')
    a(f's_add_u32 s{SV}, s40, s54')
    a(f's_addc_u32 s{SV+1}, s41, 0')
    a(f's_mov_b32 s{SV+2}, s56')
    a(f's_mov_b32 s{SV+3}, 0x20000')
    if cfg.qrot:
        a(f's_lshr_b32 s64, {sr(S_B)}, 2')
        a('s_lshl_b32 s64, s64, 1')
        if cfg.qrot == 2: a(f's_add_u32 s64, s64, {sr(S_KQ)}')
        a(f's_add_u32 s64, s64, {sr(S_W)}')
        a('s_and_b32 s64, s64, 3')
        a(f's_and_b32 s65, {sr(S_B)}, 3')
    else:
        a(f's_mov_b32 s64, {sr(S_W)}')
        a('s_mov_b32 s65, 0')
    a(f's_mul_i32 s54, {sr(S_B)}, 49152')
    a('s_lshl_b32 s55, s64, 8')
    a('s_add_u32 s54, s54, s55')
    a(f's_add_u32 s{SX}, s36, s54')
    a(f's_addc_u32 s{SX+1}, s37, 0')
    a(f's_sub_u32 s{SX+2}, 393216, s54')
    a(f's_mov_b32 s{SX+3}, 0x20000')
    a('s_lshl_b32 s54, s64, 20')
    a(f's_lshl_b32 s55, {sr(S_H)}, 8')
    a('s_add_u32 s54, s54, s55')
    a(f's_add_u32 s{SWQ}, s42, s54')
    a(f's_addc_u32 s{SWQ+1}, s43, 0')
    a(f's_sub_u32 s{SWQ+2}, 4194304, s54')
    a(f's_mov_b32 s{SWQ+3}, 0x20000')
    a(f's_lshl_b32 {sr(S_KSLOT)}, {sr(S_W)}, 13')
    a(f's_add_u32 {sr(S_VSLOT)}, {sr(S_KSLOT)}, 32768')
    a(f's_lshl_b32 {sr(S_SCR)}, {sr(S_W)}, 12')
    a(f's_add_u32 {sr(S_SCR)}, {sr(S_SCR)}, 65536')
    a('v_lshrrev_b32 v1, 4, v0')
    a('v_and_b32 v2, 15, v0')
    a('v_xor_b32 v3, v2, v1')
    for n, hk in enumerate([0, 3, 2, 1]):
        a(f'v_xor_b32 {vr(VOFFK + n)}, {hk << 2}, v3')
        a(f'v_lshlrev_b32 {vr(VOFFK + n)}, 4, {vr(VOFFK + n)}')
        a(f'v_lshl_add_u32 {vr(VOFFK + n)}, v1, 8, {vr(VOFFK + n)}')
    RAW = [10, 42, 184, 216]
    XF = 74
    TT = 248
    XA = 86
    XOFF = O0
    WQOFF = 2
    a('v_mul_u32_u24 v3, 768, v1')
    for n in range(4): a(f'v_add_u32 {vr(XOFF + n)}, {vr(VOFFK + n)}, v3')
    def k0_issue(tg):
        if cfg.arot:
            a(f's_cmp_eq_u32 {sr(S_ISB)}, 1')
            a(f's_cselect_b32 {sr(S_AQ)}, 0, {sr(S_KQ)}')
            if cfg.arot == 2: a(f's_lshl_b32 {sr(S_AQ)}, {sr(S_AQ)}, 0')
            a(f's_mov_b32 {sr(S_KI)}, 0')
            a(f's_mov_b32 {sr(S_VI)}, 0')
            a(f's_lshl_b32 {sr(S_KOFF)}, {sr(S_AQ)}, 15')
            a(f's_mov_b32 {sr(S_VOFF)}, {sr(S_KOFF)}')
        else:
            a(f's_mov_b32 {sr(S_KOFF)}, 0')
            a(f's_mov_b32 {sr(S_VOFF)}, 0')
        if cfg.ntA[0] == cfg.ntB[0]:
            dma_tile(a, cfg, SK, lambda n: VOFFK + (n & 3), S_KOFF, S_KSLOT, cfg.ntB[0])
        else:
            a(f's_cmp_eq_u32 {sr(S_ISB)}, 1')
            a(f's_cbranch_scc1 K0_B{tg}')
            dma_tile(a, cfg, SK, lambda n: VOFFK + (n & 3), S_KOFF, S_KSLOT, cfg.ntA[0])
            a(f's_branch K0_E{tg}')
            a.label(f'K0_B{tg}')
            dma_tile(a, cfg, SK, lambda n: VOFFK + (n & 3), S_KOFF, S_KSLOT, cfg.ntB[0])
            a.label(f'K0_E{tg}')
    for n in range(12):
        if n < 8: a(f's_add_u32 m0, {sr(S_VSLOT)}, {n * 1024}')
        else: a(f's_add_u32 m0, {sr(S_SCR)}, {(n - 8) * 1024}')
        a(f's_mov_b32 {sr(S_T)}, {n * 4096}')
        a(f'buffer_load_dwordx4 {vr(XOFF + (n & 3))}, {sr(SX, 4)}, {sr(S_T)} offen lds')
    for p in range(2):
        a(f'v_add_u32 v3, {4 * p}, v1')
        a('v_lshlrev_b32 v3, 1, v3')
        a('v_xor_b32 v3, v2, v3')
        a('v_lshlrev_b32 v3, 4, v3')
        a(f'v_lshl_add_u32 {vr(VOFFV + p)}, v1, 8, v3')
    a('v_and_b32 v3, 4, v2')
    a('v_lshlrev_b32 v3, 1, v3')
    a('v_xor_b32 v3, v2, v3')
    a(f'v_xor_b32 {vr(XA)}, v1, v3')
    a(f'v_lshlrev_b32 {vr(XA)}, 4, {vr(XA)}')
    a(f'v_lshl_add_u32 {vr(XA)}, v2, 8, {vr(XA)}')
    a('v_lshlrev_b32 v2, 4, v2')
    a('v_lshl_add_u32 v2, v1, 16, v2')
    def wq_loads(ks):
        a(f's_add_u32 s63, s65, {ks}')
        a('s_and_b32 s63, s63, 3')
        a('s_lshl_b32 s63, s63, 18')
        for n in range(8):
            a(f's_add_u32 {sr(S_T)}, s63, {n * 8192}')
            a(f'buffer_load_dwordx4 {vr(RAW[ks] + 4 * n, 4)}, {vr(WQOFF)}, {sr(SWQ, 4)}, {sr(S_T)} offen')
    wq_loads(0); wq_loads(1)
    if cfg.pro == 0:
        wq_loads(2); wq_loads(3)
        k0_issue('F')
    elif cfg.pro == 2:
        wq_loads(2)
    a(f's_mov_b32 {sr(S_C)}, 0x3e0293ee')
    a(f's_mov_b32 {sr(S_THR)}, 0x43800000')
    a(f's_mov_b32 {sr(S_SELLO)}, 0x05040100')
    a(f's_mov_b32 {sr(S_SELHI)}, 0x07060302')
    def xread(ks):
        a(f's_add_u32 s63, s65, {ks}')
        a('s_and_b32 s63, s63, 3')
        a('s_lshl_b32 s63, s63, 6')
        a(f'v_xor_b32 v3, s63, {vr(XA)}')
        a(f'v_add_u32 v87, {sr(S_VSLOT)}, v3')
        a(f'v_add_u32 v3, {sr(S_SCR)}, v3')
        a(f'ds_read_b128 {vr(XF, 4)}, v87')
        a(f'ds_read_b128 {vr(XF + 4, 4)}, v87 offset:4096')
        a(f'ds_read_b128 {vr(XF + 8, 4)}, v3')
    def qproj(ks):
        Rb = RAW[ks]
        def perms(e, T):
            m, p = e >> 1, e & 1
            sel = S_SELHI if p else S_SELLO
            for q4 in range(4):
                a(f'v_perm_b32 {vr(T + q4)}, {vr(Rb + 4 * (2 * q4 + 1) + m)}, {vr(Rb + 4 * (2 * q4) + m)}, {sr(sel)}')
        def mfmas(e, T):
            for tq in range(3):
                c = '0' if ks == 0 else vr(O(e, tq), 4)
                a(f'v_mfma_f32_16x16x32_bf16 {vr(O(e, tq), 4)}, {vr(T, 4)}, {vr(XF + 4 * tq, 4)}, {c}')
        Ts = [TT, TT + 4]
        xread(ks)
        perms(0, Ts[0])
        for e in range(8):
            if e < 7: perms(e + 1, Ts[(e + 1) & 1])
            else: a('s_nop 1')
            if e == 0: a('s_waitcnt lgkmcnt(0)')
            mfmas(e, Ts[e & 1])
    if cfg.pro == 0:
        a('s_waitcnt vmcnt(32)'); stamp(a, cfg, 1); qproj(0)
        a('s_waitcnt vmcnt(24)'); qproj(1)
        a('s_waitcnt vmcnt(16)'); qproj(2)
        a('s_waitcnt vmcnt(8)'); qproj(3)
    elif cfg.pro == 1:
        a('s_waitcnt vmcnt(8)'); stamp(a, cfg, 1); qproj(0)
        wq_loads(2)
        a('s_waitcnt vmcnt(8)'); qproj(1)
        wq_loads(3); k0_issue('F')
        a('s_waitcnt vmcnt(16)'); qproj(2)
        a('s_waitcnt vmcnt(8)'); qproj(3)
    else:
        a('s_waitcnt vmcnt(16)'); stamp(a, cfg, 1); qproj(0)
        wq_loads(3); k0_issue('F')
        a('s_waitcnt vmcnt(24)'); qproj(1)
        a('s_waitcnt vmcnt(16)'); qproj(2)
        a('s_waitcnt vmcnt(8)'); qproj(3)
    stamp(a, cfg, 2)
    a('v_lshlrev_b32 v1, 4, v0')
    a('v_add_u32 v3, 65536, v1')
    a('s_nop 5')
    def reg_u(w, u):
        if u < 8: return ('v1', VSLOT(w) + u * 1024)
        return ('v3', w * 4096 + (u - 8) * 1024)
    RB = 10
    for w in range(4):
        if w < 3:
            a(f's_cmp_eq_u32 {sr(S_W)}, {w}')
            a(f's_cbranch_scc0 QR_{w + 1}')
        for rhos in ([1, 2], [3]):
            for k, rho in enumerate(rhos):
                dst = (w + rho) & 3
                for s in range(2):
                    for tq in range(3):
                        b_, off = reg_u(w, k * 6 + s * 3 + tq)
                        a(f'ds_write_b128 {b_}, {vr(O(2 * dst + s, tq), 4)} offset:{off}')
            a('s_waitcnt lgkmcnt(0)')
            a('s_barrier')
            for k, rho in enumerate(rhos):
                src = (w - rho) & 3
                for s in range(2):
                    for tq in range(3):
                        b_, off = reg_u(src, k * 6 + s * 3 + tq)
                        a(f'ds_read_b128 {vr(RB + (k * 6 + s * 3 + tq) * 4, 4)}, {b_} offset:{off}')
            for k, rho in enumerate(rhos):
                a(f's_waitcnt lgkmcnt({6 * (len(rhos) - 1 - k)})')
                for s in range(2):
                    for tq in range(3):
                        for r in range(4):
                            o = O(2 * w + s, tq) + r
                            a(f'v_add_f32 {vr(o)}, {vr(o)}, {vr(RB + (k * 6 + s * 3 + tq) * 4 + r)}')
            if rhos[0] == 1: a('s_barrier')
        for tq in range(3):
            for r in range(4):
                a(f'v_cvt_pk_bf16_f32 {vr(RB + 4 * tq + r)}, {vr(O(2 * w, tq) + r)}, {vr(O(2 * w + 1, tq) + r)}')
        for tq in range(3):
            for r in range(4):
                a(f'ds_write_b32 v3, {vr(RB + 4 * tq + r)} offset:{tq * 4096 + r * 1024 + w * 4}')
        if w < 3:
            a('s_branch QR_END')
            a.label(f'QR_{w + 1}')
    a.label('QR_END')
    a('s_waitcnt lgkmcnt(0)')
    a('s_barrier')
    a(f's_cmp_eq_u32 {sr(S_SEC)}, 0')
    a('s_cbranch_scc1 RS_SKIP')
    if cfg.wotouch:
        a('s_and_b32 s54, s2, 255')
        a('s_lshl_b32 s54, s54, 2')
        a(f's_add_u32 s54, s54, {sr(S_W)}')
        a('s_lshr_b32 s55, s54, 9')
        a('s_and_b32 s54, s54, 511')
        a('s_lshl_b32 s54, s54, 13')
        a('s_cmp_eq_u32 s55, 1')
        a('s_cselect_b64 s[12:13], s[74:75], s[72:73]')
        a('s_mov_b32 s14, 4194304')
        a('s_mov_b32 s15, 0x20000')
        a('v_lshlrev_b32 v249, 7, v0')
        a('buffer_load_dword v254, v249, s[12:15], s54 offen')
    a(f's_cmp_lg_u32 {sr(S_W)}, 0')
    a('s_cbranch_scc1 RS_SKIP')
    a('v_lshlrev_b32 v249, 2, v0')
    p2_ids(a)
    flag_line(a, 's57')
    srd(a, 12, S_WS, 's57', 64, WS_FLAG)
    a('buffer_load_dword v253, v249, s[12:15], 0 offen sc1')
    xflag_line(a, 's57')
    srd(a, 12, S_WS, 's57', 8, WS_FLAG)
    a('buffer_load_dword v254, v249, s[12:15], 0 offen sc1')
    a.label('RS_SKIP')
    for tq in range(3):
        for kk in range(4):
            a(f'ds_read_b128 {vr(Q(tq, kk), 4)}, v3 offset:{tq * 4096 + kk * 1024}')
    variants = [('A', cfg.ntA, cfg.upA, cfg.lateA), ('B', cfg.ntB, cfg.upB, cfg.lateB)]
    loop_consts(a, sr(S_KSLOT), sr(S_VSLOT), cfg)
    a('s_waitcnt lgkmcnt(0)')
    stamp(a, cfg, 3)
    a(f's_cmp_eq_u32 {sr(S_ISB)}, 1')
    a('s_cbranch_scc1 START_B')
    tags = []
    for v, nt, nlate, mlate in variants:
        a.label(f'START_{v}')
        nser = 15 if nlate == 0 else 16 - nlate
        a(f's_mov_b32 {sr(S_CNT)}, {nser}')
        a.L.append('.p2align 3')
        a.label(f'LOOP_{v}')
        body_b(a, cfg, f'{v}L', True, nt, 1)
        a(f's_sub_u32 {sr(S_CNT)}, {sr(S_CNT)}, 1')
        a(f's_cmp_lg_u32 {sr(S_CNT)}, 0')
        a(f's_cbranch_scc1 LOOP_{v}')
        tags.append(f'{v}L')
        if nlate:
            assert nlate >= 2
            body_up(a, cfg, f'{v}U', nt); tags.append(f'{v}U')
            if nlate > 2:
                a(f's_mov_b32 {sr(S_CNT)}, {nlate - 2}')
                a.L.append('.p2align 3')
                a.label(f'LOOP2_{v}')
                body_b(a, cfg, f'{v}2', True, nt, mlate)
                a(f's_sub_u32 {sr(S_CNT)}, {sr(S_CNT)}, 1')
                a(f's_cmp_lg_u32 {sr(S_CNT)}, 0')
                a(f's_cbranch_scc1 LOOP2_{v}')
                tags.append(f'{v}2')
            body_b(a, cfg, f'{v}F', False, nt, mlate)
        else:
            body_b(a, cfg, f'{v}F', False, nt, 1)
        tags.append(f'{v}F')
        if v != variants[-1][0]: a('s_branch LAST')
    a.label('LAST')
    stamp(a, cfg, 4)
    for tq in range(3): xlane_reduce(a, 'v_add_f32', LSUM + tq, TMP)
    a('v_lshlrev_b32 v1, 4, v0')
    a('v_add_u32 v3, 65536, v1')
    a('v_lshlrev_b32 v2, 2, v0')
    a('v_add_u32 v2, 65536, v2')
    a(f's_lshl_b32 s54, {sr(S_ISB)}, 3')
    a(f's_add_u32 s54, s54, {sr(S_B)}')
    a('s_mul_i32 s54, s54, 393216')
    a(f's_lshl_b32 s55, {sr(S_H)}, 2')
    a(f's_add_u32 s55, s55, {sr(S_W)}')
    a('s_lshl_b32 s55, s55, 10')
    a('s_add_u32 s54, s54, s55')
    srd(a, SX, S_WS, 's54', 2 * 131072 + 1024, WS_O)
    def lds_u(w, u):
        if u < 8: return ('v1', KSLOT(w) + u * 1024)
        if u < 16: return ('v1', VSLOT(w) + (u - 8) * 1024)
        return ('v3', w * 4096 + (u - 16) * 1024)
    for w in range(4):
        if w < 3:
            a(f's_cmp_eq_u32 {sr(S_W)}, {w}')
            a(f's_cbranch_scc0 EP_{w + 1}')
        for k in range(3):
            a(f'ds_write_b32 v2, {vr(MREF + k)} offset:{w * 4096 + 2048 + k * 256}')
            a(f'ds_write_b32 v2, {vr(LSUM + k)} offset:{w * 4096 + 2048 + (3 + k) * 256}')
        for rho in range(1, 4):
            dst = (w + rho) & 3
            for s in range(2):
                for tq in range(3):
                    b_, off = lds_u(w, (rho - 1) * 6 + s * 3 + tq)
                    a(f'ds_write_b128 {b_}, {vr(O(2 * dst + s, tq), 4)} offset:{off}')
        a('s_waitcnt lgkmcnt(0)')
        a('s_barrier')
        for w2 in range(4):
            for k in range(6):
                a(f'ds_read_b32 {vr(F0 + w2 * 6 + k)}, v2 offset:{w2 * 4096 + 2048 + k * 256}')
        def buf(idx): return Q0 + idx * 4 if idx < 12 else S0 + (idx - 12) * 4
        idx = 0; where = {}
        for rho in range(1, 4):
            src = (w - rho) & 3
            for s in range(2):
                for tq in range(3):
                    b_, off = lds_u(src, (rho - 1) * 6 + s * 3 + tq)
                    a(f'ds_read_b128 {vr(buf(idx), 4)}, {b_} offset:{off}')
                    where[(src, s, tq)] = buf(idx); idx += 1
        a('s_waitcnt lgkmcnt(0)')
        for tq in range(3):
            M = T0 + tq
            m = lambda w2: F0 + w2 * 6 + tq
            l = lambda w2: F0 + w2 * 6 + 3 + tq
            a(f'v_max3_f32 {vr(M)}, {vr(m(0))}, {vr(m(1))}, {vr(m(2))}')
            a(f'v_max_f32 {vr(M)}, {vr(M)}, {vr(m(3))}')
            for w2 in range(4): a(f'v_sub_f32 {vr(m(w2))}, {vr(m(w2))}, {vr(M)}')
            for w2 in range(4): a(f'v_exp_f32 {vr(m(w2))}, {vr(m(w2))}')
            a('s_nop 0')
            a(f'v_mul_f32 {vr(M)}, {vr(m(0))}, {vr(l(0))}')
            for w2 in range(1, 4): a(f'v_fma_f32 {vr(M)}, {vr(m(w2))}, {vr(l(w2))}, {vr(M)}')
            a(f'v_rcp_f32 {vr(M)}, {vr(M)}')
            a('s_nop 0')
            for w2 in range(4): a(f'v_mul_f32 {vr(m(w2))}, {vr(m(w2))}, {vr(M)}')
            for s in range(2):
                o = O(2 * w + s, tq)
                for r in range(4): a(f'v_mul_f32 {vr(o + r)}, {vr(o + r)}, {vr(m(w))}')
                for w2 in range(4):
                    if w2 == w: continue
                    for r in range(4):
                        a(f'v_fma_f32 {vr(o + r)}, {vr(where[(w2, s, tq)] + r)}, {vr(m(w2))}, {vr(o + r)}')
            d = P(tq)
            a(f'v_cvt_pk_bf16_f32 {vr(d)}, {vr(O(2 * w, tq))}, {vr(O(2 * w, tq) + 1)}')
            a(f'v_cvt_pk_bf16_f32 {vr(d + 1)}, {vr(O(2 * w, tq) + 2)}, {vr(O(2 * w, tq) + 3)}')
            a(f'v_cvt_pk_bf16_f32 {vr(d + 2)}, {vr(O(2 * w + 1, tq))}, {vr(O(2 * w + 1, tq) + 1)}')
            a(f'v_cvt_pk_bf16_f32 {vr(d + 3)}, {vr(O(2 * w + 1, tq) + 2)}, {vr(O(2 * w + 1, tq) + 3)}')
            a(f's_mov_b32 {sr(S_T)}, {tq * 131072}')
            a(f'buffer_store_dwordx4 {vr(d, 4)}, v1, {sr(SX, 4)}, {sr(S_T)} offen sc1')
        if w < 3:
            a('s_branch EP_END')
            a.label(f'EP_{w + 1}')
    a.label('EP_END')
    a('s_waitcnt vmcnt(0)')
    a('s_barrier')
    stamp(a, cfg, 6)
    a(f's_cmp_lg_u32 {sr(S_W)}, 0')
    a('s_cbranch_scc1 OSIG_SKIP')
    a('s_memrealtime s[56:57]')
    a(f's_lshl_b32 s54, {sr(S_ISB)}, 3')
    a(f's_add_u32 s54, s54, {sr(S_B)}')
    a('s_lshl_b32 s55, s54, 7')
    a(f's_lshl_b32 s65, {sr(S_H)}, 2')
    a('s_add_u32 s55, s55, s65')
    srd(a, 12, S_WS, 's55', 4, WS_FLAG)
    a('s_waitcnt lgkmcnt(0)')
    a('s_or_b32 s56, s56, 1')
    a('s_mov_b64 exec, 1')
    a('v_mov_b32 v248, s56')
    a('v_mov_b32 v249, 0')
    a('buffer_store_dword v248, v249, s[12:15], 0 offen sc1')
    a('s_mov_b64 exec, -1')
    a('s_lshl_b32 s54, s54, 3')
    signal(a, 'OS', 's54', 0)
    a.label('OSIG_SKIP')
    a(f's_cmp_eq_u32 {sr(S_SEC)}, 1')
    a('s_cbranch_scc1 PROJ')
    a.label('FIN')
    if cfg.stamps >= 2:
        a('s_add_u32 s12, s70, 0x14000000')
        a('s_addc_u32 s13, s71, 0')
        a('s_lshl_b32 s54, s2, 2')
        a(f's_add_u32 s54, s54, {sr(S_W)}')
        a('s_lshl_b32 s54, s54, 8')
        a('s_add_u32 s12, s12, s54')
        a('s_addc_u32 s13, s13, 0')
        a('s_mov_b32 s14, 256')
        a('s_mov_b32 s15, 0x20000')
        a('v_lshlrev_b32 v1, 2, v0')
        a('buffer_store_dword v252, v1, s[12:15], 0 offen')
    if cfg.stamps: stamp_store(a, cfg, 70, 0, sr(S_W), 'K1_END')
    a.label('K1_END')
    a('s_endpgm')
    proj_phase(a, cfg)
    for t_ in tags: slow(a, cfg, t_)


def proj_phase(a, cfg):
    a.label('PROJ')
    p2_ids(a)
    ld = ' sc1' if cfg.psc1 else ''
    a('s_and_b32 s54, s37, 3')
    a('s_lshl_b32 s54, s54, 2')
    a('s_and_b32 s55, s38, 3')
    a('s_add_u32 s26, s54, s55')
    a('s_cmp_eq_u32 s36, 1')
    a('s_cselect_b64 s[72:73], s[74:75], s[72:73]')
    a('s_lshl_b32 s54, s39, 2')
    a(f's_add_u32 s54, s54, {sr(S_W)}')
    a('s_lshl_b32 s27, s54, 14')
    a('s_lshl_b32 s54, s54, 19')
    a('s_lshl_b32 s55, s38, 7')
    a('s_add_u32 s54, s54, s55')
    a('s_add_u32 s4, s72, s54')
    a('s_addc_u32 s5, s73, 0')
    a('s_sub_u32 s6, 4194304, s54')
    a('s_mov_b32 s7, 0x20000')
    a('s_lshl_b32 s54, s36, 3')
    a('s_add_u32 s54, s54, s37')
    a('s_lshl_b32 s29, s54, 3')
    a('s_mul_i32 s54, s54, 393216')
    a('s_add_u32 s54, s54, s27')
    srd(a, 8, S_WS, 's54', 2 * 131072 + 16384, WS_O)
    a('s_mov_b32 s12, s68')
    a('s_mov_b32 s13, s69')
    a('s_mov_b32 s14, 256')
    a('s_mov_b32 s15, 0x20000')
    ACC, WF, OR, SF, TA = 8, 56, 168, 228, 244
    NWF, NOR, NL = 7, 5, 4
    a('v_lshlrev_b32 v4, 4, v0')
    a('v_mov_b32 v6, v253')
    a('v_mov_b32 v7, v254')
    a('v_lshrrev_b32 v1, 4, v0')
    a('v_and_b32 v1, 3, v1')
    a('v_lshlrev_b32 v1, 1, v1')
    a('v_and_b32 v2, 7, v0')
    a('v_xor_b32 v1, v1, v2')
    a('v_lshlrev_b32 v1, 4, v1')
    a('v_lshrrev_b32 v5, 3, v0')
    a('v_lshl_add_u32 v5, v5, 10, v1')
    a('v_lshrrev_b32 v1, 2, v0')
    a('v_lshrrev_b32 v2, 1, v1')
    a('v_and_b32 v2, 3, v2')
    a('v_lshlrev_b32 v2, 5, v2')
    a('v_lshl_add_u32 v2, v1, 7, v2')
    a('v_and_b32 v1, 3, v0')
    a('v_lshl_add_u32 v2, v1, 3, v2')
    a(f's_lshl_b32 s58, {sr(S_W)}, 13')
    a(f'v_add_u32 {vr(TA)}, s58, v2')
    for e in range(1, 4): a(f'v_xor_b32 {vr(TA + e)}, {e << 5}, {vr(TA)}')
    def slot_off(i): return i * 4096 if i < 2 else 32768 + (i - 2) * 4096
    issued = []
    def wo_dma(s_):
        off = slot_off(s_ % NL)
        for n in range(4):
            a(f's_add_u32 m0, s58, {off + n * 1024}')
            a(f's_add_u32 s25, s24, {n * 8192}')
            a('buffer_load_dwordx4 v5, s[4:7], s25 offen lds')
        a('s_add_u32 s24, s24, 0x8000')
        a('s_and_b32 s24, s24, 0x7ffff')
        issued.extend([('w', s_)] * 4)
    def wo_tr(s_, dst):
        off = slot_off(s_ % NL)
        for e in range(4):
            a(f'ds_read_b64_tr_b16 {vr(dst + 4 * e, 2)}, {vr(TA + e)} offset:{off}')
            a(f'ds_read_b64_tr_b16 {vr(dst + 4 * e + 2, 2)}, {vr(TA + e)} offset:{off + 2048}')
    def waitfor(kind, s_):
        last = max(i for i, (k, t) in enumerate(issued) if k == kind and t == s_)
        a(f's_waitcnt vmcnt({min(len(issued) - 1 - last, 63)})')
    def o_load(s_):
        B = OR + (s_ % NOR) * 12
        a(f'buffer_load_dwordx4 {vr(B, 4)}, v4, s[8:11], s28 offen{ld}')
        a('s_add_u32 s25, s28, 0x20000')
        a(f'buffer_load_dwordx4 {vr(B + 4, 4)}, v4, s[8:11], s25 offen{ld}')
        a('s_add_u32 s25, s28, 0x40000')
        a(f'buffer_load_dwordx4 {vr(B + 8, 4)}, v4, s[8:11], s25 offen{ld}')
        a('s_add_u32 s28, s28, 0x400')
        a('s_and_b32 s28, s28, 0x3fff')
        issued.extend([('o', s_)] * 3)
    def poll(tag, srdreg, voff, base, nlo, fallback):
        a('s_mov_b32 s56, 0x3ffff')
        a(f's_mov_b32 exec_lo, {(1 << nlo) - 1}')
        a('s_mov_b32 exec_hi, 0')
        a.label(f'{tag}_L')
        a(f'buffer_load_dword v249, {voff}, {srdreg}, 0 offen sc1')
        a('s_waitcnt vmcnt(0)')
        a(f'v_cmp_eq_u32 vcc, v249, {base}')
        a(f's_cbranch_vccz {tag}_E')
        if fallback:
            a('s_and_b32 s57, s56, 63')
            a('s_cmp_lg_u32 s57, 0')
            a(f's_cbranch_scc1 {tag}_S')
            a('buffer_load_dword v249, v250, s[12:15], 0 offen sc1')
            a('s_waitcnt vmcnt(0)')
            a('v_cmp_ne_u32 vcc, 32, v249')
            a(f's_cbranch_vccz {tag}_E')
            a.label(f'{tag}_S')
        a(f's_sleep {cfg.sleep}')
        a('s_sub_u32 s56, s56, 1')
        a('s_cmp_lg_u32 s56, 0')
        a(f's_cbranch_scc1 {tag}_L')
        a.label(f'{tag}_E')
        a('s_mov_b64 exec, -1')
    a('s_lshl_b32 s24, s26, 15')
    for s_ in range(NL): wo_dma(s_)
    for s_ in range(NWF):
        waitfor('w', s_)
        wo_tr(s_, WF + 16 * s_)
        a('s_waitcnt lgkmcnt(0)')
        wo_dma(s_ + NL)
    stamp(a, cfg, 1)
    a(f's_cmp_lg_u32 {sr(S_W)}, 0')
    a('s_cbranch_scc1 PO_D')
    flag_line(a, 's57')
    srd(a, 16, S_WS, 's57', 64, WS_FLAG)
    a('v_lshlrev_b32 v248, 2, v0')
    a('v_mov_b32 v250, s29')
    poll('PO', 's[16:19]', 'v248', 'v6', 16, True)
    a.label('PO_D')
    a('s_barrier')
    stamp(a, cfg, 2)
    a('s_lshl_b32 s28, s26, 10')
    for s_ in range(NOR): o_load(s_)
    for s_ in range(16):
        if s_ >= NWF:
            waitfor('w', s_)
            wo_tr(s_, SF)
        waitfor('o', s_)
        if s_ >= NWF: a('s_waitcnt lgkmcnt(0)')
        W = WF + 16 * s_ if s_ < NWF else SF
        for e in range(4):
            for tq in range(3):
                acc = ACC + (e * 3 + tq) * 4
                c = '0' if s_ == 0 else vr(acc, 4)
                a(f'v_mfma_f32_16x16x32_bf16 {vr(acc, 4)}, {vr(W + 4 * e, 4)}, {vr(OR + (s_ % NOR) * 12 + 4 * tq, 4)}, {c}')
        if s_ + NOR < 16: o_load(s_ + NOR)
        if s_ >= NWF and s_ + NL < 16: wo_dma(s_ + NL)
    stamp(a, cfg, 3)
    a('s_barrier')
    a(f's_mul_i32 s54, {sr(S_W)}, 12288')
    a('v_add_u32 v1, s54, v4')
    a('s_nop 7')
    for t in range(12):
        a(f'ds_write_b128 v1, {vr(ACC + 4 * t, 4)} offset:{t * 1024}')
    a('s_waitcnt lgkmcnt(0)')
    a('s_barrier')
    a(f's_mul_i32 s54, {sr(S_W)}, 3072')
    a('v_add_u32 v1, s54, v4')
    R = 56
    for v in range(4):
        for tq in range(3):
            a(f'ds_read_b128 {vr(R + (v * 3 + tq) * 4, 4)}, v1 offset:{v * 12288 + tq * 1024}')
    a('s_lshl_b32 s54, s36, 3')
    a('s_add_u32 s54, s54, s37')
    a('s_lshl_b32 s54, s54, 3')
    a('s_add_u32 s54, s54, s38')
    a('s_mul_i32 s54, s54, 12288')
    a(f's_mul_i32 s55, {sr(S_W)}, 3072')
    a('s_add_u32 s54, s54, s55')
    srd(a, 16, S_WS, 's54', 3072, WS_XP)
    a('s_waitcnt lgkmcnt(0)')
    for tq in range(3):
        for r in range(4):
            a(f'v_add_f32 {vr(R + tq * 4 + r)}, {vr(R + tq * 4 + r)}, {vr(R + 12 + tq * 4 + r)}')
            a(f'v_add_f32 {vr(R + 24 + tq * 4 + r)}, {vr(R + 24 + tq * 4 + r)}, {vr(R + 36 + tq * 4 + r)}')
    for tq in range(3):
        for r in range(4):
            a(f'v_add_f32 {vr(R + tq * 4 + r)}, {vr(R + tq * 4 + r)}, {vr(R + 24 + tq * 4 + r)}')
    a(f's_lshr_b32 s55, {sr(S_W)}, 1')
    a('s_cmp_eq_u32 s55, s39')
    a('s_cbranch_scc1 PX_KEEP')
    for tq in range(3):
        a(f'buffer_store_dwordx4 {vr(R + 4 * tq, 4)}, v4, s[16:19], 0 offen offset:{tq * 1024} sc1')
    a('s_waitcnt vmcnt(0)')
    a.label('PX_KEEP')
    a('s_barrier')
    a(f's_cmp_lg_u32 {sr(S_W)}, 0')
    a('s_cbranch_scc1 PX_D')
    a('s_memrealtime s[54:55]')
    xflag_line(a, 's57')
    srd(a, 20 + 20, S_WS, 's57', 8, WS_FLAG)
    a('s_lshl_b32 s57, s39, 2')
    a('v_mov_b32 v248, s57')
    a('s_waitcnt lgkmcnt(0)')
    a('s_or_b32 s54, s54, 1')
    a('v_mov_b32 v249, s54')
    a('s_mov_b64 exec, 1')
    a('buffer_store_dword v249, v248, s[40:43], 0 offen sc1')
    a('s_mov_b64 exec, -1')
    a('s_xor_b32 s57, s39, 1')
    a('v_readlane_b32 s55, v7, s57')
    a('s_lshl_b32 s57, s57, 2')
    a('v_mov_b32 v248, s57')
    a('s_nop 1')
    a('v_mov_b32 v251, s55')
    poll('PX', 's[40:43]', 'v248', 'v251', 1, False)
    a.label('PX_D')
    a('s_barrier')
    a(f's_lshr_b32 s55, {sr(S_W)}, 1')
    a('s_cmp_lg_u32 s55, s39')
    a('s_cbranch_scc1 FIN')
    for tq in range(3):
        a(f'buffer_load_dwordx4 {vr(R + 12 + 4 * tq, 4)}, v4, s[16:19], 0 offen offset:{tq * 1024} sc1')
    a('v_and_b32 v2, 15, v0')
    a('v_lshrrev_b32 v1, 4, v0')
    a('v_lshlrev_b32 v2, 11, v2')
    a('v_lshl_add_u32 v2, v1, 3, v2')
    a('s_mov_b32 s12, s66')
    a('s_mov_b32 s13, s67')
    a('s_mov_b32 s14, 786432')
    a('s_mov_b32 s15, 0x20000')
    a('s_mul_i32 s54, s37, 48')
    a('s_lshl_b32 s54, s54, 11')
    a('s_lshl_b32 s55, s36, 10')
    a('s_add_u32 s54, s54, s55')
    a('s_lshl_b32 s55, s38, 7')
    a('s_add_u32 s54, s54, s55')
    a(f's_lshl_b32 s55, {sr(S_W)}, 5')
    a('s_add_u32 s54, s54, s55')
    a('s_waitcnt vmcnt(0)')
    for tq in range(3):
        for r in range(4):
            a(f'v_add_f32 {vr(R + tq * 4 + r)}, {vr(R + tq * 4 + r)}, {vr(R + 12 + tq * 4 + r)}')
        a(f'v_cvt_pk_bf16_f32 {vr(R + 24 + 2 * tq)}, {vr(R + tq * 4)}, {vr(R + tq * 4 + 1)}')
        a(f'v_cvt_pk_bf16_f32 {vr(R + 25 + 2 * tq)}, {vr(R + tq * 4 + 2)}, {vr(R + tq * 4 + 3)}')
        a(f's_add_u32 s55, s54, {tq * 32768}')
        a(f'buffer_store_dwordx2 {vr(R + 24 + 2 * tq, 2)}, v2, s[12:15], s55 offen')
    a('s_branch FIN')

HDR = open('cdna_kernels/' + NAME + '.s.ref').read().split('; Override launch')[0]

def kd(name, vgpr, sgpr):
    return f'''.amdhsa_kernel {name}
  .amdhsa_next_free_vgpr {vgpr}
  .amdhsa_next_free_sgpr {sgpr}
  .amdhsa_accum_offset {((vgpr + 3) // 4) * 4}
  .amdhsa_group_segment_fixed_size 0
  .amdhsa_kernarg_size 104
  .amdhsa_user_sgpr_count 2
  .amdhsa_user_sgpr_kernarg_segment_ptr 1
  .amdhsa_system_sgpr_workgroup_id_x 1
.end_amdhsa_kernel
'''

def gen(cfg):
    a = Asm()
    cfg.k1name = NAME + '_kernel'
    out = HDR
    out += '; @launch grid=(512,1,1) block=(256,1,1) lds=81920\n'
    out += '.amdgcn_target "amdgcn-amd-amdhsa--gfx950"\n.text\n'
    attn_kernel(a, cfg)
    out += a.text()
    out += '.section .rodata,"a"\n.p2align 6\n'
    out += kd(cfg.k1name, 256, 100)
    return out

if __name__ == '__main__':
    ap = argparse.ArgumentParser()
    ap.add_argument('-o', default='cdna_kernels/' + NAME + '.s')
    ap.add_argument('--stamps', type=int, default=0)
    ap.add_argument('--ntA', default='def')
    ap.add_argument('--modeA', type=int, default=1)
    ap.add_argument('--warm', type=int, default=1)
    ap.add_argument('--prioB', type=int, default=0)
    ap.add_argument('--ntB', default='nt')
    ap.add_argument('--modeB', type=int, default=1)
    ap.add_argument('--swapab', type=int, default=1)
    ap.add_argument('--only1', type=int, default=0)
    ap.add_argument('--k2ring', type=int, default=6)
    ap.add_argument('--sleep', type=int, default=16)
    ap.add_argument('--psc1', type=int, default=1)
    ap.add_argument('--arot', type=int, default=1)
    ap.add_argument('--wotouch', type=int, default=0)
    ap.add_argument('--qrot', type=int, default=2)
    ap.add_argument('--upA', type=int, default=0)
    ap.add_argument('--upB', type=int, default=0)
    ap.add_argument('--lateA', type=int, default=0)
    ap.add_argument('--lateB', type=int, default=0)
    ap.add_argument('--pro', type=int, default=0)
    ap.add_argument('--typemode', type=int, default=0)
    ap.add_argument('--noinit', type=int, default=1)
    ap.add_argument('--bxor', type=int, default=0)
    cfg = ap.parse_args()
    def pf(x):
        x = x.replace('def', '')
        return tuple(x.split(',')) if ',' in x else (x, x)
    cfg.ntA = pf(cfg.ntA); cfg.ntB = pf(cfg.ntB)
    open(cfg.o, 'w').write(gen(cfg))
    print('wrote', cfg.o)
```

```python
import sys, argparse

NAME = 'concat_heads__gqa_block_cached__mha_block_cached__near_ridge'

class Asm:
    def __init__(self): self.L = []
    def __call__(self, s): self.L.append('    ' + s)
    def label(self, s): self.L.append(s + ':')
    def c(self, s): self.L.append('    ; ' + s)
    def text(self): return '\n'.join(self.L) + '\n'

def vr(b, n=1): return f'v{b}' if n == 1 else f'v[{b}:{b+n-1}]'
def sr(b, n=1): return f's{b}' if n == 1 else f's[{b}:{b+n-1}]'

VOFFK = 4
VOFFV = 8
KADDR = 10
VADDR = 14
MREF = 22
LSUM = 25
LT = 28
TMP = 31
T0 = 32
Q0 = 40
O0 = 88
S0 = 184
P0 = 208
F0 = 220
def Q(tq, kk): return Q0 + (tq * 4 + kk) * 4
def O(td, tq): return O0 + (td * 3 + tq) * 4
def S(kt, tq): return S0 + (kt * 3 + tq) * 4
def P(tq): return P0 + tq * 4
def KF(kt, kk): return F0 + (kt * 4 + kk) * 4
def VF(td): return F0 + td * 4

SK, SV, SX, SWQ = 4, 8, 12, 16
S_W, S_B, S_H, S_ISB = 20, 21, 22, 23
S_KOFF, S_VOFF, S_CNT = 24, 25, 26
S_KSLOT, S_VSLOT, S_SCR = 27, 28, 29
S_C, S_THR, S_SELLO, S_SELHI = 30, 31, 32, 33
S_T = 34
S_G = 58
S_KQ = 60
S_RING = 61
S_RCHK = 64
S_BASE = 64
S_KI, S_VI, S_AQ = 96, 97, 98
S_SEC = 62
S_DBG, S_WS = 68, 70
S_STAMP = 76

KSLOT = lambda w: w * 8192
VSLOT = lambda w: 32768 + w * 8192

WS_O = 0
WS_WOF = 8 << 20
WS_QX = 16 << 20
WS_PX = 20 << 20
WS_FLAG = 40 << 20
WS_XP = 48 << 20
WS_ML = 32 << 20

def stamp(a, cfg, k):
    if cfg.stamps:
        a(f's_memrealtime {sr(S_STAMP + 2 * k, 2)}')
        a('s_waitcnt lgkmcnt(0)')

def stamp_init(a, cfg):
    if cfg.stamps:
        for k in range(16): a(f's_mov_b32 s{S_STAMP + k}, 0')

def stamp_store(a, cfg, wsreg, rowbase, wavereg, endlabel):
    a('s_waitcnt vmcnt(0)')
    stamp(a, cfg, 7)
    a(f's_cmp_lg_u32 {wavereg}, 0')
    a(f's_cbranch_scc1 {endlabel}')
    a(f's_add_u32 s12, s{wsreg}, {0x10000000 + rowbase * 64}')
    a(f's_addc_u32 s13, s{wsreg + 1}, 0')
    a('s_lshl_b32 s54, s2, 6')
    a('s_add_u32 s12, s12, s54')
    a('s_addc_u32 s13, s13, 0')
    a('s_mov_b32 s14, 64')
    a('s_mov_b32 s15, 0x20000')
    a(f's_getreg_b32 s{S_STAMP + 10}, hwreg(HW_REG_HW_ID)')
    a(f's_getreg_b32 s{S_STAMP + 11}, hwreg(HW_REG_XCC_ID)')
    a('v_mbcnt_lo_u32_b32 v0, -1, 0')
    a('v_mbcnt_hi_u32_b32 v0, -1, v0')
    a('v_lshlrev_b32 v1, 2, v0')
    a('v_mov_b32 v2, 0')
    for k in range(16):
        a(f'v_mov_b32 v3, s{S_STAMP + k}')
        a(f'v_cmp_eq_u32 vcc, {k}, v0')
        a('s_nop 1')
        a('v_cndmask_b32 v2, v2, v3, vcc')
    a('buffer_store_dword v2, v1, s[12:15], 0 offen')

def tl(a, cfg):
    if cfg.stamps >= 2:
        a('s_memrealtime s[92:93]')
        a('s_waitcnt lgkmcnt(0)')
        a('s_mov_b32 m0, s59')
        a('s_nop 0')
        a('v_writelane_b32 v252, s92, m0')
        a('s_add_u32 s59, s59, 1')

def fl(nt): return (' ' + nt.replace('+', ' ')) if nt else ''

def dma_tile(a, cfg, srd, voffs, soff, slot, nt, inter=None):
    f = fl(nt)
    for n in range(8):
        if n == 0:
            a(f's_mov_b32 m0, {sr(slot)}')
            a(f's_add_u32 {sr(S_T)}, {sr(soff)}, 0x1000')
        if n == 4:
            a(f's_add_u32 m0, {sr(slot)}, 0x1000')
            a('s_nop 0')
        so = sr(soff) if n < 4 else sr(S_T)
        a(f'buffer_load_dwordx4 {vr(voffs(n))}, {sr(srd, 4)}, {so} offen offset:{(n & 3) * 1024}{f} lds')
        if inter:
            for s in inter[n]: a(s)
    if cfg.arot:
        idx = S_KI if soff == S_KOFF else S_VI
        a(f's_add_u32 {sr(idx)}, {sr(idx)}, 1')
        a(f's_add_u32 {sr(soff)}, {sr(idx)}, {sr(S_AQ)}')
        a(f's_and_b32 {sr(soff)}, {sr(soff)}, 3')
        a(f's_and_b32 {sr(S_T)}, {sr(idx)}, 12')
        a(f's_or_b32 {sr(soff)}, {sr(soff)}, {sr(S_T)}')
        a(f's_lshl_b32 {sr(soff)}, {sr(soff)}, 15')
    else:
        a(f's_add_u32 {sr(soff)}, {sr(soff)}, 0x8000')
        a(f's_and_b32 {sr(soff)}, {sr(soff)}, 0x7ffff')

def xlane_reduce(a, op, x, tmp):
    a(f'v_mov_b32 {vr(tmp)}, {vr(x)}')
    a('s_nop 1')
    a(f'v_permlane32_swap_b32 {vr(x)}, {vr(tmp)}')
    a('s_nop 1')
    a(f'{op} {vr(x)}, {vr(x)}, {vr(tmp)}')
    a(f'v_mov_b32 {vr(tmp)}, {vr(x)}')
    a('s_nop 1')
    a(f'v_permlane16_swap_b32 {vr(x)}, {vr(tmp)}')
    a('s_nop 1')
    a(f'{op} {vr(x)}, {vr(x)}, {vr(tmp)}')

def qk_mfmas():
    mf = []
    for kk in range(4):
        for tq in range(3):
            for kt in range(2):
                c = '0' if kk == 0 else vr(S(kt, tq), 4)
                mf.append(f'v_mfma_f32_16x16x32_bf16 {vr(S(kt, tq), 4)}, {vr(KF(kt, kk), 4)}, {vr(Q(tq, kk), 4)}, {c}')
    return mf

def pv_mfmas():
    return [f'v_mfma_f32_16x16x32_bf16 {vr(O(td, tq), 4)}, {vr(VF(td), 4)}, {vr(P(tq), 4)}, {vr(O(td, tq), 4)}'
            for td in range(8) for tq in range(3)]

def softmax(a, cfg, tag):
    a('s_nop 2')
    a.label(f'SM_{tag}')
    for tq in range(3):
        A, B = T0, T0 + 4
        m = vr(MREF + tq)
        for r in range(4): a(f'v_fma_f32 {vr(A + r)}, {vr(S(0, tq) + r)}, {sr(S_C)}, -{m}')
        for r in range(4): a(f'v_fma_f32 {vr(B + r)}, {vr(S(1, tq) + r)}, {sr(S_C)}, -{m}')
        for r in range(4): a(f'v_exp_f32 {vr(A + r)}, {vr(A + r)}')
        for r in range(4): a(f'v_exp_f32 {vr(B + r)}, {vr(B + r)}')
        a(f'v_cvt_pk_bf16_f32 {vr(P(tq))}, {vr(A)}, {vr(A + 1)}')
        a(f'v_cvt_pk_bf16_f32 {vr(P(tq) + 1)}, {vr(A + 2)}, {vr(A + 3)}')
        a(f'v_add_f32 {vr(A)}, {vr(A)}, {vr(A + 1)}')
        a(f'v_add_f32 {vr(A + 2)}, {vr(A + 2)}, {vr(A + 3)}')
        a(f'v_cvt_pk_bf16_f32 {vr(P(tq) + 2)}, {vr(B)}, {vr(B + 1)}')
        a(f'v_cvt_pk_bf16_f32 {vr(P(tq) + 3)}, {vr(B + 2)}, {vr(B + 3)}')
        a(f'v_add_f32 {vr(B)}, {vr(B)}, {vr(B + 1)}')
        a(f'v_add_f32 {vr(B + 2)}, {vr(B + 2)}, {vr(B + 3)}')
        a(f'v_add_f32 {vr(A)}, {vr(A)}, {vr(A + 2)}')
        a(f'v_add_f32 {vr(B)}, {vr(B)}, {vr(B + 2)}')
        a(f'v_add_f32 {vr(LT + tq)}, {vr(A)}, {vr(B)}')
    a(f'v_max3_f32 {vr(TMP)}, {vr(LT)}, {vr(LT + 1)}, {vr(LT + 2)}')
    a(f'v_cmp_lt_f32 vcc, {sr(S_THR)}, {vr(TMP)}')
    a(f's_cbranch_vccnz SLOW_{tag}')
    a(f's_mov_b32 {sr(S_THR)}, 0x43800000')
    for tq in range(3): a(f'v_add_f32 {vr(LSUM + tq)}, {vr(LSUM + tq)}, {vr(LT + tq)}')

def body_b(a, cfg, tag, prefetch, nt, mode):
    ser = (mode == 1)
    kdma = lambda inter=None: dma_tile(a, cfg, SK, lambda n: VOFFK + (n & 3), S_KOFF, S_KSLOT, nt[0], inter)
    vdma = lambda inter=None: dma_tile(a, cfg, SV, lambda n: VOFFV + (n & 1), S_VOFF, S_VSLOT, nt[1], inter)
    a(f's_waitcnt vmcnt({0 if ser else 8})')
    tl(a, cfg)
    early = ser and cfg.early
    if early: vdma()
    for kt in range(2):
        for kk in range(4):
            a(f'ds_read_b128 {vr(KF(kt, kk), 4)}, {vr(KADDR + kk)} offset:{kt * 4096}')
    a('s_waitcnt lgkmcnt(0)')
    mf = qk_mfmas()
    inter = [mf[3 * n:3 * n + 3] for n in range(8)]
    late = ser and cfg.late
    if late:
        for s_ in mf: a(s_)
        vdma()
    elif ser and not early: vdma(inter)
    elif prefetch and mode in (0, 3): kdma(inter)
    else:
        for s_ in mf: a(s_)
    softmax(a, cfg, tag)
    if prefetch and mode == 2: kdma()
    a(f's_waitcnt vmcnt({8 if (prefetch and not ser) else 0})')
    tl(a, cfg)
    if early and prefetch: kdma()
    for td in range(8):
        a(f'ds_read_b64_tr_b16 {vr(VF(td), 2)}, {vr(VADDR + td)}')
        a(f'ds_read_b64_tr_b16 {vr(VF(td) + 2, 2)}, {vr(VADDR + td)} offset:4096')
    a('s_waitcnt lgkmcnt(0)')
    mf = pv_mfmas()
    inter = [mf[3 * n:3 * n + 3] for n in range(8)]
    if late:
        for s_ in mf: a(s_)
        if prefetch: kdma()
    elif prefetch and ser and not early: kdma(inter)
    elif prefetch and mode == 0: vdma(inter)
    else:
        for s_ in mf: a(s_)
        if prefetch and mode in (2, 3): vdma()

def a_dma(a, cfg, srd, voff, soff, ldsbase, nt):
    a(f's_mov_b32 m0, {sr(ldsbase)}')
    a('s_nop 0')
    for p in range(2):
        a(f'buffer_load_dwordx4 {vr(voff + p)}, {sr(srd, 4)}, {sr(soff)} offen offset:{p * 1024}{fl(nt)} lds')

def body_a(a, cfg, tag):
    nt = cfg.ntA
    a('s_waitcnt vmcnt(8)')
    a('s_barrier')
    tl(a, cfg)
    for kt in range(2):
        for kk in range(4):
            a(f'ds_read_b128 {vr(KF(kt, kk), 4)}, {vr(KADDR + kk)} offset:{kt * 4096}')
    a_dma(a, cfg, SK, VOFFK, S_KOFF, S_RING, nt[0])
    a(f's_add_u32 {sr(S_T)}, {sr(S_RING)}, 0x8000')
    a_dma(a, cfg, SV, VOFFV, S_KOFF, S_T, nt[1])
    a(f's_add_u32 {sr(S_KOFF)}, {sr(S_KOFF)}, 0x2000')
    a(f's_add_u32 {sr(S_RING)}, {sr(S_RING)}, 0x2000')
    a(f's_and_b32 {sr(S_RING)}, {sr(S_RING)}, 0x7fff')
    for kk in range(4):
        a(f'v_add_u32 {vr(KADDR + kk)}, 0x2000, {vr(KADDR + kk)}')
    for kk in range(4):
        a(f'v_and_b32 {vr(KADDR + kk)}, 0x7fff, {vr(KADDR + kk)}')
    a('s_waitcnt lgkmcnt(0)')
    for s_ in qk_mfmas(): a(s_)
    softmax(a, cfg, tag)
    for td in range(8):
        a(f'ds_read_b64_tr_b16 {vr(VF(td), 2)}, {vr(VADDR + td)} offset:32768')
        a(f'ds_read_b64_tr_b16 {vr(VF(td) + 2, 2)}, {vr(VADDR + td)} offset:{32768 + 4096}')
    for td in range(8):
        a(f'v_add_u32 {vr(VADDR + td)}, 0x2000, {vr(VADDR + td)}')
    for td in range(8):
        a(f'v_and_b32 {vr(VADDR + td)}, 0x7fff, {vr(VADDR + td)}')
    a('s_waitcnt lgkmcnt(0)')
    for s_ in pv_mfmas(): a(s_)

def slow(a, cfg, tag):
    a.label(f'SLOW_{tag}')
    for tq in range(3):
        mx = T0 + tq
        s0, s1 = S(0, tq), S(1, tq)
        a(f'v_max3_f32 {vr(mx)}, {vr(s0)}, {vr(s0 + 1)}, {vr(s0 + 2)}')
        a(f'v_max3_f32 {vr(mx)}, {vr(mx)}, {vr(s0 + 3)}, {vr(s1)}')
        a(f'v_max3_f32 {vr(mx)}, {vr(mx)}, {vr(s1 + 1)}, {vr(s1 + 2)}')
        a(f'v_max_f32 {vr(mx)}, {vr(mx)}, {vr(s1 + 3)}')
    for tq in range(3):
        xlane_reduce(a, 'v_max_f32', T0 + tq, TMP)
    for tq in range(3):
        mx, al = T0 + tq, T0 + 4 + tq
        a(f'v_mul_f32 {vr(mx)}, {sr(S_C)}, {vr(mx)}')
        a(f'v_max_f32 {vr(mx)}, {vr(mx)}, {vr(MREF + tq)}')
        a(f'v_sub_f32 {vr(al)}, {vr(MREF + tq)}, {vr(mx)}')
        a(f'v_exp_f32 {vr(al)}, {vr(al)}')
        a(f'v_mov_b32 {vr(MREF + tq)}, {vr(mx)}')
        a(f'v_mul_f32 {vr(LSUM + tq)}, {vr(LSUM + tq)}, {vr(al)}')
        for td in range(8):
            for r in range(4):
                a(f'v_mul_f32 {vr(O(td, tq) + r)}, {vr(O(td, tq) + r)}, {vr(al)}')
    a(f's_mov_b32 {sr(S_THR)}, 0x7f800000')
    a(f's_branch SM_{tag}')

def srd(a, dst, base, off_sgpr, nrec, off_imm=0):
    if off_imm:
        a(f's_add_u32 {off_sgpr}, {off_sgpr}, {off_imm}')
    a(f's_add_u32 s{dst}, s{base}, {off_sgpr}')
    a(f's_addc_u32 s{dst + 1}, s{base + 1}, 0')
    a(f's_mov_b32 s{dst + 2}, {nrec}')
    a(f's_mov_b32 s{dst + 3}, 0x20000')

def sync_group(a, cfg, tag, add, shift):
    a('s_barrier')
    a(f's_cmp_lg_u32 {sr(S_W)}, 0')
    a(f's_cbranch_scc1 {tag}_D')
    a('s_mov_b32 s12, s68')
    a('s_mov_b32 s13, s69')
    a('s_mov_b32 s14, 256')
    a('s_mov_b32 s15, 0x20000')
    a(f's_lshl_b32 s54, {sr(S_G)}, 2')
    a('v_mov_b32 v2, s54')
    a(f'v_mov_b32 v1, {add}')
    a('s_mov_b64 exec, 1')
    a('buffer_atomic_add v1, v2, s[12:15], 0 offen sc1')
    a('s_mov_b64 exec, -1')
    a('s_mov_b32 s56, 0x40000')
    a.label(f'{tag}_L')
    a('buffer_load_dword v1, v2, s[12:15], 0 offen sc1')
    a('s_waitcnt vmcnt(0)')
    a(f'v_bfe_u32 v1, v1, {shift}, 8')
    a('v_cmp_ne_u32 vcc, 4, v1')
    a(f's_cbranch_vccz {tag}_D')
    a(f's_sleep {cfg.sleep}')
    a('s_sub_u32 s56, s56, 1')
    a('s_cmp_lg_u32 s56, 0')
    a(f's_cbranch_scc1 {tag}_L')
    a.label(f'{tag}_D')
    a('s_barrier')

RCNT_OFF = 192

def signal(a, tag, off_sgpr, off_imm):
    a('s_mov_b32 s12, s68')
    a('s_mov_b32 s13, s69')
    a('s_mov_b32 s14, 256')
    a('s_mov_b32 s15, 0x20000')
    a('s_mov_b64 exec, 1')
    a('v_mov_b32 v248, 1')
    a(f'v_mov_b32 v249, {off_sgpr if off_sgpr else off_imm}')
    a('buffer_atomic_add v248, v249, s[12:15], 0 offen sc1')
    a('s_mov_b64 exec, -1')

def proj_ids(a):
    pass

def p2_ids(a):
    a('s_and_b32 s54, s2, 7')
    a('s_lshr_b32 s55, s2, 3')
    a('s_and_b32 s55, s55, 31')
    a('s_lshr_b32 s36, s54, 2')
    a('s_lshr_b32 s37, s54, 1')
    a('s_and_b32 s37, s37, 1')
    a('s_lshl_b32 s37, s37, 2')
    a('s_lshr_b32 s38, s55, 3')
    a('s_add_u32 s37, s37, s38')
    a('s_and_b32 s38, s54, 1')
    a('s_lshl_b32 s38, s38, 2')
    a('s_lshr_b32 s39, s55, 1')
    a('s_and_b32 s39, s39, 3')
    a('s_add_u32 s38, s38, s39')
    a('s_and_b32 s39, s55, 1')

def flag_line(a, dst):
    a('s_lshl_b32 s56, s36, 3')
    a('s_add_u32 s56, s56, s37')
    a('s_lshl_b32 s56, s56, 7')
    a('s_lshl_b32 s54, s39, 6')
    a(f's_add_u32 {dst}, s56, s54')

def xflag_line(a, dst):
    a('s_lshl_b32 s56, s36, 3')
    a('s_add_u32 s56, s56, s37')
    a('s_lshl_b32 s56, s56, 3')
    a('s_add_u32 s56, s56, s38')
    a('s_lshl_b32 s56, s56, 7')
    a(f's_add_u32 {dst}, s56, {32768}')

def rflag_line(a, dst):
    a('s_and_b32 s54, s2, 7')
    a('s_lshr_b32 s55, s2, 3')
    a('s_and_b32 s55, s55, 7')
    a('s_and_b32 s56, s54, 1')
    a('s_lshl_b32 s56, s56, 3')
    a('s_add_u32 s56, s56, s55')
    a('s_lshr_b32 s56, s56, 2')
    a('s_lshr_b32 s54, s54, 2')
    a('s_lshl_b32 s54, s54, 2')
    a('s_add_u32 s56, s56, s54')
    a('s_lshl_b32 s56, s56, 7')
    a(f's_add_u32 {dst}, s56, 2048')

def body_up(a, cfg, tag, nt):
    kdma = lambda inter=None: dma_tile(a, cfg, SK, lambda n: VOFFK + (n & 3), S_KOFF, S_KSLOT, nt[0], inter)
    vdma = lambda inter=None: dma_tile(a, cfg, SV, lambda n: VOFFV + (n & 1), S_VOFF, S_VSLOT, nt[1], inter)
    a('s_waitcnt vmcnt(0)')
    for kt in range(2):
        for kk in range(4):
            a(f'ds_read_b128 {vr(KF(kt, kk), 4)}, {vr(KADDR + kk)} offset:{kt * 4096}')
    a('s_waitcnt lgkmcnt(0)')
    mf = qk_mfmas()
    vdma([mf[3 * n:3 * n + 3] for n in range(8)])
    kdma()
    softmax(a, cfg, tag)
    a('s_waitcnt vmcnt(8)')
    for td in range(8):
        a(f'ds_read_b64_tr_b16 {vr(VF(td), 2)}, {vr(VADDR + td)}')
        a(f'ds_read_b64_tr_b16 {vr(VF(td) + 2, 2)}, {vr(VADDR + td)} offset:4096')
    a('s_waitcnt lgkmcnt(0)')
    mf = pv_mfmas()
    vdma([mf[3 * n:3 * n + 3] for n in range(8)])

def loop_consts(a, kbase, vbase, cfg):
    a('v_lshrrev_b32 v1, 4, v0')
    a('v_and_b32 v2, 15, v0')
    a('v_and_b32 v3, 4, v2')
    a('v_lshlrev_b32 v3, 1, v3')
    a('v_xor_b32 v3, v2, v3')
    a(f'v_lshlrev_b32 {vr(TMP)}, 2, v1')
    a(f'v_xor_b32 {vr(TMP)}, {vr(TMP)}, v3')
    a(f'v_lshlrev_b32 {vr(TMP)}, 4, {vr(TMP)}')
    a(f'v_lshl_add_u32 {vr(KADDR)}, v2, 8, {vr(TMP)}')
    if kbase: a(f'v_add_u32 {vr(KADDR)}, {kbase}, {vr(KADDR)}')
    for kk in range(1, 4): a(f'v_xor_b32 {vr(KADDR + kk)}, {kk << 4}, {vr(KADDR)}')
    a('v_lshrrev_b32 v3, 2, v2')
    a('v_lshl_add_u32 v3, v1, 2, v3')
    a(f'v_and_b32 {vr(TMP)}, 7, v3')
    a(f'v_lshlrev_b32 {vr(TMP)}, 5, {vr(TMP)}')
    a(f'v_lshl_add_u32 {vr(TMP)}, v3, 8, {vr(TMP)}')
    a('v_and_b32 v3, 3, v2')
    a(f'v_lshl_add_u32 {vr(VADDR)}, v3, 3, {vr(TMP)}')
    if vbase: a(f'v_add_u32 {vr(VADDR)}, {vbase}, {vr(VADDR)}')
    for td in range(1, 8): a(f'v_xor_b32 {vr(VADDR + td)}, {td << 5}, {vr(VADDR)}')
    if not cfg.noinit:
        for r in range(96): a(f'v_mov_b32 {vr(O0 + r)}, 0')
    for tq in range(3):
        a(f'v_mov_b32 {vr(MREF + tq)}, 0xff800000')
        a(f'v_mov_b32 {vr(LSUM + tq)}, 0')

def attn_kernel(a, cfg):
    K = cfg.k1name
    a.L.append(f'.globl {K}')
    a.L.append('.p2align 8')
    a.L.append(f'.type {K},@function')
    a.label(K)
    a('s_cmp_ge_u32 s2, 512')
    a('s_cbranch_scc1 K1_END')
    stamp_init(a, cfg)
    stamp(a, cfg, 0)
    a('s_load_dwordx8 s[36:43], s[0:1], 0')
    a('s_load_dwordx8 s[44:51], s[0:1], 40')
    a('s_load_dwordx4 s[68:71], s[0:1], 88')
    a('s_load_dwordx2 s[72:73], s[0:1], 32')
    a('s_load_dwordx2 s[74:75], s[0:1], 72')
    a('s_load_dwordx2 s[66:67], s[0:1], 80')
    a(f's_lshr_b32 {sr(S_SEC)}, s2, 8')
    a('v_lshrrev_b32 v1, 6, v0')
    a('v_and_b32 v0, 63, v0')
    a('s_and_b32 s34, s2, 7')
    a('s_lshr_b32 s35, s2, 3')
    if cfg.typemode == 0:
        a(f's_lshr_b32 {sr(S_ISB)}, s35, 5')
        a('s_and_b32 s35, s35, 31')
    else:
        a(f's_and_b32 {sr(S_ISB)}, s35, 1')
        a('s_lshr_b32 s35, s35, 1')
    if cfg.swapab:
        a(f's_xor_b32 {sr(S_ISB)}, {sr(S_ISB)}, 1')
    a(f'v_readfirstlane_b32 {sr(S_W)}, v1')
    a(f's_lshr_b32 {sr(S_B)}, s35, 2')
    if cfg.bxor: a(f's_xor_b32 {sr(S_B)}, {sr(S_B)}, {cfg.bxor}')
    a(f's_and_b32 {sr(S_KQ)}, s35, 3')
    a('s_lshl_b32 s54, s34, 2')
    a(f's_add_u32 {sr(S_H)}, s54, {sr(S_KQ)}')
    a(f's_lshl_b32 {sr(S_G)}, {sr(S_B)}, 3')
    a(f's_add_u32 {sr(S_G)}, {sr(S_G)}, s34')
    a(f's_lshl_b32 s55, {sr(S_B)}, 5')
    a(f's_add_u32 s55, s55, {sr(S_H)}')
    a(f's_mov_b32 s56, {0x80000 - 3 * 8192}')
    a(f's_cmp_eq_u32 {sr(S_ISB)}, 1')
    a(f's_cselect_b32 s54, s55, {sr(S_G)}')
    a('s_mov_b32 s57, s35')
    a('s_waitcnt lgkmcnt(0)')
    a('s_cselect_b64 s[36:37], s[44:45], s[36:37]')
    a('s_cselect_b64 s[38:39], s[46:47], s[38:39]')
    a('s_cselect_b64 s[40:41], s[48:49], s[40:41]')
    a('s_cselect_b64 s[42:43], s[50:51], s[42:43]')
    a('s_lshl_b32 s54, s54, 19')
    a(f's_lshl_b32 s55, {sr(S_W)}, 13')
    a('s_add_u32 s54, s54, s55')
    a(f's_add_u32 s{SK}, s38, s54')
    a(f's_addc_u32 s{SK+1}, s39, 0')
    a(f's_mov_b32 s{SK+2}, s56')
    a(f's_mov_b32 s{SK+3}, 0x20000')
    a(f's_add_u32 s{SV}, s40, s54')
    a(f's_addc_u32 s{SV+1}, s41, 0')
    a(f's_mov_b32 s{SV+2}, s56')
    a(f's_mov_b32 s{SV+3}, 0x20000')
    if cfg.qrot:
        a(f's_lshr_b32 s64, {sr(S_B)}, 2')
        a('s_lshl_b32 s64, s64, 1')
        if cfg.qrot == 2: a(f's_add_u32 s64, s64, {sr(S_KQ)}')
        a(f's_add_u32 s64, s64, {sr(S_W)}')
        a('s_and_b32 s64, s64, 3')
        a(f's_and_b32 s65, {sr(S_B)}, 3')
    else:
        a(f's_mov_b32 s64, {sr(S_W)}')
        a('s_mov_b32 s65, 0')
    a(f's_mul_i32 s54, {sr(S_B)}, 49152')
    a('s_lshl_b32 s55, s64, 8')
    a('s_add_u32 s54, s54, s55')
    a(f's_add_u32 s{SX}, s36, s54')
    a(f's_addc_u32 s{SX+1}, s37, 0')
    a(f's_sub_u32 s{SX+2}, 393216, s54')
    a(f's_mov_b32 s{SX+3}, 0x20000')
    a('s_lshl_b32 s54, s64, 20')
    a(f's_lshl_b32 s55, {sr(S_H)}, 8')
    a('s_add_u32 s54, s54, s55')
    a(f's_add_u32 s{SWQ}, s42, s54')
    a(f's_addc_u32 s{SWQ+1}, s43, 0')
    a(f's_sub_u32 s{SWQ+2}, 4194304, s54')
    a(f's_mov_b32 s{SWQ+3}, 0x20000')
    a(f's_lshl_b32 {sr(S_KSLOT)}, {sr(S_W)}, 13')
    a(f's_add_u32 {sr(S_VSLOT)}, {sr(S_KSLOT)}, 32768')
    a(f's_lshl_b32 {sr(S_SCR)}, {sr(S_W)}, 12')
    a(f's_add_u32 {sr(S_SCR)}, {sr(S_SCR)}, 65536')
    a('v_lshrrev_b32 v1, 4, v0')
    a('v_and_b32 v2, 15, v0')
    a('v_xor_b32 v3, v2, v1')
    for n, hk in enumerate([0, 3, 2, 1]):
        a(f'v_xor_b32 {vr(VOFFK + n)}, {hk << 2}, v3')
        a(f'v_lshlrev_b32 {vr(VOFFK + n)}, 4, {vr(VOFFK + n)}')
        a(f'v_lshl_add_u32 {vr(VOFFK + n)}, v1, 8, {vr(VOFFK + n)}')
    RAW = [10, 42, 184, 216]
    XF = 74
    TT = 248
    XA = 86
    XOFF = O0
    WQOFF = 2
    a('v_mul_u32_u24 v3, 768, v1')
    for n in range(4): a(f'v_add_u32 {vr(XOFF + n)}, {vr(VOFFK + n)}, v3')
    def k0_issue(tg):
        if cfg.arot:
            a(f's_cmp_eq_u32 {sr(S_ISB)}, 1')
            a(f's_cselect_b32 {sr(S_AQ)}, 0, {sr(S_KQ)}')
            if cfg.arot == 2: a(f's_lshl_b32 {sr(S_AQ)}, {sr(S_AQ)}, 0')
            a(f's_mov_b32 {sr(S_KI)}, 0')
            a(f's_mov_b32 {sr(S_VI)}, 0')
            a(f's_lshl_b32 {sr(S_KOFF)}, {sr(S_AQ)}, 15')
            a(f's_mov_b32 {sr(S_VOFF)}, {sr(S_KOFF)}')
        else:
            a(f's_mov_b32 {sr(S_KOFF)}, 0')
            a(f's_mov_b32 {sr(S_VOFF)}, 0')
        if cfg.ntA[0] == cfg.ntB[0]:
            dma_tile(a, cfg, SK, lambda n: VOFFK + (n & 3), S_KOFF, S_KSLOT, cfg.ntB[0])
        else:
            a(f's_cmp_eq_u32 {sr(S_ISB)}, 1')
            a(f's_cbranch_scc1 K0_B{tg}')
            dma_tile(a, cfg, SK, lambda n: VOFFK + (n & 3), S_KOFF, S_KSLOT, cfg.ntA[0])
            a(f's_branch K0_E{tg}')
            a.label(f'K0_B{tg}')
            dma_tile(a, cfg, SK, lambda n: VOFFK + (n & 3), S_KOFF, S_KSLOT, cfg.ntB[0])
            a.label(f'K0_E{tg}')
    for n in range(12):
        if n < 8: a(f's_add_u32 m0, {sr(S_VSLOT)}, {n * 1024}')
        else: a(f's_add_u32 m0, {sr(S_SCR)}, {(n - 8) * 1024}')
        a(f's_mov_b32 {sr(S_T)}, {n * 4096}')
        a(f'buffer_load_dwordx4 {vr(XOFF + (n & 3))}, {sr(SX, 4)}, {sr(S_T)} offen lds')
    for p in range(2):
        a(f'v_add_u32 v3, {4 * p}, v1')
        a('v_lshlrev_b32 v3, 1, v3')
        a('v_xor_b32 v3, v2, v3')
        a('v_lshlrev_b32 v3, 4, v3')
        a(f'v_lshl_add_u32 {vr(VOFFV + p)}, v1, 8, v3')
    a('v_and_b32 v3, 4, v2')
    a('v_lshlrev_b32 v3, 1, v3')
    a('v_xor_b32 v3, v2, v3')
    a(f'v_xor_b32 {vr(XA)}, v1, v3')
    a(f'v_lshlrev_b32 {vr(XA)}, 4, {vr(XA)}')
    a(f'v_lshl_add_u32 {vr(XA)}, v2, 8, {vr(XA)}')
    a('v_lshlrev_b32 v2, 4, v2')
    a('v_lshl_add_u32 v2, v1, 16, v2')
    def wq_loads(ks):
        a(f's_add_u32 s63, s65, {ks}')
        a('s_and_b32 s63, s63, 3')
        a('s_lshl_b32 s63, s63, 18')
        for n in range(8):
            a(f's_add_u32 {sr(S_T)}, s63, {n * 8192}')
            a(f'buffer_load_dwordx4 {vr(RAW[ks] + 4 * n, 4)}, {vr(WQOFF)}, {sr(SWQ, 4)}, {sr(S_T)} offen')
    wq_loads(0); wq_loads(1)
    if cfg.pro == 0:
        wq_loads(2); wq_loads(3)
        k0_issue('F')
    elif cfg.pro == 2:
        wq_loads(2)
    a(f's_mov_b32 {sr(S_C)}, 0x3e0293ee')
    a(f's_mov_b32 {sr(S_THR)}, 0x43800000')
    a(f's_mov_b32 {sr(S_SELLO)}, 0x05040100')
    a(f's_mov_b32 {sr(S_SELHI)}, 0x07060302')
    def xread(ks):
        a(f's_add_u32 s63, s65, {ks}')
        a('s_and_b32 s63, s63, 3')
        a('s_lshl_b32 s63, s63, 6')
        a(f'v_xor_b32 v3, s63, {vr(XA)}')
        a(f'v_add_u32 v87, {sr(S_VSLOT)}, v3')
        a(f'v_add_u32 v3, {sr(S_SCR)}, v3')
        a(f'ds_read_b128 {vr(XF, 4)}, v87')
        a(f'ds_read_b128 {vr(XF + 4, 4)}, v87 offset:4096')
        a(f'ds_read_b128 {vr(XF + 8, 4)}, v3')
    def qproj(ks):
        Rb = RAW[ks]
        def perms(e, T):
            m, p = e >> 1, e & 1
            sel = S_SELHI if p else S_SELLO
            for q4 in range(4):
                a(f'v_perm_b32 {vr(T + q4)}, {vr(Rb + 4 * (2 * q4 + 1) + m)}, {vr(Rb + 4 * (2 * q4) + m)}, {sr(sel)}')
        def mfmas(e, T):
            for tq in range(3):
                c = '0' if ks == 0 else vr(O(e, tq), 4)
                a(f'v_mfma_f32_16x16x32_bf16 {vr(O(e, tq), 4)}, {vr(T, 4)}, {vr(XF + 4 * tq, 4)}, {c}')
        Ts = [TT, TT + 4]
        xread(ks)
        perms(0, Ts[0])
        for e in range(8):
            if e < 7: perms(e + 1, Ts[(e + 1) & 1])
            else: a('s_nop 1')
            if e == 0: a('s_waitcnt lgkmcnt(0)')
            mfmas(e, Ts[e & 1])
    if cfg.pro == 0:
        a('s_waitcnt vmcnt(32)'); stamp(a, cfg, 1); qproj(0)
        a('s_waitcnt vmcnt(24)'); qproj(1)
        a('s_waitcnt vmcnt(16)'); qproj(2)
        a('s_waitcnt vmcnt(8)'); qproj(3)
    elif cfg.pro == 1:
        a('s_waitcnt vmcnt(8)'); stamp(a, cfg, 1); qproj(0)
        wq_loads(2)
        a('s_waitcnt vmcnt(8)'); qproj(1)
        wq_loads(3); k0_issue('F')
        a('s_waitcnt vmcnt(16)'); qproj(2)
        a('s_waitcnt vmcnt(8)'); qproj(3)
    else:
        a('s_waitcnt vmcnt(16)'); stamp(a, cfg, 1); qproj(0)
        wq_loads(3); k0_issue('F')
        a('s_waitcnt vmcnt(24)'); qproj(1)
        a('s_waitcnt vmcnt(16)'); qproj(2)
        a('s_waitcnt vmcnt(8)'); qproj(3)
    stamp(a, cfg, 2)
    a('v_lshlrev_b32 v1, 4, v0')
    a('v_add_u32 v3, 65536, v1')
    a('s_nop 5')
    def reg_u(w, u):
        if u < 8: return ('v1', VSLOT(w) + u * 1024)
        return ('v3', w * 4096 + (u - 8) * 1024)
    RB = 10
    for w in range(4):
        if w < 3:
            a(f's_cmp_eq_u32 {sr(S_W)}, {w}')
            a(f's_cbranch_scc0 QR_{w + 1}')
        for rhos in ([1, 2], [3]):
            for k, rho in enumerate(rhos):
                dst = (w + rho) & 3
                for s in range(2):
                    for tq in range(3):
                        b_, off = reg_u(w, k * 6 + s * 3 + tq)
                        a(f'ds_write_b128 {b_}, {vr(O(2 * dst + s, tq), 4)} offset:{off}')
            a('s_waitcnt lgkmcnt(0)')
            a('s_barrier')
            for k, rho in enumerate(rhos):
                src = (w - rho) & 3
                for s in range(2):
                    for tq in range(3):
                        b_, off = reg_u(src, k * 6 + s * 3 + tq)
                        a(f'ds_read_b128 {vr(RB + (k * 6 + s * 3 + tq) * 4, 4)}, {b_} offset:{off}')
            for k, rho in enumerate(rhos):
                a(f's_waitcnt lgkmcnt({6 * (len(rhos) - 1 - k)})')
                for s in range(2):
                    for tq in range(3):
                        for r in range(4):
                            o = O(2 * w + s, tq) + r
                            a(f'v_add_f32 {vr(o)}, {vr(o)}, {vr(RB + (k * 6 + s * 3 + tq) * 4 + r)}')
            if rhos[0] == 1: a('s_barrier')
        for tq in range(3):
            for r in range(4):
                a(f'v_cvt_pk_bf16_f32 {vr(RB + 4 * tq + r)}, {vr(O(2 * w, tq) + r)}, {vr(O(2 * w + 1, tq) + r)}')
        for tq in range(3):
            for r in range(4):
                a(f'ds_write_b32 v3, {vr(RB + 4 * tq + r)} offset:{tq * 4096 + r * 1024 + w * 4}')
        if w < 3:
            a('s_branch QR_END')
            a.label(f'QR_{w + 1}')
    a.label('QR_END')
    a('s_waitcnt lgkmcnt(0)')
    a('s_barrier')
    a(f's_cmp_eq_u32 {sr(S_SEC)}, 0')
    a('s_cbranch_scc1 RS_SKIP')
    if cfg.wotouch:
        a('s_and_b32 s54, s2, 255')
        a('s_lshl_b32 s54, s54, 2')
        a(f's_add_u32 s54, s54, {sr(S_W)}')
        a('s_lshr_b32 s55, s54, 9')
        a('s_and_b32 s54, s54, 511')
        a('s_lshl_b32 s54, s54, 13')
        a('s_cmp_eq_u32 s55, 1')
        a('s_cselect_b64 s[12:13], s[74:75], s[72:73]')
        a('s_mov_b32 s14, 4194304')
        a('s_mov_b32 s15, 0x20000')
        a('v_lshlrev_b32 v249, 7, v0')
        a('buffer_load_dword v254, v249, s[12:15], s54 offen')
    a(f's_cmp_lg_u32 {sr(S_W)}, 0')
    a('s_cbranch_scc1 RS_SKIP')
    a('v_lshlrev_b32 v249, 2, v0')
    p2_ids(a)
    flag_line(a, 's57')
    srd(a, 12, S_WS, 's57', 64, WS_FLAG)
    a('buffer_load_dword v253, v249, s[12:15], 0 offen sc1')
    xflag_line(a, 's57')
    srd(a, 12, S_WS, 's57', 8, WS_FLAG)
    a('buffer_load_dword v254, v249, s[12:15], 0 offen sc1')
    a.label('RS_SKIP')
    for tq in range(3):
        for kk in range(4):
            a(f'ds_read_b128 {vr(Q(tq, kk), 4)}, v3 offset:{tq * 4096 + kk * 1024}')
    variants = [('A', cfg.ntA, cfg.upA, cfg.lateA), ('B', cfg.ntB, cfg.upB, cfg.lateB)]
    loop_consts(a, sr(S_KSLOT), sr(S_VSLOT), cfg)
    a('s_waitcnt lgkmcnt(0)')
    stamp(a, cfg, 3)
    a(f's_cmp_eq_u32 {sr(S_ISB)}, 1')
    a('s_cbranch_scc1 START_B')
    tags = []
    for v, nt, nlate, mlate in variants:
        a.label(f'START_{v}')
        nser = 15 if nlate == 0 else 16 - nlate
        a(f's_mov_b32 {sr(S_CNT)}, {nser}')
        a.L.append('.p2align 3')
        a.label(f'LOOP_{v}')
        body_b(a, cfg, f'{v}L', True, nt, 1)
        a(f's_sub_u32 {sr(S_CNT)}, {sr(S_CNT)}, 1')
        a(f's_cmp_lg_u32 {sr(S_CNT)}, 0')
        a(f's_cbranch_scc1 LOOP_{v}')
        tags.append(f'{v}L')
        if nlate:
            assert nlate >= 2
            body_up(a, cfg, f'{v}U', nt); tags.append(f'{v}U')
            if nlate > 2:
                a(f's_mov_b32 {sr(S_CNT)}, {nlate - 2}')
                a.L.append('.p2align 3')
                a.label(f'LOOP2_{v}')
                body_b(a, cfg, f'{v}2', True, nt, mlate)
                a(f's_sub_u32 {sr(S_CNT)}, {sr(S_CNT)}, 1')
                a(f's_cmp_lg_u32 {sr(S_CNT)}, 0')
                a(f's_cbranch_scc1 LOOP2_{v}')
                tags.append(f'{v}2')
            body_b(a, cfg, f'{v}F', False, nt, mlate)
        else:
            body_b(a, cfg, f'{v}F', False, nt, 1)
        tags.append(f'{v}F')
        if v != variants[-1][0]: a('s_branch LAST')
    a.label('LAST')
    stamp(a, cfg, 4)
    for tq in range(3): xlane_reduce(a, 'v_add_f32', LSUM + tq, TMP)
    a('v_lshlrev_b32 v1, 4, v0')
    a('v_add_u32 v3, 65536, v1')
    a('v_lshlrev_b32 v2, 2, v0')
    a('v_add_u32 v2, 65536, v2')
    a(f's_lshl_b32 s54, {sr(S_ISB)}, 3')
    a(f's_add_u32 s54, s54, {sr(S_B)}')
    a('s_mul_i32 s54, s54, 393216')
    a(f's_lshl_b32 s55, {sr(S_H)}, 2')
    a(f's_add_u32 s55, s55, {sr(S_W)}')
    a('s_lshl_b32 s55, s55, 10')
    a('s_add_u32 s54, s54, s55')
    srd(a, SX, S_WS, 's54', 2 * 131072 + 1024, WS_O)
    def lds_u(w, u):
        if u < 8: return ('v1', KSLOT(w) + u * 1024)
        if u < 16: return ('v1', VSLOT(w) + (u - 8) * 1024)
        return ('v3', w * 4096 + (u - 16) * 1024)
    for w in range(4):
        if w < 3:
            a(f's_cmp_eq_u32 {sr(S_W)}, {w}')
            a(f's_cbranch_scc0 EP_{w + 1}')
        for k in range(3):
            a(f'ds_write_b32 v2, {vr(MREF + k)} offset:{w * 4096 + 2048 + k * 256}')
            a(f'ds_write_b32 v2, {vr(LSUM + k)} offset:{w * 4096 + 2048 + (3 + k) * 256}')
        for rho in range(1, 4):
            dst = (w + rho) & 3
            for s in range(2):
                for tq in range(3):
                    b_, off = lds_u(w, (rho - 1) * 6 + s * 3 + tq)
                    a(f'ds_write_b128 {b_}, {vr(O(2 * dst + s, tq), 4)} offset:{off}')
        a('s_waitcnt lgkmcnt(0)')
        a('s_barrier')
        for w2 in range(4):
            for k in range(6):
                a(f'ds_read_b32 {vr(F0 + w2 * 6 + k)}, v2 offset:{w2 * 4096 + 2048 + k * 256}')
        def buf(idx): return Q0 + idx * 4 if idx < 12 else S0 + (idx - 12) * 4
        idx = 0; where = {}
        for rho in range(1, 4):
            src = (w - rho) & 3
            for s in range(2):
                for tq in range(3):
                    b_, off = lds_u(src, (rho - 1) * 6 + s * 3 + tq)
                    a(f'ds_read_b128 {vr(buf(idx), 4)}, {b_} offset:{off}')
                    where[(src, s, tq)] = buf(idx); idx += 1
        a('s_waitcnt lgkmcnt(0)')
        for tq in range(3):
            M = T0 + tq
            m = lambda w2: F0 + w2 * 6 + tq
            l = lambda w2: F0 + w2 * 6 + 3 + tq
            a(f'v_max3_f32 {vr(M)}, {vr(m(0))}, {vr(m(1))}, {vr(m(2))}')
            a(f'v_max_f32 {vr(M)}, {vr(M)}, {vr(m(3))}')
            for w2 in range(4): a(f'v_sub_f32 {vr(m(w2))}, {vr(m(w2))}, {vr(M)}')
            for w2 in range(4): a(f'v_exp_f32 {vr(m(w2))}, {vr(m(w2))}')
            a('s_nop 0')
            a(f'v_mul_f32 {vr(M)}, {vr(m(0))}, {vr(l(0))}')
            for w2 in range(1, 4): a(f'v_fma_f32 {vr(M)}, {vr(m(w2))}, {vr(l(w2))}, {vr(M)}')
            a(f'v_rcp_f32 {vr(M)}, {vr(M)}')
            a('s_nop 0')
            for w2 in range(4): a(f'v_mul_f32 {vr(m(w2))}, {vr(m(w2))}, {vr(M)}')
            for s in range(2):
                o = O(2 * w + s, tq)
                for r in range(4): a(f'v_mul_f32 {vr(o + r)}, {vr(o + r)}, {vr(m(w))}')
                for w2 in range(4):
                    if w2 == w: continue
                    for r in range(4):
                        a(f'v_fma_f32 {vr(o + r)}, {vr(where[(w2, s, tq)] + r)}, {vr(m(w2))}, {vr(o + r)}')
            d = P(tq)
            a(f'v_cvt_pk_bf16_f32 {vr(d)}, {vr(O(2 * w, tq))}, {vr(O(2 * w, tq) + 1)}')
            a(f'v_cvt_pk_bf16_f32 {vr(d + 1)}, {vr(O(2 * w, tq) + 2)}, {vr(O(2 * w, tq) + 3)}')
            a(f'v_cvt_pk_bf16_f32 {vr(d + 2)}, {vr(O(2 * w + 1, tq))}, {vr(O(2 * w + 1, tq) + 1)}')
            a(f'v_cvt_pk_bf16_f32 {vr(d + 3)}, {vr(O(2 * w + 1, tq) + 2)}, {vr(O(2 * w + 1, tq) + 3)}')
            a(f's_mov_b32 {sr(S_T)}, {tq * 131072}')
            a(f'buffer_store_dwordx4 {vr(d, 4)}, v1, {sr(SX, 4)}, {sr(S_T)} offen sc1')
        if w < 3:
            a('s_branch EP_END')
            a.label(f'EP_{w + 1}')
    a.label('EP_END')
    a('s_waitcnt vmcnt(0)')
    a('s_barrier')
    stamp(a, cfg, 6)
    a(f's_cmp_lg_u32 {sr(S_W)}, 0')
    a('s_cbranch_scc1 OSIG_SKIP')
    a('s_memrealtime s[56:57]')
    a(f's_lshl_b32 s54, {sr(S_ISB)}, 3')
    a(f's_add_u32 s54, s54, {sr(S_B)}')
    a('s_lshl_b32 s55, s54, 7')
    a(f's_lshl_b32 s65, {sr(S_H)}, 2')
    a('s_add_u32 s55, s55, s65')
    srd(a, 12, S_WS, 's55', 4, WS_FLAG)
    a('s_waitcnt lgkmcnt(0)')
    a('s_or_b32 s56, s56, 1')
    a('s_mov_b64 exec, 1')
    a('v_mov_b32 v248, s56')
    a('v_mov_b32 v249, 0')
    a('buffer_store_dword v248, v249, s[12:15], 0 offen sc1')
    a('s_mov_b64 exec, -1')
    a('s_lshl_b32 s54, s54, 3')
    signal(a, 'OS', 's54', 0)
    a.label('OSIG_SKIP')
    a(f's_cmp_eq_u32 {sr(S_SEC)}, 1')
    a('s_cbranch_scc1 PROJ')
    a.label('FIN')
    if cfg.stamps >= 2:
        a('s_add_u32 s12, s70, 0x14000000')
        a('s_addc_u32 s13, s71, 0')
        a('s_lshl_b32 s54, s2, 2')
        a(f's_add_u32 s54, s54, {sr(S_W)}')
        a('s_lshl_b32 s54, s54, 8')
        a('s_add_u32 s12, s12, s54')
        a('s_addc_u32 s13, s13, 0')
        a('s_mov_b32 s14, 256')
        a('s_mov_b32 s15, 0x20000')
        a('v_lshlrev_b32 v1, 2, v0')
        a('buffer_store_dword v252, v1, s[12:15], 0 offen')
    if cfg.stamps: stamp_store(a, cfg, 70, 0, sr(S_W), 'K1_END')
    a.label('K1_END')
    a('s_endpgm')
    proj_phase(a, cfg)
    for t_ in tags: slow(a, cfg, t_)


def proj_phase(a, cfg):
    a.label('PROJ')
    p2_ids(a)
    ld = ' sc1' if cfg.psc1 else ''
    a('s_and_b32 s54, s37, 3')
    a('s_lshl_b32 s54, s54, 2')
    a('s_and_b32 s55, s38, 3')
    a('s_add_u32 s26, s54, s55')
    a('s_cmp_eq_u32 s36, 1')
    a('s_cselect_b64 s[72:73], s[74:75], s[72:73]')
    a('s_lshl_b32 s54, s39, 2')
    a(f's_add_u32 s54, s54, {sr(S_W)}')
    a('s_lshl_b32 s27, s54, 14')
    a('s_lshl_b32 s54, s54, 19')
    a('s_lshl_b32 s55, s38, 7')
    a('s_add_u32 s54, s54, s55')
    a('s_add_u32 s4, s72, s54')
    a('s_addc_u32 s5, s73, 0')
    a('s_sub_u32 s6, 4194304, s54')
    a('s_mov_b32 s7, 0x20000')
    a('s_lshl_b32 s54, s36, 3')
    a('s_add_u32 s54, s54, s37')
    a('s_lshl_b32 s29, s54, 3')
    a('s_mul_i32 s54, s54, 393216')
    a('s_add_u32 s54, s54, s27')
    srd(a, 8, S_WS, 's54', 2 * 131072 + 16384, WS_O)
    a('s_mov_b32 s12, s68')
    a('s_mov_b32 s13, s69')
    a('s_mov_b32 s14, 256')
    a('s_mov_b32 s15, 0x20000')
    ACC, WF, OR, SF, TA = 8, 56, 168, 228, 244
    NWF, NOR, NL = 7, 5, 4
    a('v_lshlrev_b32 v4, 4, v0')
    a('v_mov_b32 v6, v253')
    a('v_mov_b32 v7, v254')
    a('v_lshrrev_b32 v1, 4, v0')
    a('v_and_b32 v1, 3, v1')
    a('v_lshlrev_b32 v1, 1, v1')
    a('v_and_b32 v2, 7, v0')
    a('v_xor_b32 v1, v1, v2')
    a('v_lshlrev_b32 v1, 4, v1')
    a('v_lshrrev_b32 v5, 3, v0')
    a('v_lshl_add_u32 v5, v5, 10, v1')
    a('v_lshrrev_b32 v1, 2, v0')
    a('v_lshrrev_b32 v2, 1, v1')
    a('v_and_b32 v2, 3, v2')
    a('v_lshlrev_b32 v2, 5, v2')
    a('v_lshl_add_u32 v2, v1, 7, v2')
    a('v_and_b32 v1, 3, v0')
    a('v_lshl_add_u32 v2, v1, 3, v2')
    a(f's_lshl_b32 s58, {sr(S_W)}, 13')
    a(f'v_add_u32 {vr(TA)}, s58, v2')
    for e in range(1, 4): a(f'v_xor_b32 {vr(TA + e)}, {e << 5}, {vr(TA)}')
    def slot_off(i): return i * 4096 if i < 2 else 32768 + (i - 2) * 4096
    issued = []
    def wo_dma(s_):
        off = slot_off(s_ % NL)
        for n in range(4):
            a(f's_add_u32 m0, s58, {off + n * 1024}')
            a(f's_add_u32 s25, s24, {n * 8192}')
            a('buffer_load_dwordx4 v5, s[4:7], s25 offen lds')
        a('s_add_u32 s24, s24, 0x8000')
        a('s_and_b32 s24, s24, 0x7ffff')
        issued.extend([('w', s_)] * 4)
    def wo_tr(s_, dst):
        off = slot_off(s_ % NL)
        for e in range(4):
            a(f'ds_read_b64_tr_b16 {vr(dst + 4 * e, 2)}, {vr(TA + e)} offset:{off}')
            a(f'ds_read_b64_tr_b16 {vr(dst + 4 * e + 2, 2)}, {vr(TA + e)} offset:{off + 2048}')
    def waitfor(kind, s_):
        last = max(i for i, (k, t) in enumerate(issued) if k == kind and t == s_)
        a(f's_waitcnt vmcnt({min(len(issued) - 1 - last, 63)})')
    def o_load(s_):
        B = OR + (s_ % NOR) * 12
        a(f'buffer_load_dwordx4 {vr(B, 4)}, v4, s[8:11], s28 offen{ld}')
        a('s_add_u32 s25, s28, 0x20000')
        a(f'buffer_load_dwordx4 {vr(B + 4, 4)}, v4, s[8:11], s25 offen{ld}')
        a('s_add_u32 s25, s28, 0x40000')
        a(f'buffer_load_dwordx4 {vr(B + 8, 4)}, v4, s[8:11], s25 offen{ld}')
        a('s_add_u32 s28, s28, 0x400')
        a('s_and_b32 s28, s28, 0x3fff')
        issued.extend([('o', s_)] * 3)
    def poll(tag, srdreg, voff, base, nlo, fallback):
        a('s_mov_b32 s56, 0x3ffff')
        a(f's_mov_b32 exec_lo, {(1 << nlo) - 1}')
        a('s_mov_b32 exec_hi, 0')
        a.label(f'{tag}_L')
        a(f'buffer_load_dword v249, {voff}, {srdreg}, 0 offen sc1')
        a('s_waitcnt vmcnt(0)')
        a(f'v_cmp_eq_u32 vcc, v249, {base}')
        a(f's_cbranch_vccz {tag}_E')
        if fallback:
            a('s_and_b32 s57, s56, 63')
            a('s_cmp_lg_u32 s57, 0')
            a(f's_cbranch_scc1 {tag}_S')
            a('buffer_load_dword v249, v250, s[12:15], 0 offen sc1')
            a('s_waitcnt vmcnt(0)')
            a('v_cmp_ne_u32 vcc, 32, v249')
            a(f's_cbranch_vccz {tag}_E')
            a.label(f'{tag}_S')
        a(f's_sleep {cfg.sleep}')
        a('s_sub_u32 s56, s56, 1')
        a('s_cmp_lg_u32 s56, 0')
        a(f's_cbranch_scc1 {tag}_L')
        a.label(f'{tag}_E')
        a('s_mov_b64 exec, -1')
    a('s_lshl_b32 s24, s26, 15')
    for s_ in range(NL): wo_dma(s_)
    for s_ in range(NWF):
        waitfor('w', s_)
        wo_tr(s_, WF + 16 * s_)
        a('s_waitcnt lgkmcnt(0)')
        wo_dma(s_ + NL)
    stamp(a, cfg, 1)
    a(f's_cmp_lg_u32 {sr(S_W)}, 0')
    a('s_cbranch_scc1 PO_D')
    flag_line(a, 's57')
    srd(a, 16, S_WS, 's57', 64, WS_FLAG)
    a('v_lshlrev_b32 v248, 2, v0')
    a('v_mov_b32 v250, s29')
    poll('PO', 's[16:19]', 'v248', 'v6', 16, True)
    a.label('PO_D')
    a('s_barrier')
    stamp(a, cfg, 2)
    a('s_lshl_b32 s28, s26, 10')
    for s_ in range(NOR): o_load(s_)
    for s_ in range(16):
        if s_ >= NWF:
            waitfor('w', s_)
            wo_tr(s_, SF)
        waitfor('o', s_)
        if s_ >= NWF: a('s_waitcnt lgkmcnt(0)')
        W = WF + 16 * s_ if s_ < NWF else SF
        for e in range(4):
            for tq in range(3):
                acc = ACC + (e * 3 + tq) * 4
                c = '0' if s_ == 0 else vr(acc, 4)
                a(f'v_mfma_f32_16x16x32_bf16 {vr(acc, 4)}, {vr(W + 4 * e, 4)}, {vr(OR + (s_ % NOR) * 12 + 4 * tq, 4)}, {c}')
        if s_ + NOR < 16: o_load(s_ + NOR)
        if s_ >= NWF and s_ + NL < 16: wo_dma(s_ + NL)
    stamp(a, cfg, 3)
    a('s_barrier')
    a(f's_mul_i32 s54, {sr(S_W)}, 12288')
    a('v_add_u32 v1, s54, v4')
    a('s_nop 7')
    for t in range(12):
        a(f'ds_write_b128 v1, {vr(ACC + 4 * t, 4)} offset:{t * 1024}')
    a('s_waitcnt lgkmcnt(0)')
    a('s_barrier')
    a(f's_mul_i32 s54, {sr(S_W)}, 3072')
    a('v_add_u32 v1, s54, v4')
    R = 56
    for v in range(4):
        for tq in range(3):
            a(f'ds_read_b128 {vr(R + (v * 3 + tq) * 4, 4)}, v1 offset:{v * 12288 + tq * 1024}')
    a('s_lshl_b32 s54, s36, 3')
    a('s_add_u32 s54, s54, s37')
    a('s_lshl_b32 s54, s54, 3')
    a('s_add_u32 s54, s54, s38')
    a('s_mul_i32 s54, s54, 12288')
    a(f's_mul_i32 s55, {sr(S_W)}, 3072')
    a('s_add_u32 s54, s54, s55')
    srd(a, 16, S_WS, 's54', 3072, WS_XP)
    a('s_waitcnt lgkmcnt(0)')
    for tq in range(3):
        for r in range(4):
            a(f'v_add_f32 {vr(R + tq * 4 + r)}, {vr(R + tq * 4 + r)}, {vr(R + 12 + tq * 4 + r)}')
            a(f'v_add_f32 {vr(R + 24 + tq * 4 + r)}, {vr(R + 24 + tq * 4 + r)}, {vr(R + 36 + tq * 4 + r)}')
    for tq in range(3):
        for r in range(4):
            a(f'v_add_f32 {vr(R + tq * 4 + r)}, {vr(R + tq * 4 + r)}, {vr(R + 24 + tq * 4 + r)}')
    a(f's_lshr_b32 s55, {sr(S_W)}, 1')
    a('s_cmp_eq_u32 s55, s39')
    a('s_cbranch_scc1 PX_KEEP')
    for tq in range(3):
        a(f'buffer_store_dwordx4 {vr(R + 4 * tq, 4)}, v4, s[16:19], 0 offen offset:{tq * 1024} sc1')
    a('s_waitcnt vmcnt(0)')
    a.label('PX_KEEP')
    a('s_barrier')
    a(f's_cmp_lg_u32 {sr(S_W)}, 0')
    a('s_cbranch_scc1 PX_D')
    a('s_memrealtime s[54:55]')
    xflag_line(a, 's57')
    srd(a, 20 + 20, S_WS, 's57', 8, WS_FLAG)
    a('s_lshl_b32 s57, s39, 2')
    a('v_mov_b32 v248, s57')
    a('s_waitcnt lgkmcnt(0)')
    a('s_or_b32 s54, s54, 1')
    a('v_mov_b32 v249, s54')
    a('s_mov_b64 exec, 1')
    a('buffer_store_dword v249, v248, s[40:43], 0 offen sc1')
    a('s_mov_b64 exec, -1')
    a('s_xor_b32 s57, s39, 1')
    a('v_readlane_b32 s55, v7, s57')
    a('s_lshl_b32 s57, s57, 2')
    a('v_mov_b32 v248, s57')
    a('s_nop 1')
    a('v_mov_b32 v251, s55')
    poll('PX', 's[40:43]', 'v248', 'v251', 1, False)
    a.label('PX_D')
    a('s_barrier')
    a(f's_lshr_b32 s55, {sr(S_W)}, 1')
    a('s_cmp_lg_u32 s55, s39')
    a('s_cbranch_scc1 FIN')
    for tq in range(3):
        a(f'buffer_load_dwordx4 {vr(R + 12 + 4 * tq, 4)}, v4, s[16:19], 0 offen offset:{tq * 1024} sc1')
    a('v_and_b32 v2, 15, v0')
    a('v_lshrrev_b32 v1, 4, v0')
    a('v_lshlrev_b32 v2, 11, v2')
    a('v_lshl_add_u32 v2, v1, 3, v2')
    a('s_mov_b32 s12, s66')
    a('s_mov_b32 s13, s67')
    a('s_mov_b32 s14, 786432')
    a('s_mov_b32 s15, 0x20000')
    a('s_mul_i32 s54, s37, 48')
    a('s_lshl_b32 s54, s54, 11')
    a('s_lshl_b32 s55, s36, 10')
    a('s_add_u32 s54, s54, s55')
    a('s_lshl_b32 s55, s38, 7')
    a('s_add_u32 s54, s54, s55')
    a(f's_lshl_b32 s55, {sr(S_W)}, 5')
    a('s_add_u32 s54, s54, s55')
    a('s_waitcnt vmcnt(0)')
    for tq in range(3):
        for r in range(4):
            a(f'v_add_f32 {vr(R + tq * 4 + r)}, {vr(R + tq * 4 + r)}, {vr(R + 12 + tq * 4 + r)}')
        a(f'v_cvt_pk_bf16_f32 {vr(R + 24 + 2 * tq)}, {vr(R + tq * 4)}, {vr(R + tq * 4 + 1)}')
        a(f'v_cvt_pk_bf16_f32 {vr(R + 25 + 2 * tq)}, {vr(R + tq * 4 + 2)}, {vr(R + tq * 4 + 3)}')
        a(f's_add_u32 s55, s54, {tq * 32768}')
        a(f'buffer_store_dwordx2 {vr(R + 24 + 2 * tq, 2)}, v2, s[12:15], s55 offen')
    a('s_branch FIN')

HDR = open('cdna_kernels/' + NAME + '.s.ref').read().split('; Override launch')[0]

def kd(name, vgpr, sgpr):
    return f'''.amdhsa_kernel {name}
  .amdhsa_next_free_vgpr {vgpr}
  .amdhsa_next_free_sgpr {sgpr}
  .amdhsa_accum_offset {((vgpr + 3) // 4) * 4}
  .amdhsa_group_segment_fixed_size 0
  .amdhsa_kernarg_size 104
  .amdhsa_user_sgpr_count 2
  .amdhsa_user_sgpr_kernarg_segment_ptr 1
  .amdhsa_system_sgpr_workgroup_id_x 1
.end_amdhsa_kernel
'''

DESC = """; One fused kernel (generated by my own script). 512 workgroups of 4 waves, two per CU.
;     fp32 (running row max; rescale is deferred until a tile sum exceeds 256, then the true max is taken), O^T += V^T P^T.
"""

def gen(cfg):
    a = Asm()
    cfg.k1name = NAME + '_kernel'
    out = HDR
    out += '; @launch grid=(512,1,1) block=(256,1,1) lds=81920\n'
    out += DESC
    out += '.amdgcn_target "amdgcn-amd-amdhsa--gfx950"\n.text\n'
    attn_kernel(a, cfg)
    out += a.text()
    out += '.section .rodata,"a"\n.p2align 6\n'
    out += kd(cfg.k1name, 256, 100)
    return out

if __name__ == '__main__':
    ap = argparse.ArgumentParser()
    ap.add_argument('-o', default='cdna_kernels/' + NAME + '.s')
    ap.add_argument('--stamps', type=int, default=0)
    ap.add_argument('--ntA', default='def')
    ap.add_argument('--modeA', type=int, default=1)
    ap.add_argument('--warm', type=int, default=1)
    ap.add_argument('--prioB', type=int, default=0)
    ap.add_argument('--ntB', default='nt')
    ap.add_argument('--modeB', type=int, default=1)
    ap.add_argument('--swapab', type=int, default=1)
    ap.add_argument('--only1', type=int, default=0)
    ap.add_argument('--k2ring', type=int, default=6)
    ap.add_argument('--sleep', type=int, default=16)
    ap.add_argument('--psc1', type=int, default=1)
    ap.add_argument('--late', type=int, default=0)
    ap.add_argument('--early', type=int, default=0)
    ap.add_argument('--arot', type=int, default=1)
    ap.add_argument('--wotouch', type=int, default=0)
    ap.add_argument('--qrot', type=int, default=2)
    ap.add_argument('--upA', type=int, default=0)
    ap.add_argument('--upB', type=int, default=0)
    ap.add_argument('--lateA', type=int, default=0)
    ap.add_argument('--lateB', type=int, default=0)
    ap.add_argument('--pro', type=int, default=0)
    ap.add_argument('--typemode', type=int, default=0)
    ap.add_argument('--noinit', type=int, default=1)
    ap.add_argument('--bxor', type=int, default=0)
    cfg = ap.parse_args()
    def pf(x):
        x = x.replace('def', '')
        return tuple(x.split(',')) if ',' in x else (x, x)
    cfg.ntA = pf(cfg.ntA); cfg.ntB = pf(cfg.ntB)
    open(cfg.o, 'w').write(gen(cfg))
    print('wrote', cfg.o)
```

```python
import sys, argparse

NAME = 'concat_heads__gqa_block_cached__mha_block_cached__near_ridge'

class Asm:
    def __init__(self): self.L = []
    def __call__(self, s): self.L.append('    ' + s)
    def label(self, s): self.L.append(s + ':')
    def c(self, s): self.L.append('    ; ' + s)
    def text(self): return '\n'.join(self.L) + '\n'

def vr(b, n=1): return f'v{b}' if n == 1 else f'v[{b}:{b+n-1}]'
def sr(b, n=1): return f's{b}' if n == 1 else f's[{b}:{b+n-1}]'

VOFFK = 4
VOFFV = 8
KADDR = 10
VADDR = 14
MREF = 22
LSUM = 25
LT = 28
TMP = 31
T0 = 32
Q0 = 40
O0 = 88
S0 = 184
P0 = 208
F0 = 220
def Q(tq, kk): return Q0 + (tq * 4 + kk) * 4
def O(td, tq): return O0 + (td * 3 + tq) * 4
def S(kt, tq): return S0 + (kt * 3 + tq) * 4
def P(tq): return P0 + tq * 4
def KF(kt, kk): return F0 + (kt * 4 + kk) * 4
def VF(td): return F0 + td * 4

SK, SV, SX, SWQ = 4, 8, 12, 16
S_W, S_B, S_H, S_ISB = 20, 21, 22, 23
S_KOFF, S_VOFF, S_CNT = 24, 25, 26
S_KSLOT, S_VSLOT, S_SCR = 27, 28, 29
S_C, S_THR, S_SELLO, S_SELHI = 30, 31, 32, 33
S_T = 34
S_G = 58
S_KQ = 60
S_RING = 61
S_RCHK = 64
S_BASE = 64
S_KI, S_VI, S_AQ = 96, 97, 98
S_SEC = 62
S_DBG, S_WS = 68, 70
S_STAMP = 76

KSLOT = lambda w: w * 8192
VSLOT = lambda w: 32768 + w * 8192

WS_O = 0
WS_WOF = 8 << 20
WS_QX = 16 << 20
WS_PX = 20 << 20
WS_FLAG = 40 << 20
WS_XP = 48 << 20
WS_ML = 32 << 20

def stamp(a, cfg, k):
    if cfg.stamps:
        a(f's_memrealtime {sr(S_STAMP + 2 * k, 2)}')
        a('s_waitcnt lgkmcnt(0)')

def stamp_init(a, cfg):
    if cfg.stamps:
        for k in range(16): a(f's_mov_b32 s{S_STAMP + k}, 0')

def stamp_store(a, cfg, wsreg, rowbase, wavereg, endlabel):
    a('s_waitcnt vmcnt(0)')
    stamp(a, cfg, 7)
    a(f's_cmp_lg_u32 {wavereg}, 0')
    a(f's_cbranch_scc1 {endlabel}')
    a(f's_add_u32 s12, s{wsreg}, {0x10000000 + rowbase * 64}')
    a(f's_addc_u32 s13, s{wsreg + 1}, 0')
    a('s_lshl_b32 s54, s2, 6')
    a('s_add_u32 s12, s12, s54')
    a('s_addc_u32 s13, s13, 0')
    a('s_mov_b32 s14, 64')
    a('s_mov_b32 s15, 0x20000')
    a(f's_getreg_b32 s{S_STAMP + 10}, hwreg(HW_REG_HW_ID)')
    a(f's_getreg_b32 s{S_STAMP + 11}, hwreg(HW_REG_XCC_ID)')
    a('v_mbcnt_lo_u32_b32 v0, -1, 0')
    a('v_mbcnt_hi_u32_b32 v0, -1, v0')
    a('v_lshlrev_b32 v1, 2, v0')
    a('v_mov_b32 v2, 0')
    for k in range(16):
        a(f'v_mov_b32 v3, s{S_STAMP + k}')
        a(f'v_cmp_eq_u32 vcc, {k}, v0')
        a('s_nop 1')
        a('v_cndmask_b32 v2, v2, v3, vcc')
    a('buffer_store_dword v2, v1, s[12:15], 0 offen')

def tl(a, cfg):
    if cfg.stamps >= 2:
        a('s_memrealtime s[92:93]')
        a('s_waitcnt lgkmcnt(0)')
        a('s_mov_b32 m0, s59')
        a('s_nop 0')
        a('v_writelane_b32 v252, s92, m0')
        a('s_add_u32 s59, s59, 1')

def fl(nt): return (' ' + nt.replace('+', ' ')) if nt else ''

def dma_tile(a, cfg, srd, voffs, soff, slot, nt, inter=None):
    f = fl(nt)
    for n in range(8):
        if n == 0:
            a(f's_mov_b32 m0, {sr(slot)}')
            a(f's_add_u32 {sr(S_T)}, {sr(soff)}, 0x1000')
        if n == 4:
            a(f's_add_u32 m0, {sr(slot)}, 0x1000')
            a('s_nop 0')
        so = sr(soff) if n < 4 else sr(S_T)
        a(f'buffer_load_dwordx4 {vr(voffs(n))}, {sr(srd, 4)}, {so} offen offset:{(n & 3) * 1024}{f} lds')
        if inter:
            for s in inter[n]: a(s)
    if cfg.arot:
        idx = S_KI if soff == S_KOFF else S_VI
        a(f's_add_u32 {sr(idx)}, {sr(idx)}, 1')
        a(f's_add_u32 {sr(soff)}, {sr(idx)}, {sr(S_AQ)}')
        a(f's_and_b32 {sr(soff)}, {sr(soff)}, 3')
        a(f's_and_b32 {sr(S_T)}, {sr(idx)}, 12')
        a(f's_or_b32 {sr(soff)}, {sr(soff)}, {sr(S_T)}')
        a(f's_lshl_b32 {sr(soff)}, {sr(soff)}, 15')
    else:
        a(f's_add_u32 {sr(soff)}, {sr(soff)}, 0x8000')
        a(f's_and_b32 {sr(soff)}, {sr(soff)}, 0x7ffff')

def xlane_reduce(a, op, x, tmp):
    a(f'v_mov_b32 {vr(tmp)}, {vr(x)}')
    a('s_nop 1')
    a(f'v_permlane32_swap_b32 {vr(x)}, {vr(tmp)}')
    a('s_nop 1')
    a(f'{op} {vr(x)}, {vr(x)}, {vr(tmp)}')
    a(f'v_mov_b32 {vr(tmp)}, {vr(x)}')
    a('s_nop 1')
    a(f'v_permlane16_swap_b32 {vr(x)}, {vr(tmp)}')
    a('s_nop 1')
    a(f'{op} {vr(x)}, {vr(x)}, {vr(tmp)}')

def qk_mfmas():
    mf = []
    for kk in range(4):
        for tq in range(3):
            for kt in range(2):
                c = '0' if kk == 0 else vr(S(kt, tq), 4)
                mf.append(f'v_mfma_f32_16x16x32_bf16 {vr(S(kt, tq), 4)}, {vr(KF(kt, kk), 4)}, {vr(Q(tq, kk), 4)}, {c}')
    return mf

def pv_mfmas():
    return [f'v_mfma_f32_16x16x32_bf16 {vr(O(td, tq), 4)}, {vr(VF(td), 4)}, {vr(P(tq), 4)}, {vr(O(td, tq), 4)}'
            for td in range(8) for tq in range(3)]

def softmax(a, cfg, tag):
    a('s_nop 2')
    a.label(f'SM_{tag}')
    for tq in range(3):
        A, B = T0, T0 + 4
        m = vr(MREF + tq)
        for r in range(4): a(f'v_fma_f32 {vr(A + r)}, {vr(S(0, tq) + r)}, {sr(S_C)}, -{m}')
        for r in range(4): a(f'v_fma_f32 {vr(B + r)}, {vr(S(1, tq) + r)}, {sr(S_C)}, -{m}')
        for r in range(4): a(f'v_exp_f32 {vr(A + r)}, {vr(A + r)}')
        for r in range(4): a(f'v_exp_f32 {vr(B + r)}, {vr(B + r)}')
        a(f'v_cvt_pk_bf16_f32 {vr(P(tq))}, {vr(A)}, {vr(A + 1)}')
        a(f'v_cvt_pk_bf16_f32 {vr(P(tq) + 1)}, {vr(A + 2)}, {vr(A + 3)}')
        a(f'v_add_f32 {vr(A)}, {vr(A)}, {vr(A + 1)}')
        a(f'v_add_f32 {vr(A + 2)}, {vr(A + 2)}, {vr(A + 3)}')
        a(f'v_cvt_pk_bf16_f32 {vr(P(tq) + 2)}, {vr(B)}, {vr(B + 1)}')
        a(f'v_cvt_pk_bf16_f32 {vr(P(tq) + 3)}, {vr(B + 2)}, {vr(B + 3)}')
        a(f'v_add_f32 {vr(B)}, {vr(B)}, {vr(B + 1)}')
        a(f'v_add_f32 {vr(B + 2)}, {vr(B + 2)}, {vr(B + 3)}')
        a(f'v_add_f32 {vr(A)}, {vr(A)}, {vr(A + 2)}')
        a(f'v_add_f32 {vr(B)}, {vr(B)}, {vr(B + 2)}')
        a(f'v_add_f32 {vr(LT + tq)}, {vr(A)}, {vr(B)}')
    a(f'v_max3_f32 {vr(TMP)}, {vr(LT)}, {vr(LT + 1)}, {vr(LT + 2)}')
    a(f'v_cmp_lt_f32 vcc, {sr(S_THR)}, {vr(TMP)}')
    a(f's_cbranch_vccnz SLOW_{tag}')
    a(f's_mov_b32 {sr(S_THR)}, 0x43800000')
    for tq in range(3): a(f'v_add_f32 {vr(LSUM + tq)}, {vr(LSUM + tq)}, {vr(LT + tq)}')

def body_b(a, cfg, tag, prefetch, nt, mode):
    ser = (mode == 1)
    kdma = lambda inter=None: dma_tile(a, cfg, SK, lambda n: VOFFK + (n & 3), S_KOFF, S_KSLOT, nt[0], inter)
    vdma = lambda inter=None: dma_tile(a, cfg, SV, lambda n: VOFFV + (n & 1), S_VOFF, S_VSLOT, nt[1], inter)
    a(f's_waitcnt vmcnt({0 if ser else 8})')
    tl(a, cfg)
    for kt in range(2):
        for kk in range(4):
            a(f'ds_read_b128 {vr(KF(kt, kk), 4)}, {vr(KADDR + kk)} offset:{kt * 4096}')
    a('s_waitcnt lgkmcnt(0)')
    mf = qk_mfmas()
    inter = [mf[3 * n:3 * n + 3] for n in range(8)]
    if ser: vdma(inter)
    elif prefetch and mode in (0, 3): kdma(inter)
    else:
        for s_ in mf: a(s_)
    softmax(a, cfg, tag)
    if prefetch and mode == 2: kdma()
    a(f's_waitcnt vmcnt({8 if (prefetch and not ser) else 0})')
    tl(a, cfg)
    for td in range(8):
        a(f'ds_read_b64_tr_b16 {vr(VF(td), 2)}, {vr(VADDR + td)}')
        a(f'ds_read_b64_tr_b16 {vr(VF(td) + 2, 2)}, {vr(VADDR + td)} offset:4096')
    a('s_waitcnt lgkmcnt(0)')
    mf = pv_mfmas()
    inter = [mf[3 * n:3 * n + 3] for n in range(8)]
    if prefetch and ser: kdma(inter)
    elif prefetch and mode == 0: vdma(inter)
    else:
        for s_ in mf: a(s_)
        if prefetch and mode in (2, 3): vdma()

def a_dma(a, cfg, srd, voff, soff, ldsbase, nt):
    a(f's_mov_b32 m0, {sr(ldsbase)}')
    a('s_nop 0')
    for p in range(2):
        a(f'buffer_load_dwordx4 {vr(voff + p)}, {sr(srd, 4)}, {sr(soff)} offen offset:{p * 1024}{fl(nt)} lds')

def body_a(a, cfg, tag):
    nt = cfg.ntA
    a('s_waitcnt vmcnt(8)')
    a('s_barrier')
    tl(a, cfg)
    for kt in range(2):
        for kk in range(4):
            a(f'ds_read_b128 {vr(KF(kt, kk), 4)}, {vr(KADDR + kk)} offset:{kt * 4096}')
    a_dma(a, cfg, SK, VOFFK, S_KOFF, S_RING, nt[0])
    a(f's_add_u32 {sr(S_T)}, {sr(S_RING)}, 0x8000')
    a_dma(a, cfg, SV, VOFFV, S_KOFF, S_T, nt[1])
    a(f's_add_u32 {sr(S_KOFF)}, {sr(S_KOFF)}, 0x2000')
    a(f's_add_u32 {sr(S_RING)}, {sr(S_RING)}, 0x2000')
    a(f's_and_b32 {sr(S_RING)}, {sr(S_RING)}, 0x7fff')
    for kk in range(4):
        a(f'v_add_u32 {vr(KADDR + kk)}, 0x2000, {vr(KADDR + kk)}')
    for kk in range(4):
        a(f'v_and_b32 {vr(KADDR + kk)}, 0x7fff, {vr(KADDR + kk)}')
    a('s_waitcnt lgkmcnt(0)')
    for s_ in qk_mfmas(): a(s_)
    softmax(a, cfg, tag)
    for td in range(8):
        a(f'ds_read_b64_tr_b16 {vr(VF(td), 2)}, {vr(VADDR + td)} offset:32768')
        a(f'ds_read_b64_tr_b16 {vr(VF(td) + 2, 2)}, {vr(VADDR + td)} offset:{32768 + 4096}')
    for td in range(8):
        a(f'v_add_u32 {vr(VADDR + td)}, 0x2000, {vr(VADDR + td)}')
    for td in range(8):
        a(f'v_and_b32 {vr(VADDR + td)}, 0x7fff, {vr(VADDR + td)}')
    a('s_waitcnt lgkmcnt(0)')
    for s_ in pv_mfmas(): a(s_)

def slow(a, cfg, tag):
    a.label(f'SLOW_{tag}')
    for tq in range(3):
        mx = T0 + tq
        s0, s1 = S(0, tq), S(1, tq)
        a(f'v_max3_f32 {vr(mx)}, {vr(s0)}, {vr(s0 + 1)}, {vr(s0 + 2)}')
        a(f'v_max3_f32 {vr(mx)}, {vr(mx)}, {vr(s0 + 3)}, {vr(s1)}')
        a(f'v_max3_f32 {vr(mx)}, {vr(mx)}, {vr(s1 + 1)}, {vr(s1 + 2)}')
        a(f'v_max_f32 {vr(mx)}, {vr(mx)}, {vr(s1 + 3)}')
    for tq in range(3):
        xlane_reduce(a, 'v_max_f32', T0 + tq, TMP)
    for tq in range(3):
        mx, al = T0 + tq, T0 + 4 + tq
        a(f'v_mul_f32 {vr(mx)}, {sr(S_C)}, {vr(mx)}')
        a(f'v_max_f32 {vr(mx)}, {vr(mx)}, {vr(MREF + tq)}')
        a(f'v_sub_f32 {vr(al)}, {vr(MREF + tq)}, {vr(mx)}')
        a(f'v_exp_f32 {vr(al)}, {vr(al)}')
        a(f'v_mov_b32 {vr(MREF + tq)}, {vr(mx)}')
        a(f'v_mul_f32 {vr(LSUM + tq)}, {vr(LSUM + tq)}, {vr(al)}')
        for td in range(8):
            for r in range(4):
                a(f'v_mul_f32 {vr(O(td, tq) + r)}, {vr(O(td, tq) + r)}, {vr(al)}')
    a(f's_mov_b32 {sr(S_THR)}, 0x7f800000')
    a(f's_branch SM_{tag}')

def srd(a, dst, base, off_sgpr, nrec, off_imm=0):
    if off_imm:
        a(f's_add_u32 {off_sgpr}, {off_sgpr}, {off_imm}')
    a(f's_add_u32 s{dst}, s{base}, {off_sgpr}')
    a(f's_addc_u32 s{dst + 1}, s{base + 1}, 0')
    a(f's_mov_b32 s{dst + 2}, {nrec}')
    a(f's_mov_b32 s{dst + 3}, 0x20000')

def sync_group(a, cfg, tag, add, shift):
    a('s_barrier')
    a(f's_cmp_lg_u32 {sr(S_W)}, 0')
    a(f's_cbranch_scc1 {tag}_D')
    a('s_mov_b32 s12, s68')
    a('s_mov_b32 s13, s69')
    a('s_mov_b32 s14, 256')
    a('s_mov_b32 s15, 0x20000')
    a(f's_lshl_b32 s54, {sr(S_G)}, 2')
    a('v_mov_b32 v2, s54')
    a(f'v_mov_b32 v1, {add}')
    a('s_mov_b64 exec, 1')
    a('buffer_atomic_add v1, v2, s[12:15], 0 offen sc1')
    a('s_mov_b64 exec, -1')
    a('s_mov_b32 s56, 0x40000')
    a.label(f'{tag}_L')
    a('buffer_load_dword v1, v2, s[12:15], 0 offen sc1')
    a('s_waitcnt vmcnt(0)')
    a(f'v_bfe_u32 v1, v1, {shift}, 8')
    a('v_cmp_ne_u32 vcc, 4, v1')
    a(f's_cbranch_vccz {tag}_D')
    a(f's_sleep {cfg.sleep}')
    a('s_sub_u32 s56, s56, 1')
    a('s_cmp_lg_u32 s56, 0')
    a(f's_cbranch_scc1 {tag}_L')
    a.label(f'{tag}_D')
    a('s_barrier')

RCNT_OFF = 192

def signal(a, tag, off_sgpr, off_imm):
    a('s_mov_b32 s12, s68')
    a('s_mov_b32 s13, s69')
    a('s_mov_b32 s14, 256')
    a('s_mov_b32 s15, 0x20000')
    a('s_mov_b64 exec, 1')
    a('v_mov_b32 v248, 1')
    a(f'v_mov_b32 v249, {off_sgpr if off_sgpr else off_imm}')
    a('buffer_atomic_add v248, v249, s[12:15], 0 offen sc1')
    a('s_mov_b64 exec, -1')

def proj_ids(a):
    pass

def p2_ids(a):
    a('s_and_b32 s54, s2, 7')
    a('s_lshr_b32 s55, s2, 3')
    a('s_and_b32 s55, s55, 31')
    a('s_lshr_b32 s36, s54, 2')
    a('s_lshr_b32 s37, s54, 1')
    a('s_and_b32 s37, s37, 1')
    a('s_lshl_b32 s37, s37, 2')
    a('s_lshr_b32 s38, s55, 3')
    a('s_add_u32 s37, s37, s38')
    a('s_and_b32 s38, s54, 1')
    a('s_lshl_b32 s38, s38, 2')
    a('s_lshr_b32 s39, s55, 1')
    a('s_and_b32 s39, s39, 3')
    a('s_add_u32 s38, s38, s39')
    a('s_and_b32 s39, s55, 1')

def flag_line(a, dst):
    a('s_lshl_b32 s56, s36, 3')
    a('s_add_u32 s56, s56, s37')
    a('s_lshl_b32 s56, s56, 7')
    a('s_lshl_b32 s54, s39, 6')
    a(f's_add_u32 {dst}, s56, s54')

def xflag_line(a, dst):
    a('s_lshl_b32 s56, s36, 3')
    a('s_add_u32 s56, s56, s37')
    a('s_lshl_b32 s56, s56, 3')
    a('s_add_u32 s56, s56, s38')
    a('s_lshl_b32 s56, s56, 7')
    a(f's_add_u32 {dst}, s56, {32768}')

def rflag_line(a, dst):
    a('s_and_b32 s54, s2, 7')
    a('s_lshr_b32 s55, s2, 3')
    a('s_and_b32 s55, s55, 7')
    a('s_and_b32 s56, s54, 1')
    a('s_lshl_b32 s56, s56, 3')
    a('s_add_u32 s56, s56, s55')
    a('s_lshr_b32 s56, s56, 2')
    a('s_lshr_b32 s54, s54, 2')
    a('s_lshl_b32 s54, s54, 2')
    a('s_add_u32 s56, s56, s54')
    a('s_lshl_b32 s56, s56, 7')
    a(f's_add_u32 {dst}, s56, 2048')

def body_up(a, cfg, tag, nt):
    kdma = lambda inter=None: dma_tile(a, cfg, SK, lambda n: VOFFK + (n & 3), S_KOFF, S_KSLOT, nt[0], inter)
    vdma = lambda inter=None: dma_tile(a, cfg, SV, lambda n: VOFFV + (n & 1), S_VOFF, S_VSLOT, nt[1], inter)
    a('s_waitcnt vmcnt(0)')
    for kt in range(2):
        for kk in range(4):
            a(f'ds_read_b128 {vr(KF(kt, kk), 4)}, {vr(KADDR + kk)} offset:{kt * 4096}')
    a('s_waitcnt lgkmcnt(0)')
    mf = qk_mfmas()
    vdma([mf[3 * n:3 * n + 3] for n in range(8)])
    kdma()
    softmax(a, cfg, tag)
    a('s_waitcnt vmcnt(8)')
    for td in range(8):
        a(f'ds_read_b64_tr_b16 {vr(VF(td), 2)}, {vr(VADDR + td)}')
        a(f'ds_read_b64_tr_b16 {vr(VF(td) + 2, 2)}, {vr(VADDR + td)} offset:4096')
    a('s_waitcnt lgkmcnt(0)')
    mf = pv_mfmas()
    vdma([mf[3 * n:3 * n + 3] for n in range(8)])

def loop_consts(a, kbase, vbase, cfg):
    a('v_lshrrev_b32 v1, 4, v0')
    a('v_and_b32 v2, 15, v0')
    a('v_and_b32 v3, 4, v2')
    a('v_lshlrev_b32 v3, 1, v3')
    a('v_xor_b32 v3, v2, v3')
    a(f'v_lshlrev_b32 {vr(TMP)}, 2, v1')
    a(f'v_xor_b32 {vr(TMP)}, {vr(TMP)}, v3')
    a(f'v_lshlrev_b32 {vr(TMP)}, 4, {vr(TMP)}')
    a(f'v_lshl_add_u32 {vr(KADDR)}, v2, 8, {vr(TMP)}')
    if kbase: a(f'v_add_u32 {vr(KADDR)}, {kbase}, {vr(KADDR)}')
    for kk in range(1, 4): a(f'v_xor_b32 {vr(KADDR + kk)}, {kk << 4}, {vr(KADDR)}')
    a('v_lshrrev_b32 v3, 2, v2')
    a('v_lshl_add_u32 v3, v1, 2, v3')
    a(f'v_and_b32 {vr(TMP)}, 7, v3')
    a(f'v_lshlrev_b32 {vr(TMP)}, 5, {vr(TMP)}')
    a(f'v_lshl_add_u32 {vr(TMP)}, v3, 8, {vr(TMP)}')
    a('v_and_b32 v3, 3, v2')
    a(f'v_lshl_add_u32 {vr(VADDR)}, v3, 3, {vr(TMP)}')
    if vbase: a(f'v_add_u32 {vr(VADDR)}, {vbase}, {vr(VADDR)}')
    for td in range(1, 8): a(f'v_xor_b32 {vr(VADDR + td)}, {td << 5}, {vr(VADDR)}')
    if not cfg.noinit:
        for r in range(96): a(f'v_mov_b32 {vr(O0 + r)}, 0')
    for tq in range(3):
        a(f'v_mov_b32 {vr(MREF + tq)}, 0xff800000')
        a(f'v_mov_b32 {vr(LSUM + tq)}, 0')

def attn_kernel(a, cfg):
    K = cfg.k1name
    a.L.append(f'.globl {K}')
    a.L.append('.p2align 8')
    a.L.append(f'.type {K},@function')
    a.label(K)
    a('s_cmp_ge_u32 s2, 512')
    a('s_cbranch_scc1 K1_END')
    stamp_init(a, cfg)
    stamp(a, cfg, 0)
    a('s_load_dwordx8 s[36:43], s[0:1], 0')
    a('s_load_dwordx8 s[44:51], s[0:1], 40')
    a('s_load_dwordx4 s[68:71], s[0:1], 88')
    a('s_load_dwordx2 s[72:73], s[0:1], 32')
    a('s_load_dwordx2 s[74:75], s[0:1], 72')
    a('s_load_dwordx2 s[66:67], s[0:1], 80')
    a(f's_lshr_b32 {sr(S_SEC)}, s2, 8')
    a('v_lshrrev_b32 v1, 6, v0')
    a('v_and_b32 v0, 63, v0')
    a('s_and_b32 s34, s2, 7')
    a('s_lshr_b32 s35, s2, 3')
    if cfg.typemode == 0:
        a(f's_lshr_b32 {sr(S_ISB)}, s35, 5')
        a('s_and_b32 s35, s35, 31')
    else:
        a(f's_and_b32 {sr(S_ISB)}, s35, 1')
        a('s_lshr_b32 s35, s35, 1')
    if cfg.swapab:
        a(f's_xor_b32 {sr(S_ISB)}, {sr(S_ISB)}, 1')
    a(f'v_readfirstlane_b32 {sr(S_W)}, v1')
    a(f's_lshr_b32 {sr(S_B)}, s35, 2')
    if cfg.bxor: a(f's_xor_b32 {sr(S_B)}, {sr(S_B)}, {cfg.bxor}')
    a(f's_and_b32 {sr(S_KQ)}, s35, 3')
    a('s_lshl_b32 s54, s34, 2')
    a(f's_add_u32 {sr(S_H)}, s54, {sr(S_KQ)}')
    a(f's_lshl_b32 {sr(S_G)}, {sr(S_B)}, 3')
    a(f's_add_u32 {sr(S_G)}, {sr(S_G)}, s34')
    a(f's_lshl_b32 s55, {sr(S_B)}, 5')
    a(f's_add_u32 s55, s55, {sr(S_H)}')
    a(f's_mov_b32 s56, {0x80000 - 3 * 8192}')
    a(f's_cmp_eq_u32 {sr(S_ISB)}, 1')
    a(f's_cselect_b32 s54, s55, {sr(S_G)}')
    a('s_mov_b32 s57, s35')
    a('s_waitcnt lgkmcnt(0)')
    a('s_cselect_b64 s[36:37], s[44:45], s[36:37]')
    a('s_cselect_b64 s[38:39], s[46:47], s[38:39]')
    a('s_cselect_b64 s[40:41], s[48:49], s[40:41]')
    a('s_cselect_b64 s[42:43], s[50:51], s[42:43]')
    a('s_lshl_b32 s54, s54, 19')
    a(f's_lshl_b32 s55, {sr(S_W)}, 13')
    a('s_add_u32 s54, s54, s55')
    a(f's_add_u32 s{SK}, s38, s54')
    a(f's_addc_u32 s{SK+1}, s39, 0')
    a(f's_mov_b32 s{SK+2}, s56')
    a(f's_mov_b32 s{SK+3}, 0x20000')
    a(f's_add_u32 s{SV}, s40, s54')
    a(f's_addc_u32 s{SV+1}, s41, 0')
    a(f's_mov_b32 s{SV+2}, s56')
    a(f's_mov_b32 s{SV+3}, 0x20000')
    if cfg.qrot:
        a(f's_lshr_b32 s64, {sr(S_B)}, 2')
        a('s_lshl_b32 s64, s64, 1')
        if cfg.qrot == 2: a(f's_add_u32 s64, s64, {sr(S_KQ)}')
        a(f's_add_u32 s64, s64, {sr(S_W)}')
        a('s_and_b32 s64, s64, 3')
        a(f's_and_b32 s65, {sr(S_B)}, 3')
    else:
        a(f's_mov_b32 s64, {sr(S_W)}')
        a('s_mov_b32 s65, 0')
    a(f's_mul_i32 s54, {sr(S_B)}, 49152')
    a('s_lshl_b32 s55, s64, 8')
    a('s_add_u32 s54, s54, s55')
    a(f's_add_u32 s{SX}, s36, s54')
    a(f's_addc_u32 s{SX+1}, s37, 0')
    a(f's_sub_u32 s{SX+2}, 393216, s54')
    a(f's_mov_b32 s{SX+3}, 0x20000')
    a('s_lshl_b32 s54, s64, 20')
    a(f's_lshl_b32 s55, {sr(S_H)}, 8')
    a('s_add_u32 s54, s54, s55')
    a(f's_add_u32 s{SWQ}, s42, s54')
    a(f's_addc_u32 s{SWQ+1}, s43, 0')
    a(f's_sub_u32 s{SWQ+2}, 4194304, s54')
    a(f's_mov_b32 s{SWQ+3}, 0x20000')
    a(f's_lshl_b32 {sr(S_KSLOT)}, {sr(S_W)}, 13')
    a(f's_add_u32 {sr(S_VSLOT)}, {sr(S_KSLOT)}, 32768')
    a(f's_lshl_b32 {sr(S_SCR)}, {sr(S_W)}, 12')
    a(f's_add_u32 {sr(S_SCR)}, {sr(S_SCR)}, 65536')
    a('v_lshrrev_b32 v1, 4, v0')
    a('v_and_b32 v2, 15, v0')
    a('v_xor_b32 v3, v2, v1')
    for n, hk in enumerate([0, 3, 2, 1]):
        a(f'v_xor_b32 {vr(VOFFK + n)}, {hk << 2}, v3')
        a(f'v_lshlrev_b32 {vr(VOFFK + n)}, 4, {vr(VOFFK + n)}')
        a(f'v_lshl_add_u32 {vr(VOFFK + n)}, v1, 8, {vr(VOFFK + n)}')
    RAW = [10, 42, 184, 216]
    XF = 74
    TT = 248
    XA = 86
    XOFF = O0
    WQOFF = 2
    a('v_mul_u32_u24 v3, 768, v1')
    for n in range(4): a(f'v_add_u32 {vr(XOFF + n)}, {vr(VOFFK + n)}, v3')
    def k0_issue(tg):
        if cfg.arot:
            a(f's_cmp_eq_u32 {sr(S_ISB)}, 1')
            a(f's_cselect_b32 {sr(S_AQ)}, 0, {sr(S_KQ)}')
            if cfg.arot == 2: a(f's_lshl_b32 {sr(S_AQ)}, {sr(S_AQ)}, 0')
            a(f's_mov_b32 {sr(S_KI)}, 0')
            a(f's_mov_b32 {sr(S_VI)}, 0')
            a(f's_lshl_b32 {sr(S_KOFF)}, {sr(S_AQ)}, 15')
            a(f's_mov_b32 {sr(S_VOFF)}, {sr(S_KOFF)}')
        else:
            a(f's_mov_b32 {sr(S_KOFF)}, 0')
            a(f's_mov_b32 {sr(S_VOFF)}, 0')
        if cfg.ntA[0] == cfg.ntB[0]:
            dma_tile(a, cfg, SK, lambda n: VOFFK + (n & 3), S_KOFF, S_KSLOT, cfg.ntB[0])
        else:
            a(f's_cmp_eq_u32 {sr(S_ISB)}, 1')
            a(f's_cbranch_scc1 K0_B{tg}')
            dma_tile(a, cfg, SK, lambda n: VOFFK + (n & 3), S_KOFF, S_KSLOT, cfg.ntA[0])
            a(f's_branch K0_E{tg}')
            a.label(f'K0_B{tg}')
            dma_tile(a, cfg, SK, lambda n: VOFFK + (n & 3), S_KOFF, S_KSLOT, cfg.ntB[0])
            a.label(f'K0_E{tg}')
    for n in range(12):
        if n < 8: a(f's_add_u32 m0, {sr(S_VSLOT)}, {n * 1024}')
        else: a(f's_add_u32 m0, {sr(S_SCR)}, {(n - 8) * 1024}')
        a(f's_mov_b32 {sr(S_T)}, {n * 4096}')
        a(f'buffer_load_dwordx4 {vr(XOFF + (n & 3))}, {sr(SX, 4)}, {sr(S_T)} offen lds')
    for p in range(2):
        a(f'v_add_u32 v3, {4 * p}, v1')
        a('v_lshlrev_b32 v3, 1, v3')
        a('v_xor_b32 v3, v2, v3')
        a('v_lshlrev_b32 v3, 4, v3')
        a(f'v_lshl_add_u32 {vr(VOFFV + p)}, v1, 8, v3')
    a('v_and_b32 v3, 4, v2')
    a('v_lshlrev_b32 v3, 1, v3')
    a('v_xor_b32 v3, v2, v3')
    a(f'v_xor_b32 {vr(XA)}, v1, v3')
    a(f'v_lshlrev_b32 {vr(XA)}, 4, {vr(XA)}')
    a(f'v_lshl_add_u32 {vr(XA)}, v2, 8, {vr(XA)}')
    a('v_lshlrev_b32 v2, 4, v2')
    a('v_lshl_add_u32 v2, v1, 16, v2')
    def wq_loads(ks):
        a(f's_add_u32 s63, s65, {ks}')
        a('s_and_b32 s63, s63, 3')
        a('s_lshl_b32 s63, s63, 18')
        for n in range(8):
            a(f's_add_u32 {sr(S_T)}, s63, {n * 8192}')
            a(f'buffer_load_dwordx4 {vr(RAW[ks] + 4 * n, 4)}, {vr(WQOFF)}, {sr(SWQ, 4)}, {sr(S_T)} offen')
    wq_loads(0); wq_loads(1)
    if cfg.pro == 0:
        wq_loads(2); wq_loads(3)
        k0_issue('F')
    elif cfg.pro == 2:
        wq_loads(2)
    a(f's_mov_b32 {sr(S_C)}, 0x3e0293ee')
    a(f's_mov_b32 {sr(S_THR)}, 0x43800000')
    a(f's_mov_b32 {sr(S_SELLO)}, 0x05040100')
    a(f's_mov_b32 {sr(S_SELHI)}, 0x07060302')
    def xread(ks):
        a(f's_add_u32 s63, s65, {ks}')
        a('s_and_b32 s63, s63, 3')
        a('s_lshl_b32 s63, s63, 6')
        a(f'v_xor_b32 v3, s63, {vr(XA)}')
        a(f'v_add_u32 v87, {sr(S_VSLOT)}, v3')
        a(f'v_add_u32 v3, {sr(S_SCR)}, v3')
        a(f'ds_read_b128 {vr(XF, 4)}, v87')
        a(f'ds_read_b128 {vr(XF + 4, 4)}, v87 offset:4096')
        a(f'ds_read_b128 {vr(XF + 8, 4)}, v3')
    def qproj(ks):
        Rb = RAW[ks]
        def perms(e, T):
            m, p = e >> 1, e & 1
            sel = S_SELHI if p else S_SELLO
            for q4 in range(4):
                a(f'v_perm_b32 {vr(T + q4)}, {vr(Rb + 4 * (2 * q4 + 1) + m)}, {vr(Rb + 4 * (2 * q4) + m)}, {sr(sel)}')
        def mfmas(e, T):
            for tq in range(3):
                c = '0' if ks == 0 else vr(O(e, tq), 4)
                a(f'v_mfma_f32_16x16x32_bf16 {vr(O(e, tq), 4)}, {vr(T, 4)}, {vr(XF + 4 * tq, 4)}, {c}')
        Ts = [TT, TT + 4]
        xread(ks)
        perms(0, Ts[0])
        for e in range(8):
            if e < 7: perms(e + 1, Ts[(e + 1) & 1])
            else: a('s_nop 1')
            if e == 0: a('s_waitcnt lgkmcnt(0)')
            mfmas(e, Ts[e & 1])
    if cfg.pro == 0:
        a('s_waitcnt vmcnt(32)'); stamp(a, cfg, 1); qproj(0)
        a('s_waitcnt vmcnt(24)'); qproj(1)
        a('s_waitcnt vmcnt(16)'); qproj(2)
        a('s_waitcnt vmcnt(8)'); qproj(3)
    elif cfg.pro == 1:
        a('s_waitcnt vmcnt(8)'); stamp(a, cfg, 1); qproj(0)
        wq_loads(2)
        a('s_waitcnt vmcnt(8)'); qproj(1)
        wq_loads(3); k0_issue('F')
        a('s_waitcnt vmcnt(16)'); qproj(2)
        a('s_waitcnt vmcnt(8)'); qproj(3)
    else:
        a('s_waitcnt vmcnt(16)'); stamp(a, cfg, 1); qproj(0)
        wq_loads(3); k0_issue('F')
        a('s_waitcnt vmcnt(24)'); qproj(1)
        a('s_waitcnt vmcnt(16)'); qproj(2)
        a('s_waitcnt vmcnt(8)'); qproj(3)
    stamp(a, cfg, 2)
    a('v_lshlrev_b32 v1, 4, v0')
    a('v_add_u32 v3, 65536, v1')
    a('s_nop 5')
    def reg_u(w, u):
        if u < 8: return ('v1', VSLOT(w) + u * 1024)
        return ('v3', w * 4096 + (u - 8) * 1024)
    RB = 10
    for w in range(4):
        if w < 3:
            a(f's_cmp_eq_u32 {sr(S_W)}, {w}')
            a(f's_cbranch_scc0 QR_{w + 1}')
        for rhos in ([1, 2], [3]):
            for k, rho in enumerate(rhos):
                dst = (w + rho) & 3
                for s in range(2):
                    for tq in range(3):
                        b_, off = reg_u(w, k * 6 + s * 3 + tq)
                        a(f'ds_write_b128 {b_}, {vr(O(2 * dst + s, tq), 4)} offset:{off}')
            a('s_waitcnt lgkmcnt(0)')
            a('s_barrier')
            for k, rho in enumerate(rhos):
                src = (w - rho) & 3
                for s in range(2):
                    for tq in range(3):
                        b_, off = reg_u(src, k * 6 + s * 3 + tq)
                        a(f'ds_read_b128 {vr(RB + (k * 6 + s * 3 + tq) * 4, 4)}, {b_} offset:{off}')
            for k, rho in enumerate(rhos):
                a(f's_waitcnt lgkmcnt({6 * (len(rhos) - 1 - k)})')
                for s in range(2):
                    for tq in range(3):
                        for r in range(4):
                            o = O(2 * w + s, tq) + r
                            a(f'v_add_f32 {vr(o)}, {vr(o)}, {vr(RB + (k * 6 + s * 3 + tq) * 4 + r)}')
            if rhos[0] == 1: a('s_barrier')
        for tq in range(3):
            for r in range(4):
                a(f'v_cvt_pk_bf16_f32 {vr(RB + 4 * tq + r)}, {vr(O(2 * w, tq) + r)}, {vr(O(2 * w + 1, tq) + r)}')
        for tq in range(3):
            for r in range(4):
                a(f'ds_write_b32 v3, {vr(RB + 4 * tq + r)} offset:{tq * 4096 + r * 1024 + w * 4}')
        if w < 3:
            a('s_branch QR_END')
            a.label(f'QR_{w + 1}')
    a.label('QR_END')
    a('s_waitcnt lgkmcnt(0)')
    a('s_barrier')
    a(f's_cmp_eq_u32 {sr(S_SEC)}, 0')
    a('s_cbranch_scc1 RS_SKIP')
    if cfg.wotouch:
        a('s_and_b32 s54, s2, 255')
        a('s_lshl_b32 s54, s54, 2')
        a(f's_add_u32 s54, s54, {sr(S_W)}')
        a('s_lshr_b32 s55, s54, 9')
        a('s_and_b32 s54, s54, 511')
        a('s_lshl_b32 s54, s54, 13')
        a('s_cmp_eq_u32 s55, 1')
        a('s_cselect_b64 s[12:13], s[74:75], s[72:73]')
        a('s_mov_b32 s14, 4194304')
        a('s_mov_b32 s15, 0x20000')
        a('v_lshlrev_b32 v249, 7, v0')
        a('buffer_load_dword v254, v249, s[12:15], s54 offen')
    a('v_lshlrev_b32 v249, 2, v0')
    p2_ids(a)
    flag_line(a, 's57')
    a(f's_lshl_b32 s54, {sr(S_W)}, 4')
    a('s_add_u32 s57, s57, s54')
    srd(a, 12, S_WS, 's57', 16, WS_FLAG)
    a('buffer_load_dword v253, v249, s[12:15], 0 offen sc1')
    a(f's_cmp_lg_u32 {sr(S_W)}, 0')
    a('s_cbranch_scc1 RS_SKIP')
    xflag_line(a, 's57')
    srd(a, 12, S_WS, 's57', 8, WS_FLAG)
    a('buffer_load_dword v254, v249, s[12:15], 0 offen sc1')
    a.label('RS_SKIP')
    for tq in range(3):
        for kk in range(4):
            a(f'ds_read_b128 {vr(Q(tq, kk), 4)}, v3 offset:{tq * 4096 + kk * 1024}')
    variants = [('A', cfg.ntA, cfg.upA, cfg.lateA), ('B', cfg.ntB, cfg.upB, cfg.lateB)]
    loop_consts(a, sr(S_KSLOT), sr(S_VSLOT), cfg)
    a('s_waitcnt lgkmcnt(0)')
    stamp(a, cfg, 3)
    a(f's_cmp_eq_u32 {sr(S_ISB)}, 1')
    a('s_cbranch_scc1 START_B')
    tags = []
    for v, nt, nlate, mlate in variants:
        a.label(f'START_{v}')
        nser = 15 if nlate == 0 else 16 - nlate
        a(f's_mov_b32 {sr(S_CNT)}, {nser}')
        a.L.append('.p2align 3')
        a.label(f'LOOP_{v}')
        body_b(a, cfg, f'{v}L', True, nt, 1)
        a(f's_sub_u32 {sr(S_CNT)}, {sr(S_CNT)}, 1')
        a(f's_cmp_lg_u32 {sr(S_CNT)}, 0')
        a(f's_cbranch_scc1 LOOP_{v}')
        tags.append(f'{v}L')
        if nlate:
            assert nlate >= 2
            body_up(a, cfg, f'{v}U', nt); tags.append(f'{v}U')
            if nlate > 2:
                a(f's_mov_b32 {sr(S_CNT)}, {nlate - 2}')
                a.L.append('.p2align 3')
                a.label(f'LOOP2_{v}')
                body_b(a, cfg, f'{v}2', True, nt, mlate)
                a(f's_sub_u32 {sr(S_CNT)}, {sr(S_CNT)}, 1')
                a(f's_cmp_lg_u32 {sr(S_CNT)}, 0')
                a(f's_cbranch_scc1 LOOP2_{v}')
                tags.append(f'{v}2')
            body_b(a, cfg, f'{v}F', False, nt, mlate)
        else:
            body_b(a, cfg, f'{v}F', False, nt, 1)
        tags.append(f'{v}F')
        if v != variants[-1][0]: a('s_branch LAST')
    a.label('LAST')
    stamp(a, cfg, 4)
    for tq in range(3): xlane_reduce(a, 'v_add_f32', LSUM + tq, TMP)
    a('v_lshlrev_b32 v1, 4, v0')
    a('v_add_u32 v3, 65536, v1')
    a('v_lshlrev_b32 v2, 2, v0')
    a('v_add_u32 v2, 65536, v2')
    a(f's_lshl_b32 s54, {sr(S_ISB)}, 3')
    a(f's_add_u32 s54, s54, {sr(S_B)}')
    a('s_mul_i32 s54, s54, 393216')
    a(f's_lshl_b32 s55, {sr(S_H)}, 2')
    a(f's_add_u32 s55, s55, {sr(S_W)}')
    a('s_lshl_b32 s55, s55, 10')
    a('s_add_u32 s54, s54, s55')
    srd(a, SX, S_WS, 's54', 2 * 131072 + 1024, WS_O)
    def lds_u(w, u):
        if u < 8: return ('v1', KSLOT(w) + u * 1024)
        if u < 16: return ('v1', VSLOT(w) + (u - 8) * 1024)
        return ('v3', w * 4096 + (u - 16) * 1024)
    for w in range(4):
        if w < 3:
            a(f's_cmp_eq_u32 {sr(S_W)}, {w}')
            a(f's_cbranch_scc0 EP_{w + 1}')
        for k in range(3):
            a(f'ds_write_b32 v2, {vr(MREF + k)} offset:{w * 4096 + 2048 + k * 256}')
            a(f'ds_write_b32 v2, {vr(LSUM + k)} offset:{w * 4096 + 2048 + (3 + k) * 256}')
        for rho in range(1, 4):
            dst = (w + rho) & 3
            for s in range(2):
                for tq in range(3):
                    b_, off = lds_u(w, (rho - 1) * 6 + s * 3 + tq)
                    a(f'ds_write_b128 {b_}, {vr(O(2 * dst + s, tq), 4)} offset:{off}')
        a('s_waitcnt lgkmcnt(0)')
        a('s_barrier')
        for w2 in range(4):
            for k in range(6):
                a(f'ds_read_b32 {vr(F0 + w2 * 6 + k)}, v2 offset:{w2 * 4096 + 2048 + k * 256}')
        def buf(idx): return Q0 + idx * 4 if idx < 12 else S0 + (idx - 12) * 4
        idx = 0; where = {}
        for rho in range(1, 4):
            src = (w - rho) & 3
            for s in range(2):
                for tq in range(3):
                    b_, off = lds_u(src, (rho - 1) * 6 + s * 3 + tq)
                    a(f'ds_read_b128 {vr(buf(idx), 4)}, {b_} offset:{off}')
                    where[(src, s, tq)] = buf(idx); idx += 1
        a('s_waitcnt lgkmcnt(0)')
        for tq in range(3):
            M = T0 + tq
            m = lambda w2: F0 + w2 * 6 + tq
            l = lambda w2: F0 + w2 * 6 + 3 + tq
            a(f'v_max3_f32 {vr(M)}, {vr(m(0))}, {vr(m(1))}, {vr(m(2))}')
            a(f'v_max_f32 {vr(M)}, {vr(M)}, {vr(m(3))}')
            for w2 in range(4): a(f'v_sub_f32 {vr(m(w2))}, {vr(m(w2))}, {vr(M)}')
            for w2 in range(4): a(f'v_exp_f32 {vr(m(w2))}, {vr(m(w2))}')
            a('s_nop 0')
            a(f'v_mul_f32 {vr(M)}, {vr(m(0))}, {vr(l(0))}')
            for w2 in range(1, 4): a(f'v_fma_f32 {vr(M)}, {vr(m(w2))}, {vr(l(w2))}, {vr(M)}')
            a(f'v_rcp_f32 {vr(M)}, {vr(M)}')
            a('s_nop 0')
            for w2 in range(4): a(f'v_mul_f32 {vr(m(w2))}, {vr(m(w2))}, {vr(M)}')
            for s in range(2):
                o = O(2 * w + s, tq)
                for r in range(4): a(f'v_mul_f32 {vr(o + r)}, {vr(o + r)}, {vr(m(w))}')
                for w2 in range(4):
                    if w2 == w: continue
                    for r in range(4):
                        a(f'v_fma_f32 {vr(o + r)}, {vr(where[(w2, s, tq)] + r)}, {vr(m(w2))}, {vr(o + r)}')
            d = P(tq)
            a(f'v_cvt_pk_bf16_f32 {vr(d)}, {vr(O(2 * w, tq))}, {vr(O(2 * w, tq) + 1)}')
            a(f'v_cvt_pk_bf16_f32 {vr(d + 1)}, {vr(O(2 * w, tq) + 2)}, {vr(O(2 * w, tq) + 3)}')
            a(f'v_cvt_pk_bf16_f32 {vr(d + 2)}, {vr(O(2 * w + 1, tq))}, {vr(O(2 * w + 1, tq) + 1)}')
            a(f'v_cvt_pk_bf16_f32 {vr(d + 3)}, {vr(O(2 * w + 1, tq) + 2)}, {vr(O(2 * w + 1, tq) + 3)}')
            a(f's_mov_b32 {sr(S_T)}, {tq * 131072}')
            a(f'buffer_store_dwordx4 {vr(d, 4)}, v1, {sr(SX, 4)}, {sr(S_T)} offen sc1')
        if w < 3:
            a('s_branch EP_END')
            a.label(f'EP_{w + 1}')
    a.label('EP_END')
    a('s_waitcnt vmcnt(0)')
    a('s_barrier')
    stamp(a, cfg, 6)
    a(f's_cmp_lg_u32 {sr(S_W)}, 0')
    a('s_cbranch_scc1 OSIG_SKIP')
    a('s_memrealtime s[56:57]')
    a(f's_lshl_b32 s54, {sr(S_ISB)}, 3')
    a(f's_add_u32 s54, s54, {sr(S_B)}')
    a('s_lshl_b32 s55, s54, 7')
    a(f's_lshl_b32 s65, {sr(S_H)}, 2')
    a('s_add_u32 s55, s55, s65')
    srd(a, 12, S_WS, 's55', 4, WS_FLAG)
    a('s_waitcnt lgkmcnt(0)')
    a('s_or_b32 s56, s56, 1')
    a('s_mov_b64 exec, 1')
    a('v_mov_b32 v248, s56')
    a('v_mov_b32 v249, 0')
    a('buffer_store_dword v248, v249, s[12:15], 0 offen sc1')
    a('s_mov_b64 exec, -1')
    a('s_lshl_b32 s54, s54, 3')
    signal(a, 'OS', 's54', 0)
    a.label('OSIG_SKIP')
    a(f's_cmp_eq_u32 {sr(S_SEC)}, 1')
    a('s_cbranch_scc1 PROJ')
    a.label('FIN')
    if cfg.stamps >= 2:
        a('s_add_u32 s12, s70, 0x14000000')
        a('s_addc_u32 s13, s71, 0')
        a('s_lshl_b32 s54, s2, 2')
        a(f's_add_u32 s54, s54, {sr(S_W)}')
        a('s_lshl_b32 s54, s54, 8')
        a('s_add_u32 s12, s12, s54')
        a('s_addc_u32 s13, s13, 0')
        a('s_mov_b32 s14, 256')
        a('s_mov_b32 s15, 0x20000')
        a('v_lshlrev_b32 v1, 2, v0')
        a('buffer_store_dword v252, v1, s[12:15], 0 offen')
    if cfg.stamps: stamp_store(a, cfg, 70, 0, sr(S_W), 'K1_END')
    a.label('K1_END')
    a('s_endpgm')
    proj_phase(a, cfg)
    for t_ in tags: slow(a, cfg, t_)


def proj_phase(a, cfg):
    a.label('PROJ')
    p2_ids(a)
    ld = ' sc1' if cfg.psc1 else ''
    a('s_and_b32 s54, s37, 3')
    a('s_lshl_b32 s54, s54, 2')
    a('s_and_b32 s55, s38, 3')
    a('s_add_u32 s26, s54, s55')
    a('s_cmp_eq_u32 s36, 1')
    a('s_cselect_b64 s[72:73], s[74:75], s[72:73]')
    a('s_lshl_b32 s54, s39, 2')
    a(f's_add_u32 s54, s54, {sr(S_W)}')
    a('s_lshl_b32 s27, s54, 14')
    a('s_lshl_b32 s54, s54, 19')
    a('s_lshl_b32 s55, s38, 7')
    a('s_add_u32 s54, s54, s55')
    a('s_add_u32 s4, s72, s54')
    a('s_addc_u32 s5, s73, 0')
    a('s_sub_u32 s6, 4194304, s54')
    a('s_mov_b32 s7, 0x20000')
    a('s_lshl_b32 s54, s36, 3')
    a('s_add_u32 s54, s54, s37')
    a('s_lshl_b32 s29, s54, 3')
    a('s_mul_i32 s54, s54, 393216')
    a('s_add_u32 s54, s54, s27')
    srd(a, 8, S_WS, 's54', 2 * 131072 + 16384, WS_O)
    a('s_mov_b32 s12, s68')
    a('s_mov_b32 s13, s69')
    a('s_mov_b32 s14, 256')
    a('s_mov_b32 s15, 0x20000')
    ACC, WF, OR, SF, TA = 8, 56, 168, 228, 244
    NWF, NOR, NL = 7, 5, 4
    a('v_lshlrev_b32 v4, 4, v0')
    a('v_mov_b32 v6, v253')
    a('v_mov_b32 v7, v254')
    a('v_lshrrev_b32 v1, 4, v0')
    a('v_and_b32 v1, 3, v1')
    a('v_lshlrev_b32 v1, 1, v1')
    a('v_and_b32 v2, 7, v0')
    a('v_xor_b32 v1, v1, v2')
    a('v_lshlrev_b32 v1, 4, v1')
    a('v_lshrrev_b32 v5, 3, v0')
    a('v_lshl_add_u32 v5, v5, 10, v1')
    a('v_lshrrev_b32 v1, 2, v0')
    a('v_lshrrev_b32 v2, 1, v1')
    a('v_and_b32 v2, 3, v2')
    a('v_lshlrev_b32 v2, 5, v2')
    a('v_lshl_add_u32 v2, v1, 7, v2')
    a('v_and_b32 v1, 3, v0')
    a('v_lshl_add_u32 v2, v1, 3, v2')
    a(f's_lshl_b32 s58, {sr(S_W)}, 13')
    a(f'v_add_u32 {vr(TA)}, s58, v2')
    for e in range(1, 4): a(f'v_xor_b32 {vr(TA + e)}, {e << 5}, {vr(TA)}')
    def slot_off(i): return i * 4096 if i < 2 else 32768 + (i - 2) * 4096
    issued = []
    def wo_dma(s_):
        off = slot_off(s_ % NL)
        for n in range(4):
            a(f's_add_u32 m0, s58, {off + n * 1024}')
            a(f's_add_u32 s25, s24, {n * 8192}')
            a('buffer_load_dwordx4 v5, s[4:7], s25 offen lds')
        a('s_add_u32 s24, s24, 0x8000')
        a('s_and_b32 s24, s24, 0x7ffff')
        issued.extend([('w', s_)] * 4)
    def wo_tr(s_, dst):
        off = slot_off(s_ % NL)
        for e in range(4):
            a(f'ds_read_b64_tr_b16 {vr(dst + 4 * e, 2)}, {vr(TA + e)} offset:{off}')
            a(f'ds_read_b64_tr_b16 {vr(dst + 4 * e + 2, 2)}, {vr(TA + e)} offset:{off + 2048}')
    def waitfor(kind, s_):
        last = max(i for i, (k, t) in enumerate(issued) if k == kind and t == s_)
        a(f's_waitcnt vmcnt({min(len(issued) - 1 - last, 63)})')
    def o_load(s_):
        B = OR + (s_ % NOR) * 12
        a(f'buffer_load_dwordx4 {vr(B, 4)}, v4, s[8:11], s28 offen{ld}')
        a('s_add_u32 s25, s28, 0x20000')
        a(f'buffer_load_dwordx4 {vr(B + 4, 4)}, v4, s[8:11], s25 offen{ld}')
        a('s_add_u32 s25, s28, 0x40000')
        a(f'buffer_load_dwordx4 {vr(B + 8, 4)}, v4, s[8:11], s25 offen{ld}')
        a('s_add_u32 s28, s28, 0x400')
        a('s_and_b32 s28, s28, 0x3fff')
        issued.extend([('o', s_)] * 3)
    def poll(tag, srdreg, voff, base, nlo, fallback):
        a('s_mov_b32 s56, 0x3ffff')
        a(f's_mov_b32 exec_lo, {(1 << nlo) - 1}')
        a('s_mov_b32 exec_hi, 0')
        a.label(f'{tag}_L')
        a(f'buffer_load_dword v249, {voff}, {srdreg}, 0 offen sc1')
        a('s_waitcnt vmcnt(0)')
        a(f'v_cmp_eq_u32 vcc, v249, {base}')
        a(f's_cbranch_vccz {tag}_E')
        if fallback:
            a('s_and_b32 s57, s56, 63')
            a('s_cmp_lg_u32 s57, 0')
            a(f's_cbranch_scc1 {tag}_S')
            a('buffer_load_dword v249, v250, s[12:15], 0 offen sc1')
            a('s_waitcnt vmcnt(0)')
            a('v_cmp_ne_u32 vcc, 32, v249')
            a(f's_cbranch_vccz {tag}_E')
            a.label(f'{tag}_S')
        a(f's_sleep {cfg.sleep}')
        a('s_sub_u32 s56, s56, 1')
        a('s_cmp_lg_u32 s56, 0')
        a(f's_cbranch_scc1 {tag}_L')
        a.label(f'{tag}_E')
        a('s_mov_b64 exec, -1')
    flag_line(a, 's57')
    a(f's_lshl_b32 s54, {sr(S_W)}, 4')
    a('s_add_u32 s57, s57, s54')
    srd(a, 16, S_WS, 's57', 16, WS_FLAG)
    a('v_lshlrev_b32 v248, 2, v0')
    a('v_mov_b32 v250, s29')
    a('buffer_load_dword v252, v248, s[16:19], 0 offen sc1')
    a('s_lshl_b32 s24, s26, 15')
    for s_ in range(NL): wo_dma(s_)
    a(f's_waitcnt vmcnt({4 * NL})')
    a('s_mov_b32 exec_lo, 15')
    a('s_mov_b32 exec_hi, 0')
    a('v_cmp_eq_u32 vcc, v252, v6')
    a('s_mov_b64 exec, -1')
    a('s_cbranch_vccz PS_START')
    issuedA = list(issued)
    for s_ in range(NWF):
        waitfor('w', s_)
        wo_tr(s_, WF + 16 * s_)
        a('s_waitcnt lgkmcnt(0)')
        wo_dma(s_ + NL)
    stamp(a, cfg, 1)
    poll('PO', 's[16:19]', 'v248', 'v6', 4, True)
    stamp(a, cfg, 2)
    a('s_lshl_b32 s28, s26, 10')
    for s_ in range(NOR): o_load(s_)
    for s_ in range(16):
        if s_ >= NWF:
            waitfor('w', s_)
            wo_tr(s_, SF)
        waitfor('o', s_)
        if s_ >= NWF: a('s_waitcnt lgkmcnt(0)')
        W = WF + 16 * s_ if s_ < NWF else SF
        for e in range(4):
            for tq in range(3):
                acc = ACC + (e * 3 + tq) * 4
                c = '0' if s_ == 0 else vr(acc, 4)
                a(f'v_mfma_f32_16x16x32_bf16 {vr(acc, 4)}, {vr(W + 4 * e, 4)}, {vr(OR + (s_ % NOR) * 12 + 4 * tq, 4)}, {c}')
        if s_ + NOR < 16: o_load(s_ + NOR)
        if s_ >= NWF and s_ + NL < 16: wo_dma(s_ + NL)
    a('s_branch PS_END')
    a.label('PS_START')
    issued[:] = issuedA
    NOR2, OR2 = 9, WF
    SF2 = [168, 184]
    def o_load2(s_):
        B = OR2 + (s_ % NOR2) * 12
        a(f'buffer_load_dwordx4 {vr(B, 4)}, v4, s[8:11], s28 offen{ld}')
        a('s_add_u32 s25, s28, 0x20000')
        a(f'buffer_load_dwordx4 {vr(B + 4, 4)}, v4, s[8:11], s25 offen{ld}')
        a('s_add_u32 s25, s28, 0x40000')
        a(f'buffer_load_dwordx4 {vr(B + 8, 4)}, v4, s[8:11], s25 offen{ld}')
        a('s_add_u32 s28, s28, 0x400')
        a('s_and_b32 s28, s28, 0x3fff')
        issued.extend([('o', s_)] * 3)
    a('s_lshl_b32 s28, s26, 10')
    for s_ in range(NOR2): o_load2(s_)
    for s_ in range(16):
        waitfor('w', s_)
        wo_tr(s_, SF2[s_ & 1])
        waitfor('o', s_)
        a('s_waitcnt lgkmcnt(0)')
        if s_ + NL < 16: wo_dma(s_ + NL)
        for e in range(4):
            for tq in range(3):
                acc = ACC + (e * 3 + tq) * 4
                c = '0' if s_ == 0 else vr(acc, 4)
                a(f'v_mfma_f32_16x16x32_bf16 {vr(acc, 4)}, {vr(SF2[s_ & 1] + 4 * e, 4)}, {vr(OR2 + (s_ % NOR2) * 12 + 4 * tq, 4)}, {c}')
        if s_ + NOR2 < 16: o_load2(s_ + NOR2)
    a.label('PS_END')
    stamp(a, cfg, 3)
    a('s_barrier')
    a(f's_mul_i32 s54, {sr(S_W)}, 12288')
    a('v_add_u32 v1, s54, v4')
    a('s_nop 7')
    for t in range(12):
        a(f'ds_write_b128 v1, {vr(ACC + 4 * t, 4)} offset:{t * 1024}')
    a('s_waitcnt lgkmcnt(0)')
    a('s_barrier')
    a(f's_mul_i32 s54, {sr(S_W)}, 3072')
    a('v_add_u32 v1, s54, v4')
    R = 56
    for v in range(4):
        for tq in range(3):
            a(f'ds_read_b128 {vr(R + (v * 3 + tq) * 4, 4)}, v1 offset:{v * 12288 + tq * 1024}')
    a('s_lshl_b32 s54, s36, 3')
    a('s_add_u32 s54, s54, s37')
    a('s_lshl_b32 s54, s54, 3')
    a('s_add_u32 s54, s54, s38')
    a('s_mul_i32 s54, s54, 12288')
    a(f's_mul_i32 s55, {sr(S_W)}, 3072')
    a('s_add_u32 s54, s54, s55')
    srd(a, 16, S_WS, 's54', 3072, WS_XP)
    a('s_waitcnt lgkmcnt(0)')
    for tq in range(3):
        for r in range(4):
            a(f'v_add_f32 {vr(R + tq * 4 + r)}, {vr(R + tq * 4 + r)}, {vr(R + 12 + tq * 4 + r)}')
            a(f'v_add_f32 {vr(R + 24 + tq * 4 + r)}, {vr(R + 24 + tq * 4 + r)}, {vr(R + 36 + tq * 4 + r)}')
    for tq in range(3):
        for r in range(4):
            a(f'v_add_f32 {vr(R + tq * 4 + r)}, {vr(R + tq * 4 + r)}, {vr(R + 24 + tq * 4 + r)}')
    a(f's_lshr_b32 s55, {sr(S_W)}, 1')
    a('s_cmp_eq_u32 s55, s39')
    a('s_cbranch_scc1 PX_KEEP')
    for tq in range(3):
        a(f'buffer_store_dwordx4 {vr(R + 4 * tq, 4)}, v4, s[16:19], 0 offen offset:{tq * 1024} sc1')
    a('s_waitcnt vmcnt(0)')
    a.label('PX_KEEP')
    a('s_barrier')
    a(f's_cmp_lg_u32 {sr(S_W)}, 0')
    a('s_cbranch_scc1 PX_D')
    a('s_memrealtime s[54:55]')
    xflag_line(a, 's57')
    srd(a, 20 + 20, S_WS, 's57', 8, WS_FLAG)
    a('s_lshl_b32 s57, s39, 2')
    a('v_mov_b32 v248, s57')
    a('s_waitcnt lgkmcnt(0)')
    a('s_or_b32 s54, s54, 1')
    a('v_mov_b32 v249, s54')
    a('s_mov_b64 exec, 1')
    a('buffer_store_dword v249, v248, s[40:43], 0 offen sc1')
    a('s_mov_b64 exec, -1')
    a('s_xor_b32 s57, s39, 1')
    a('v_readlane_b32 s55, v7, s57')
    a('s_lshl_b32 s57, s57, 2')
    a('v_mov_b32 v248, s57')
    a('s_nop 1')
    a('v_mov_b32 v251, s55')
    poll('PX', 's[40:43]', 'v248', 'v251', 1, False)
    a.label('PX_D')
    a('s_barrier')
    a(f's_lshr_b32 s55, {sr(S_W)}, 1')
    a('s_cmp_lg_u32 s55, s39')
    a('s_cbranch_scc1 FIN')
    for tq in range(3):
        a(f'buffer_load_dwordx4 {vr(R + 12 + 4 * tq, 4)}, v4, s[16:19], 0 offen offset:{tq * 1024} sc1')
    a('v_and_b32 v2, 15, v0')
    a('v_lshrrev_b32 v1, 4, v0')
    a('v_lshlrev_b32 v2, 11, v2')
    a('v_lshl_add_u32 v2, v1, 3, v2')
    a('s_mov_b32 s12, s66')
    a('s_mov_b32 s13, s67')
    a('s_mov_b32 s14, 786432')
    a('s_mov_b32 s15, 0x20000')
    a('s_mul_i32 s54, s37, 48')
    a('s_lshl_b32 s54, s54, 11')
    a('s_lshl_b32 s55, s36, 10')
    a('s_add_u32 s54, s54, s55')
    a('s_lshl_b32 s55, s38, 7')
    a('s_add_u32 s54, s54, s55')
    a(f's_lshl_b32 s55, {sr(S_W)}, 5')
    a('s_add_u32 s54, s54, s55')
    a('s_waitcnt vmcnt(0)')
    for tq in range(3):
        for r in range(4):
            a(f'v_add_f32 {vr(R + tq * 4 + r)}, {vr(R + tq * 4 + r)}, {vr(R + 12 + tq * 4 + r)}')
        a(f'v_cvt_pk_bf16_f32 {vr(R + 24 + 2 * tq)}, {vr(R + tq * 4)}, {vr(R + tq * 4 + 1)}')
        a(f'v_cvt_pk_bf16_f32 {vr(R + 25 + 2 * tq)}, {vr(R + tq * 4 + 2)}, {vr(R + tq * 4 + 3)}')
        a(f's_add_u32 s55, s54, {tq * 32768}')
        a(f'buffer_store_dwordx2 {vr(R + 24 + 2 * tq, 2)}, v2, s[12:15], s55 offen')
    a('s_branch FIN')

HDR = open('cdna_kernels/' + NAME + '.s.ref').read().split('; Override launch')[0]

def kd(name, vgpr, sgpr):
    return f'''.amdhsa_kernel {name}
  .amdhsa_next_free_vgpr {vgpr}
  .amdhsa_next_free_sgpr {sgpr}
  .amdhsa_accum_offset {((vgpr + 3) // 4) * 4}
  .amdhsa_group_segment_fixed_size 0
  .amdhsa_kernarg_size 104
  .amdhsa_user_sgpr_count 2
  .amdhsa_user_sgpr_kernarg_segment_ptr 1
  .amdhsa_system_sgpr_workgroup_id_x 1
.end_amdhsa_kernel
'''

def gen(cfg):
    a = Asm()
    cfg.k1name = NAME + '_kernel'
    out = HDR
    out += '; @launch grid=(512,1,1) block=(256,1,1) lds=81920\n'
    out += '.amdgcn_target "amdgcn-amd-amdhsa--gfx950"\n.text\n'
    attn_kernel(a, cfg)
    out += a.text()
    out += '.section .rodata,"a"\n.p2align 6\n'
    out += kd(cfg.k1name, 256, 100)
    return out

if __name__ == '__main__':
    ap = argparse.ArgumentParser()
    ap.add_argument('-o', default='cdna_kernels/' + NAME + '.s')
    ap.add_argument('--stamps', type=int, default=0)
    ap.add_argument('--ntA', default='def')
    ap.add_argument('--modeA', type=int, default=1)
    ap.add_argument('--warm', type=int, default=1)
    ap.add_argument('--prioB', type=int, default=0)
    ap.add_argument('--ntB', default='nt')
    ap.add_argument('--modeB', type=int, default=1)
    ap.add_argument('--swapab', type=int, default=1)
    ap.add_argument('--only1', type=int, default=0)
    ap.add_argument('--k2ring', type=int, default=6)
    ap.add_argument('--sleep', type=int, default=16)
    ap.add_argument('--psc1', type=int, default=1)
    ap.add_argument('--arot', type=int, default=1)
    ap.add_argument('--wotouch', type=int, default=0)
    ap.add_argument('--qrot', type=int, default=2)
    ap.add_argument('--upA', type=int, default=0)
    ap.add_argument('--upB', type=int, default=0)
    ap.add_argument('--lateA', type=int, default=0)
    ap.add_argument('--lateB', type=int, default=0)
    ap.add_argument('--pro', type=int, default=0)
    ap.add_argument('--typemode', type=int, default=0)
    ap.add_argument('--noinit', type=int, default=1)
    ap.add_argument('--bxor', type=int, default=0)
    cfg = ap.parse_args()
    def pf(x):
        x = x.replace('def', '')
        return tuple(x.split(',')) if ',' in x else (x, x)
    cfg.ntA = pf(cfg.ntA); cfg.ntB = pf(cfg.ntB)
    open(cfg.o, 'w').write(gen(cfg))
    print('wrote', cfg.o)
```
